```python
import torch

def _softmax(x, axis=-1):
    return torch.softmax(x, dim=axis)

def _gelu(x):
    return torch.nn.functional.gelu(x, approximate='tanh')

def _silu(x):
    return torch.nn.functional.silu(x)

def _sigmoid(x):
    return torch.sigmoid(x)

def _layernorm(x, axis=-1, eps=1e-05):
    m = x.mean(dim=axis, keepdim=True)
    v = x.var(dim=axis, keepdim=True, unbiased=False)
    return (x - m) / torch.sqrt(v + eps)

def _scatter_add(tgt, idx, src, axis=0):
    return tgt.clone().index_add_(axis, idx, src)

def _segment_sum(src, seg, n):
    out = torch.zeros((n,) + src.shape[1:], dtype=src.dtype)
    return out.index_add_(0, seg, src)

def _pad(x, pw):
    flat = tuple((v for pair in reversed(pw) for v in pair))
    return torch.nn.functional.pad(x, flat)
kernel_name = 'gather_scatter__tensor_product_equiv_tfn__graph'

def setup_inputs():

    _w = lambda a: (lambda t: t.to(torch.bfloat16) if t.is_floating_point() else t)(torch.as_tensor(a))
    N, deg, C, L, DE = (10000, 16, 128, 1, 16)
    E = N * deg
    M = (L + 1) ** 2
    src = (lambda lo, hi, *s: torch.randint(lo, hi, s))(0, N, E).to(torch.int64)
    dst = (lambda lo, hi, *s: torch.randint(lo, hi, s))(0, N, E).to(torch.int64)
    r = (lambda *s: torch.randn(*s, dtype=torch.bfloat16) * 0.05)(E, 3)
    r = r / (torch.linalg.norm(r, dim=-1, keepdim=True) + 1e-09)
    rx, ry, rz = (r[:, 0].clone(), r[:, 1].clone(), r[:, 2].clone())
    Ys = [torch.ones((E, 1), dtype=float)]
    if L >= 1:
        Ys.append(r.to(float))
    if L >= 2:
        Ys.append(torch.stack([2 * rx * ry, 2 * ry * rz, (3 * rz * rz - 1.0) / (lambda _x: torch.sqrt(torch.as_tensor(_x)))(3.0), 2 * rx * rz, rx * rx - ry * ry], dim=-1).to(float))
    for _l in range(3, L + 1):
        Ys.append(((lambda *s: torch.randn(*s, dtype=torch.bfloat16) * 0.05)(E, 2 * _l + 1) * 0.3).to(float))
    Y = torch.cat(Ys, dim=-1)
    cg = torch.zeros((M, M, M), dtype=float)
    off = [_l * _l for _l in range(L + 2)]
    for l1 in range(L + 1):
        for l2 in range(L + 1):
            for l3 in range(abs(l1 - l2), min(L, l1 + l2) + 1):
                d1, d2, d3 = (2 * l1 + 1, 2 * l2 + 1, 2 * l3 + 1)
                cg[off[l1]:off[l1 + 1], off[l2]:off[l2 + 1], off[l3]:off[l3 + 1]] = (lambda *s: torch.randn(*s, dtype=torch.bfloat16) * 0.05)(d1, d2, d3) / (lambda _x: torch.sqrt(torch.as_tensor(_x)))(float(d1 * d2))
    return {'x': _w((lambda *s: torch.randn(*s, dtype=torch.bfloat16) * 0.05)(N, C, M) * 0.2), 'src': _w(src), 'dst': _w(dst), 'Y': _w(Y), 'edge_feat': _w((lambda *s: torch.randn(*s, dtype=torch.bfloat16) * 0.05)(E, DE)), 'w_rad': _w((lambda *s: torch.randn(*s, dtype=torch.bfloat16) * 0.05)(DE, C) * (1.0 / max(1.0, DE) ** 0.5)), 'cg': _w(cg), 'w_mix': _w((lambda *s: torch.randn(*s, dtype=torch.bfloat16) * 0.05)(C, C) * (1.0 / max(1.0, C) ** 0.5))}

def reference(x, src, dst, Y, edge_feat, w_rad, cg, w_mix):
    N, C, M = (x.shape[0], x.shape[1], x.shape[2])
    R = _silu(edge_feat @ w_rad)
    xs = x[src]
    tp = torch.einsum('eci,ef,ifo->eco', xs, Y, cg)
    msg = R[:, :, None] * tp
    agg = _segment_sum(msg.reshape(-1, C * M), dst, N).reshape(N, C, M)
    return torch.einsum('ncm,cd->ndm', agg, w_mix)
```

```python
import sys, struct

N_NODES = 10000
N_EDGES = 160000
CHUNK = 625
REC_OFF = 0
TAB_OFF = 0x800000
BRAD_OFF = 0x840000
CGW_OFF = 0x841000
BMIX_OFF = 0x842000
WS_SIZE = 0x850000
X_BYTES = N_NODES * 1024

def f2u(x):
    return struct.unpack('<I', struct.pack('<f', x))[0]
LOG2E = 1.4426950408889634
LN2 = 0.6931471805599453


class Asm:
    def __init__(self):
        self.lines = []
    def __call__(self, s=''):
        for ln in s.split('\n'):
            self.lines.append(ln)
    def I(self, s):
        self.lines.append('    ' + s)
    def L(self, name):
        self.lines.append(name + ':')
    def text(self):
        return '\n'.join(self.lines) + '\n'


def vr(base, n=1):
    return f'v{base}' if n == 1 else f'v[{base}:{base+n-1}]'
def sr(base, n=1):
    return f's{base}' if n == 1 else f's[{base}:{base+n-1}]'


def srd(a, dst, ptr, size):
    a.I(f's_mov_b32 s{dst}, s{ptr}')
    a.I(f's_and_b32 s{dst+1}, s{ptr+1}, 0xffff')
    a.I(f's_mov_b32 s{dst+2}, {size:#x}')
    a.I(f's_mov_b32 s{dst+3}, 0x20000')


def scan_dpp(a, v, full64):
    for sh in (1, 2, 4, 8):
        a.I('s_nop 1')
        a.I(f'v_add_u32_dpp v{v}, v{v}, v{v} row_shr:{sh} row_mask:0xf bank_mask:0xf')
    a.I('s_nop 1')
    a.I(f'v_add_u32_dpp v{v}, v{v}, v{v} row_bcast:15 row_mask:0xa bank_mask:0xf')
    if full64:
        a.I('s_nop 1')
        a.I(f'v_add_u32_dpp v{v}, v{v}, v{v} row_bcast:31 row_mask:0xc bank_mask:0xf')


def hist_prefix(a, vC, vS, vTot, vLane16, hist_off, base_off):
    a.I(f'ds_read_b128 {vr(vC,4)}, v{vLane16} offset:{hist_off}')
    a.I('s_waitcnt lgkmcnt(0)')
    a.I(f'v_add_u32 v{vS+2}, v{vC}, v{vC+1}')
    a.I(f'v_add_u32 v{vS+3}, v{vS+2}, v{vC+2}')
    a.I(f'v_add_u32 v{vTot}, v{vS+3}, v{vC+3}')
    a.I(f'v_mov_b32 v{vS}, v{vTot}')
    scan_dpp(a, vTot, True)
    a.I('s_nop 0')
    a.I(f'v_sub_u32 v{vS}, v{vTot}, v{vS}')
    a.I(f'v_add_u32 v{vS+1}, v{vS}, v{vC}')
    a.I(f'v_add_u32 v{vS+2}, v{vS}, v{vS+2}')
    a.I(f'v_add_u32 v{vS+3}, v{vS}, v{vS+3}')
    a.I(f'ds_write_b128 v{vLane16}, {vr(vS,4)} offset:{base_off}')


def stamp(a, cfg, idx, sdbg, tmp_s, tmp_v):
    if not cfg.get('stamps'):
        return
    a.I(f's_memrealtime s[{tmp_s}:{tmp_s+1}]')
    a.I('s_waitcnt lgkmcnt(0)')
    a.I(f'v_mov_b32 v{tmp_v}, s{tmp_s}')
    a.I(f'v_mov_b32 v{tmp_v+1}, s{sdbg}')
    a.I(f'buffer_store_dword v{tmp_v}, v{tmp_v+1}, s[{cfg["stamp_srd"]}:{cfg["stamp_srd"]+3}], 0 offen offset:{idx*4}')


STAMP_OFF = 0x900000


def gen_k1(a, cfg):
    name = 'bin_kernel'
    NPF = cfg.get('npf1', 6)
    scaled = cfg.get('scaled', False)
    a(f'.globl {name}\n.p2align 8\n.type {name},@function\n{name}:')
    sDST, sSRC, sY, sEF, sWS, sX, sPREP = 8, 12, 16, 20, 24, 28, 32
    a.I('s_cmp_ge_u32 s2, 256')
    a.I('s_cbranch_scc1 K1_END')
    a.I('s_load_dwordx4 s[44:47], s[0:1], 0')
    a.I('s_load_dwordx4 s[48:51], s[0:1], 16')
    a.I('s_load_dwordx4 s[52:55], s[0:1], 32')
    a.I('s_load_dwordx4 s[56:59], s[0:1], 48')
    a.I('s_load_dwordx2 s[60:61], s[0:1], 80')
    vT, vLane, vT4, vE, vOff = 0, 1, 2, 3, 4
    vDst, vSrc = 5, 6
    vRec = 8
    vY = 9
    vEF = 12
    vKey, vRank, vOne, vTmp = 20, 21, 22, 23
    vC, vS, vTot, vL16 = 24, 28, 32, 33
    vPrep, vPrepAddr, vPf = 34, 35, 36
    vT2 = 37
    a.I(f'v_and_b32 v{vLane}, 63, v0')
    a.I(f'v_lshlrev_b32 v{vT4}, 2, v0')
    a.I(f'v_lshrrev_b32 v{vTmp}, 6, v0')
    a.I(f'v_mov_b32 v{vOne}, 1')
    a.I(f'v_readfirstlane_b32 s4, v{vTmp}')
    a.I(f'v_mov_b32 v{vTmp}, 0')
    a.I(f'v_lshlrev_b32 v{vL16}, 4, v{vLane}')
    a.I('v_cmp_gt_u32 vcc, 256, v0')
    a.I('s_and_saveexec_b64 s[6:7], vcc')
    a.I('s_cbranch_execz K1_Z')
    a.I(f'ds_write_b32 v{vT4}, v{vTmp}')
    a.L('K1_Z')
    a.I('s_mov_b64 exec, s[6:7]')
    a.I(f's_mul_i32 s5, s2, {CHUNK}')
    a.I(f'v_add_u32 v{vE}, s5, v0')
    a.I('s_waitcnt lgkmcnt(0)')
    srd(a, sDST, 48, N_EDGES * 4)
    srd(a, sSRC, 46, N_EDGES * 4)
    srd(a, sY, 50, N_EDGES * 8)
    srd(a, sEF, 52, N_EDGES * 32)
    srd(a, sWS, 60, WS_SIZE if not cfg.get('stamps') else STAMP_OFF + 0x10000)
    srd(a, sX, 44, X_BYTES)
    if cfg.get('stamps'):
        cfg['stamp_srd'] = sWS
        a.I(f's_lshl_b32 s62, s2, 6')
        a.I(f's_add_u32 s62, s62, {STAMP_OFF:#x}')
        a.I('s_cmp_eq_u32 s4, 0')
        a.I('s_cbranch_scc0 K1_ST0')
        stamp(a, cfg, 0, 62, 64, 38)
        a.L('K1_ST0')
    a.I(f'v_mov_b32 v{vPrepAddr}, 0x7ffffff0')
    a.I('s_cmp_eq_u32 s4, 9')
    a.I('s_cbranch_scc1 K1_PA')
    a.I('s_cmp_eq_u32 s4, 8')
    a.I('s_cbranch_scc0 K1_PDONE')
    a.I('s_cmp_lt_u32 s2, 32')
    a.I('s_cbranch_scc1 K1_PB')
    a.I('s_cmp_eq_u32 s2, 32')
    a.I('s_cbranch_scc0 K1_PDONE')
    srd(a, sPREP, 56, 128)
    a.I(f'v_and_b32 v{vTmp}, 3, v{vLane}')
    a.I(f'v_lshlrev_b32 v{vTmp}, 4, v{vTmp}')
    a.I(f'v_and_b32 v{vT2}, 12, v{vLane}')
    a.I(f'v_add_u32 v{vTmp}, v{vTmp}, v{vT2}')
    a.I(f'v_lshrrev_b32 v{vT2}, 4, v{vLane}')
    a.I(f'v_add_lshl_u32 v{vTmp}, v{vTmp}, v{vT2}, 1')
    a.I(f'buffer_load_ushort v{vPrep}, v{vTmp}, s[{sPREP}:{sPREP+3}], 0 offen')
    a.I(f'v_lshlrev_b32 v{vPrepAddr}, 2, v{vLane}')
    a.I(f'v_add_u32 v{vPrepAddr}, {CGW_OFF:#x}, v{vPrepAddr}')
    a.I('s_branch K1_PDONE')
    a.L('K1_PB')
    srd(a, sPREP, 54, 16 * 128 * 2)
    a.I('s_lshl_b32 s5, s2, 6')
    a.I(f'v_add_u32 v{vPrepAddr}, s5, v{vLane}')
    a.I(f'v_lshrrev_b32 v{vTmp}, 3, v{vPrepAddr}')
    a.I(f'v_bfe_u32 v{vT2}, v{vTmp}, 5, 1')
    a.I(f'v_lshlrev_b32 v{vT2}, 3, v{vT2}')
    a.I(f'v_and_b32 v{vPf}, 7, v{vPrepAddr}')
    a.I(f'v_add_u32 v{vT2}, v{vT2}, v{vPf}')
    a.I(f'v_lshlrev_b32 v{vT2}, 7, v{vT2}')
    a.I(f'v_and_b32 v{vPf}, 31, v{vTmp}')
    a.I(f'v_lshl_add_u32 v{vT2}, v{vPf}, 1, v{vT2}')
    a.I(f'v_bfe_u32 v{vPf}, v{vTmp}, 6, 1')
    a.I(f'v_lshl_add_u32 v{vT2}, v{vPf}, 6, v{vT2}')
    a.I(f'v_bfe_u32 v{vPf}, v{vTmp}, 7, 1')
    a.I(f'v_add_lshl_u32 v{vT2}, v{vT2}, v{vPf}, 1')
    a.I(f'buffer_load_ushort v{vPrep}, v{vT2}, s[{sPREP}:{sPREP+3}], 0 offen')
    a.I(f'v_lshlrev_b32 v{vPrepAddr}, 1, v{vPrepAddr}')
    a.I(f'v_add_u32 v{vPrepAddr}, {BRAD_OFF:#x}, v{vPrepAddr}')
    a.I('s_branch K1_PDONE')
    a.L('K1_PA')
    srd(a, sPREP, 58, 128 * 128 * 2)
    a.I('s_lshl_b32 s5, s2, 6')
    a.I(f'v_add_u32 v{vPrepAddr}, s5, v{vLane}')
    a.I(f'v_lshrrev_b32 v{vTmp}, 3, v{vPrepAddr}')
    a.I(f'v_bfe_u32 v{vT2}, v{vTmp}, 6, 2')
    a.I(f'v_lshlrev_b32 v{vT2}, 5, v{vT2}')
    a.I(f'v_bfe_u32 v{vPf}, v{vTmp}, 4, 2')
    a.I(f'v_lshl_add_u32 v{vT2}, v{vPf}, 3, v{vT2}')
    a.I(f'v_and_b32 v{vPf}, 7, v{vPrepAddr}')
    a.I(f'v_add_u32 v{vT2}, v{vT2}, v{vPf}')
    a.I(f'v_lshlrev_b32 v{vT2}, 7, v{vT2}')
    a.I(f'v_and_b32 v{vPf}, 15, v{vTmp}')
    a.I(f'v_lshl_add_u32 v{vT2}, v{vPf}, 1, v{vT2}')
    a.I(f'v_lshrrev_b32 v{vPf}, 9, v{vTmp}')
    a.I(f'v_lshl_add_u32 v{vT2}, v{vPf}, 5, v{vT2}')
    a.I(f'v_bfe_u32 v{vPf}, v{vTmp}, 8, 1')
    a.I(f'v_add_lshl_u32 v{vT2}, v{vT2}, v{vPf}, 1')
    a.I(f'buffer_load_ushort v{vPrep}, v{vT2}, s[{sPREP}:{sPREP+3}], 0 offen')
    a.I(f'v_lshlrev_b32 v{vPrepAddr}, 1, v{vPrepAddr}')
    a.I(f'v_add_u32 v{vPrepAddr}, {BMIX_OFF:#x}, v{vPrepAddr}')
    a.L('K1_PDONE')
    a.I(f'v_lshlrev_b32 v{vOff}, 2, v{vE}')
    a.I(f'buffer_load_dword v{vDst}, v{vOff}, s[{sDST}:{sDST+3}], 0 offen')
    a.I(f'buffer_load_dword v{vSrc}, v{vOff}, s[{sSRC}:{sSRC+3}], 0 offen')
    a.I(f'v_lshlrev_b32 v{vOff}, 3, v{vE}')
    a.I(f'buffer_load_dwordx2 {vr(vRec,2)}, v{vOff}, s[{sY}:{sY+3}], 0 offen')
    a.I(f'v_lshlrev_b32 v{vOff}, 5, v{vE}')
    a.I(f'buffer_load_dwordx4 {vr(vEF,4)}, v{vOff}, s[{sEF}:{sEF+3}], 0 offen')
    a.I(f'buffer_load_dwordx4 {vr(vEF+4,4)}, v{vOff}, s[{sEF}:{sEF+3}], 0 offen offset:16')
    a.I('s_lshr_b32 s5, s2, 3')
    a.I('s_lshl_b32 s63, s4, 5')
    a.I('s_add_u32 s5, s5, s63')
    a.I('s_lshl_b32 s5, s5, 13')
    a.I(f's_cmp_lt_u32 s4, {NPF}')
    a.I(f's_cselect_b32 s5, s5, 0x7ff00000')
    a.I(f'v_lshlrev_b32 v{vPf}, 7, v{vLane}')
    a.I(f'v_add_u32 v{vPf}, s5, v{vPf}')
    a.I(f'buffer_load_dword v{vPf}, v{vPf}, s[{sX}:{sX+3}], 0 offen')
    a.I('s_waitcnt lgkmcnt(0)')
    a.I('s_barrier')
    a.I(f'v_cmp_gt_u32 vcc, {CHUNK}, v0')
    a.I('s_and_saveexec_b64 s[6:7], vcc')
    a.I('s_waitcnt vmcnt(5)')
    a.I(f'v_and_b32 v{vKey}, 7, v{vDst}')
    a.I(f'v_bfe_u32 v{vTmp}, v{vDst}, 3, 5')
    a.I(f'v_lshl_or_b32 v{vKey}, v{vKey}, 5, v{vTmp}')
    a.I(f'v_lshlrev_b32 v{vKey}, 2, v{vKey}')
    a.I(f'ds_add_rtn_u32 v{vRank}, v{vKey}, v{vOne}')
    a.I('s_mov_b64 exec, s[6:7]')
    a.I('s_waitcnt lgkmcnt(0)')
    a.I('s_barrier')
    hist_prefix(a, vC, vS, vTot, vL16, 0, 1024)
    for i in range(4):
        a.I(f'v_lshl_or_b32 v{vC+i}, v{vC+i}, 16, v{vS+i}')
    a.I(f'v_cmp_gt_u32 vcc, {CHUNK}, v0')
    a.I('s_waitcnt lgkmcnt(0)')
    a.I('s_and_saveexec_b64 s[6:7], vcc')
    a.I(f'ds_read_b32 v{vTmp}, v{vKey} offset:1024')
    a.I(f's_mul_i32 s5, s2, {CHUNK}')
    a.I(f'v_lshrrev_b32 v{vT2}, 8, v{vDst}')
    a.I('s_waitcnt vmcnt(1)')
    a.I(f'v_lshl_or_b32 v{vRec+2}, v{vT2}, 14, v{vSrc}')
    a.I(f'v_mov_b32 v{vRec+3}, v{vE}')
    a.I('s_waitcnt lgkmcnt(0)')
    a.I(f'v_add3_u32 v{vTmp}, v{vTmp}, v{vRank}, s5')
    a.I(f'v_mul_u32_u24 v{vTmp}, 48, v{vTmp}')
    st = cfg.get('k1st', '')
    a.I(f'buffer_store_dwordx4 {vr(vRec,4)}, v{vTmp}, s[{sWS}:{sWS+3}], 0 offen' + st)
    a.I(f'buffer_store_dwordx4 {vr(vEF,4)}, v{vTmp}, s[{sWS}:{sWS+3}], 0 offen offset:16' + st)
    a.I(f'buffer_store_dwordx4 {vr(vEF+4,4)}, v{vTmp}, s[{sWS}:{sWS+3}], 0 offen offset:32' + st)
    a.I('s_mov_b64 exec, s[6:7]')
    a.I('s_cmp_eq_u32 s4, 0')
    a.I('s_cbranch_scc0 K1_NT')
    a.I('s_lshl_b32 s5, s2, 10')
    a.I(f's_add_u32 s5, s5, {TAB_OFF:#x}')
    a.I(f'buffer_store_dwordx4 {vr(vC,4)}, v{vL16}, s[{sWS}:{sWS+3}], s5 offen' + st)
    if cfg.get('stamps'):
        stamp(a, cfg, 1, 62, 64, 38)
    a.L('K1_NT')
    a.I('s_cmp_eq_u32 s4, 9')
    a.I('s_cbranch_scc1 K1_PS16')
    a.I('s_cmp_eq_u32 s4, 8')
    a.I('s_cbranch_scc0 K1_END')
    a.I('s_cmp_lt_u32 s2, 32')
    a.I('s_cbranch_scc1 K1_PSR')
    a.I('s_cmp_eq_u32 s2, 32')
    a.I('s_cbranch_scc0 K1_END')
    a.I(f'v_lshlrev_b32 v{vPrep}, 16, v{vPrep}')
    if scaled:
        a.I(f'v_mul_f32 v{vPrep}, {f2u(-LN2):#x}, v{vPrep}')
    a.I(f'buffer_store_dword v{vPrep}, v{vPrepAddr}, s[{sWS}:{sWS+3}], 0 offen')
    a.I('s_branch K1_END')
    a.L('K1_PSR')
    if scaled:
        a.I(f'v_lshlrev_b32 v{vPrep}, 16, v{vPrep}')
        a.I(f'v_mul_f32 v{vPrep}, {f2u(-LOG2E):#x}, v{vPrep}')
        a.I(f'v_cvt_pk_bf16_f32 v{vPrep}, v{vPrep}, v{vPrep}')
    a.L('K1_PS16')
    a.I(f'buffer_store_short v{vPrep}, v{vPrepAddr}, s[{sWS}:{sWS+3}], 0 offen')
    a.L('K1_END')
    a.I('s_endpgm')
    return name, 40, 72


def kd(a, name, nv, ns):
    a(f""".amdhsa_kernel {name}
  .amdhsa_next_free_vgpr {nv}
  .amdhsa_next_free_sgpr {ns}
  .amdhsa_accum_offset {(nv + 3) // 4 * 4}
  .amdhsa_group_segment_fixed_size 0
  .amdhsa_kernarg_size 88
  .amdhsa_user_sgpr_count 2
  .amdhsa_user_sgpr_kernarg_segment_ptr 1
  .amdhsa_system_sgpr_workgroup_id_x 1
  .amdhsa_float_denorm_mode_32 3
.end_amdhsa_kernel""")


HIST = 0
BASE = 1024
MAXR = 2048
ZERO16 = 2064
WL = 4096
CAP = 1024
ENT = 8192
YS = 12800
EFS = 21248
AGG = 55040
AGG_STRIDE = 272
K2_LDS = AGG + 160 * AGG_STRIDE


def gen_k2(a, cfg):
    name = 'main_kernel'
    scaled = cfg.get('scaled', False)
    NPF1 = cfg.get('npf1', 6)
    NPF2 = cfg.get('npf2', 0)
    a(f'.globl {name}\n.p2align 8\n.type {name},@function\n{name}:')
    sX, sWS, sOUT = 8, 12, 16
    sW, sB, sKEY, sNW, sRND, sMAXR = 4, 5, 6, 7, 20, 21
    sSEG0, sN, sCNT, sXO, sREM = 22, 23, 24, 25, 26
    sT0, sT1, sT2 = 27, 28, 29
    sMLO, sMHI = 30, 32
    sCL = 34
    sSAVE = 36
    sV0, sV1 = 38, 40
    sE = 48
    sDBG = 64
    vLane, vL16, vL15 = 1, 2, 3
    vTmp = 4
    vEntA, vYA, vEfA = 12, 13, 14
    vAL_A, vAH_A = 15, 16
    vENTc, vENTn = 17, 18
    vWc, vWn = 20, 22
    vYraw = 24
    vYf = 26
    vWf = 30
    vHS = 34
    vT = 38
    vR = 42
    vAL, vAH = 52, 56
    vACC = 64
    vXR = 104
    vTP = 120
    vH0, vH1 = 136, 152
    vBR = 168
    vCG = 184
    vBM = 200
    NV = 232
    vRecA, vRecB = 104, 116
    vP = 136

    a.I('s_cmp_ge_u32 s2, 256')
    a.I('s_cbranch_scc1 K2_END')
    a.I('s_load_dwordx2 s[44:45], s[0:1], 0')
    a.I('s_load_dwordx2 s[46:47], s[0:1], 64')
    a.I('s_load_dwordx2 s[42:43], s[0:1], 80')
    a.I(f'v_and_b32 v{vLane}, 63, v0')
    a.I(f'v_lshrrev_b32 v{vTmp}, 6, v0')
    a.I(f'v_lshlrev_b32 v{vL16}, 4, v{vLane}')
    a.I(f'v_readfirstlane_b32 s{sW}, v{vTmp}')
    a.I(f'v_and_b32 v{vL15}, 15, v{vLane}')
    a.I(f's_mov_b32 s{sB}, s2')
    a.I(f's_and_b32 s{sKEY}, s2, 7')
    a.I(f's_lshl_b32 s{sKEY}, s{sKEY}, 5')
    a.I(f's_lshr_b32 s{sT0}, s2, 3')
    a.I(f's_or_b32 s{sKEY}, s{sKEY}, s{sT0}')
    a.I(f'v_mov_b32 v{vTmp+1}, 0')
    a.I(f'v_lshlrev_b32 v{vTmp+2}, 2, v0')
    a.I('v_cmp_gt_u32 vcc, 256, v0')
    a.I(f's_and_saveexec_b64 s[{sSAVE}:{sSAVE+1}], vcc')
    a.I('s_cbranch_execz K2_Z0')
    a.I(f'ds_write_b32 v{vTmp+2}, v{vTmp+1} offset:{HIST}')
    a.L('K2_Z0')
    a.I(f's_mov_b64 exec, s[{sSAVE}:{sSAVE+1}]')
    a.I(f'v_subrev_u32 v{vTmp+3}, 256, v0')
    a.I(f'v_cmp_gt_u32 vcc, 8, v{vTmp+3}')
    a.I(f's_and_saveexec_b64 s[{sSAVE}:{sSAVE+1}], vcc')
    a.I('s_cbranch_execz K2_Z1')
    a.I(f'ds_write_b32 v{vTmp+2}, v{vTmp+1} offset:{MAXR-1024}')
    a.L('K2_Z1')
    a.I(f's_mov_b64 exec, s[{sSAVE}:{sSAVE+1}]')
    for i in range(40):
        a.I(f'v_mov_b32 v{vACC+i}, 0')
    a.I(f's_mov_b32 s{sMLO}, 0x0f0f0f0f')
    a.I(f's_mov_b32 s{sMLO+1}, 0x0f0f0f0f')
    a.I(f's_mov_b32 s{sMHI}, 0xf0f0f0f0')
    a.I(f's_mov_b32 s{sMHI+1}, 0xf0f0f0f0')
    a.I(f's_mov_b32 s{sCL}, {f2u(-LOG2E):#x}')
    a.I(f's_mov_b32 s{sCL+1}, {f2u(-LOG2E):#x}')
    a.I(f's_mov_b32 s{sRND}, 0')
    a.I('s_waitcnt lgkmcnt(0)')
    srd(a, sX, 44, X_BYTES)
    srd(a, sWS, 42, WS_SIZE if not cfg.get('stamps') else STAMP_OFF + 0x10000)
    srd(a, sOUT, 46, X_BYTES)
    if cfg.get('stamps'):
        cfg['stamp_srd'] = sWS
        a.I(f's_lshl_b32 s{sDBG}, s2, 6')
        a.I(f's_add_u32 s{sDBG}, s{sDBG}, {STAMP_OFF + 0x8000:#x}')
        a.I(f's_cmp_eq_u32 s{sW}, 0')
        a.I('s_cbranch_scc0 K2_ST0')
        stamp(a, cfg, 0, sDBG, 66, vTmp+4)
        a.L('K2_ST0')
    vChunk, vTab, vCnt, vInc, vExc, vRb = vP, vP+1, vP+2, vP+3, vP+4, vP+5
    a.I(f'v_and_b32 v{vChunk}, 31, v{vLane}')
    a.I(f's_lshl_b32 s{sT0}, s{sW}, 5')
    a.I(f'v_add_u32 v{vChunk}, s{sT0}, v{vChunk}')
    a.I(f'v_lshlrev_b32 v{vTmp}, 10, v{vChunk}')
    a.I(f's_lshl_b32 s{sT0}, s{sKEY}, 2')
    a.I(f's_add_u32 s{sT0}, s{sT0}, {TAB_OFF:#x}')
    a.I(f'buffer_load_dword v{vTab}, v{vTmp}, s[{sWS}:{sWS+3}], s{sT0} offen')
    a.I('s_barrier')
    a.I('s_waitcnt vmcnt(0)')
    vCntP, vExcP, vRbP = vTmp+1, vTmp+2, vTmp+3
    a.I(f'v_lshrrev_b32 v{vCntP}, 16, v{vTab}')
    a.I(f'v_and_b32 v{vRbP}, 0xffff, v{vTab}')
    a.I(f'v_mov_b32 v{vInc}, v{vCntP}')
    a.I(f'v_mad_u32_u24 v{vRbP}, v{vChunk}, v{vOneConst(a, vTmp+4, CHUNK)}, v{vRbP}')
    scan_dpp(a, vInc, False)
    a.I('s_nop 0')
    a.I(f'v_sub_u32 v{vExcP}, v{vInc}, v{vCntP}')
    a.I(f'v_readlane_b32 s{sNW}, v{vInc}, 31')
    a.I('s_nop 3')
    a.I(f's_add_u32 s{sT0}, s{sNW}, 127')
    a.I(f's_lshr_b32 s{sT0}, s{sT0}, 7')
    a.I(f'v_mov_b32 v{vTmp}, s{sT0}')
    a.I(f'v_mov_b32 v{vTmp+4}, {MAXR}')
    a.I(f'ds_max_u32 v{vTmp+4}, v{vTmp}')
    a.L('K2_ROUND')
    vK, vHi, vAd, vVal = vP, vP+1, vP+2, vP+3
    a.I(f's_lshl_b32 s{sT0}, s{sRND}, 7')
    a.I(f'v_sub_u32 v{vK}, s{sT0}, v{vExcP}')
    a.I(f'v_add_u32 v{vHi}, 128, v{vK}')
    a.I(f'v_min_i32 v{vHi}, v{vHi}, v{vCntP}')
    a.I(f'v_max_i32 v{vK}, 0, v{vK}')
    a.I(f'v_lshrrev_b32 v{vTmp}, 5, v{vLane}')
    a.I(f'v_add_u32 v{vK}, v{vK}, v{vTmp}')
    a.I(f'v_add_u32 v{vVal}, v{vRbP}, v{vK}')
    a.I(f'v_add_u32 v{vAd}, v{vExcP}, v{vK}')
    a.I(f'v_subrev_u32 v{vAd}, s{sT0}, v{vAd}')
    a.I(f's_lshl_b32 s{sT1}, s{sW}, 9')
    a.I(f's_add_u32 s{sT1}, s{sT1}, {WL}')
    a.I(f'v_lshl_add_u32 v{vAd}, v{vAd}, 2, s{sT1}')
    a.L('K2_EXP')
    a.I(f'v_cmp_lt_i32 vcc, v{vK}, v{vHi}')
    a.I('s_and_b64 exec, exec, vcc')
    a.I('s_cbranch_scc0 K2_EXPD')
    a.I(f'ds_write_b32 v{vAd}, v{vVal}')
    a.I(f'v_add_u32 v{vK}, 2, v{vK}')
    a.I(f'v_add_u32 v{vVal}, 2, v{vVal}')
    a.I(f'v_add_u32 v{vAd}, 8, v{vAd}')
    a.I('s_branch K2_EXP')
    a.L('K2_EXPD')
    a.I('s_mov_b64 exec, -1')
    a.I(f'v_lshl_add_u32 v{vTmp}, v{vLane}, 2, s{sT1}')
    a.I('s_waitcnt lgkmcnt(0)')
    a.I(f'ds_read_b32 v{vP}, v{vTmp}')
    a.I(f'ds_read_b32 v{vP+1}, v{vTmp} offset:256')
    a.I(f's_sub_i32 s{sT2}, s{sNW}, s{sT0}')
    a.I(f'v_cmp_gt_i32 s[{sV0}:{sV0+1}], s{sT2}, v{vLane}')
    a.I(f'v_add_u32 v{vTmp}, 64, v{vLane}')
    a.I(f'v_cmp_gt_i32 s[{sV1}:{sV1+1}], s{sT2}, v{vTmp}')
    a.I(f'v_mov_b32 v{vTmp}, 0x7ffffff0')
    a.I('s_waitcnt lgkmcnt(0)')
    a.I(f'v_mul_u32_u24 v{vP}, 48, v{vP}')
    a.I(f'v_mul_u32_u24 v{vP+1}, 48, v{vP+1}')
    a.I(f'v_cndmask_b32 v{vP}, v{vTmp}, v{vP}, s[{sV0}:{sV0+1}]')
    a.I(f'v_cndmask_b32 v{vP+1}, v{vTmp}, v{vP+1}, s[{sV1}:{sV1+1}]')
    for rec, vo in ((vRecA, vP), (vRecB, vP+1)):
        for q in range(3):
            a.I(f'buffer_load_dwordx4 {vr(rec+4*q,4)}, v{vo}, s[{sWS}:{sWS+3}], 0 offen offset:{16*q}')
    a.I(f'v_add_u32 v{vTmp}, {BRAD_OFF:#x}, v{vL16}')
    for q in range(4):
        a.I(f'buffer_load_dwordx4 {vr(vBR+4*q,4)}, v{vTmp}, s[{sWS}:{sWS+3}], 0 offen offset:{1024*q}')
    a.I(f'v_and_b32 v{vTmp}, 3, v{vLane}')
    a.I(f'v_lshlrev_b32 v{vTmp}, 6, v{vTmp}')
    a.I(f'v_add_u32 v{vTmp}, {CGW_OFF:#x}, v{vTmp}')
    for q in range(4):
        a.I(f'buffer_load_dwordx4 {vr(vCG+4*q,4)}, v{vTmp}, s[{sWS}:{sWS+3}], 0 offen offset:{16*q}')
    nextra = 8
    if NPF2 > 0:
        a.I(f's_lshr_b32 s{sT0}, s{sB}, 3')
        a.I(f's_add_u32 s{sT1}, s{sW}, {NPF1}')
        a.I(f's_lshl_b32 s{sT1}, s{sT1}, 5')
        a.I(f's_add_u32 s{sT0}, s{sT0}, s{sT1}')
        a.I(f's_lshl_b32 s{sT0}, s{sT0}, 13')
        a.I(f's_cmp_lt_u32 s{sW}, {NPF2}')
        a.I(f's_cselect_b32 s{sT0}, s{sT0}, 0x7ff00000')
        a.I(f'v_lshlrev_b32 v{vTmp}, 7, v{vLane}')
        a.I(f'v_add_u32 v{vTmp}, s{sT0}, v{vTmp}')
        a.I(f'buffer_load_dword v{vTmp+5}, v{vTmp}, s[{sX}:{sX+3}], 0 offen')
        nextra += 1
    a.I(f's_waitcnt vmcnt({nextra})')
    if cfg.get('stamps'):
        a.I(f's_cmp_eq_u32 s{sW}, 0')
        a.I('s_cbranch_scc0 K2_ST1')
        stamp(a, cfg, 1, sDBG, 66, vP+20)
        a.L('K2_ST1')
    vOne = vP+2
    a.I(f'v_mov_b32 v{vOne}, 1')
    vBin = (vP+4, vP+5); vEnt = (vP+6, vP+7); vRank = (vP+8, vP+9)
    for i, rec in enumerate((vRecA, vRecB)):
        w0 = rec + 2
        a.I(f'v_and_b32 v{vTmp}, 0x3fff, v{w0}')
        a.I(f'v_bfe_u32 v{vP+10}, v{w0}, 14, 3')
        a.I(f'v_mul_u32_u24 v{vP+11}, 838, v{vTmp}')
        a.I(f'v_lshrrev_b32 v{vP+11}, 18, v{vP+11}')
        a.I(f'v_lshl_add_u32 v{vP+11}, v{vP+10}, 5, v{vP+11}')
        a.I(f'v_lshlrev_b32 v{vBin[i]}, 2, v{vP+11}')
        a.I(f'v_bfe_u32 v{vP+10}, v{w0}, 17, 3')
        a.I(f'v_lshlrev_b32 v{vP+10}, 3, v{vP+10}')
        a.I(f'v_lshl_or_b32 v{vEnt[i]}, v{vTmp}, 10, v{vP+10}')
    for i, m in enumerate((sV0, sV1)):
        a.I(f's_mov_b64 exec, s[{m}:{m+1}]')
        a.I(f's_cbranch_execz K2_H{i}')
        a.I(f'ds_add_rtn_u32 v{vRank[i]}, v{vBin[i]}, v{vOne} offset:{HIST}')
        a.L(f'K2_H{i}')
    a.I('s_mov_b64 exec, -1')
    a.I('s_waitcnt lgkmcnt(0)')
    a.I('s_barrier')
    vC, vS, vTot = vP+12, vP+16, vP+20
    a.I(f'v_mov_b32 v{vTmp}, {MAXR}')
    a.I(f'ds_read_b32 v{vTmp+5}, v{vTmp}')
    hist_prefix(a, vC, vS, vTot, vL16, HIST, BASE)
    a.I(f'v_readfirstlane_b32 s{sMAXR}, v{vTmp+5}')
    a.I(f's_lshl_b32 s{sT0}, s{sW}, 3')
    a.I(f'v_readlane_b32 s{sSEG0}, v{vS}, s{sT0}')
    a.I(f's_add_u32 s{sT0}, s{sT0}, 8')
    a.I(f's_min_u32 s{sT0}, s{sT0}, 63')
    a.I(f'v_readlane_b32 s{sT1}, v{vS}, s{sT0}')
    a.I(f'v_readlane_b32 s{sT2}, v{vTot}, 63')
    a.I('s_nop 3')
    a.I(f's_cmp_eq_u32 s{sW}, 7')
    a.I(f's_cselect_b32 s{sT1}, s{sT2}, s{sT1}')
    a.I(f's_sub_u32 s{sN}, s{sT1}, s{sSEG0}')
    a.I('s_waitcnt lgkmcnt(0)')
    a.I(f'ds_read_b32 v{vP+10}, v{vBin[0]} offset:{BASE}')
    a.I(f'ds_read_b32 v{vP+11}, v{vBin[1]} offset:{BASE}')
    a.I('s_waitcnt lgkmcnt(0)')
    for i, (m, rec) in enumerate(((sV0, vRecA), (sV1, vRecB))):
        a.I(f's_mov_b64 exec, s[{m}:{m+1}]')
        a.I(f's_cbranch_execz K2_S{i}')
        a.I(f'v_add_u32 v{vRank[i]}, v{vRank[i]}, v{vP+10+i}')
        a.I(f'v_lshlrev_b32 v{vTmp}, 2, v{vRank[i]}')
        a.I(f'ds_write_b32 v{vTmp}, v{vEnt[i]} offset:{ENT}')
        a.I(f'v_lshlrev_b32 v{vTmp+4}, 3, v{vRank[i]}')
        a.I(f'ds_write_b64 v{vTmp+4}, {vr(rec,2)} offset:{YS}')
        a.I(f'v_lshlrev_b32 v{vTmp+5}, 5, v{vRank[i]}')
        a.I(f'ds_write_b128 v{vTmp+5}, {vr(rec+4,4)} offset:{EFS}')
        a.I(f'ds_write_b128 v{vTmp+5}, {vr(rec+8,4)} offset:{EFS+16}')
        a.L(f'K2_S{i}')
    a.I('s_mov_b64 exec, -1')
    a.I('s_waitcnt lgkmcnt(0)')
    a.I('s_barrier')
    a.I(f'v_mov_b32 v{vTmp}, 0')
    a.I(f'v_lshlrev_b32 v{vTmp+4}, 2, v0')
    a.I('v_cmp_gt_u32 vcc, 256, v0')
    a.I(f's_and_saveexec_b64 s[{sSAVE}:{sSAVE+1}], vcc')
    a.I('s_cbranch_execz K2_Z2')
    a.I(f'ds_write_b32 v{vTmp+4}, v{vTmp} offset:{HIST}')
    a.L('K2_Z2')
    a.I(f's_mov_b64 exec, s[{sSAVE}:{sSAVE+1}]')
    if cfg.get('stamps'):
        a.I(f's_cmp_eq_u32 s{sW}, 0')
        a.I('s_cbranch_scc0 K2_ST2')
        stamp(a, cfg, 2, sDBG, 66, vP+22)
        a.L('K2_ST2')

    def w_compute(dst):
        ops = []
        ops.append(f'v_lshlrev_b32 v{vYf}, 16, v{vYraw}')
        ops.append(f'v_and_b32 v{vYf+1}, 0xffff0000, v{vYraw}')
        ops.append(f'v_lshlrev_b32 v{vYf+2}, 16, v{vYraw+1}')
        ops.append(f'v_and_b32 v{vYf+3}, 0xffff0000, v{vYraw+1}')
        for f in range(4):
            yp = vYf + (f & 2)
            s = f & 1
            for h in range(2):
                cg = vCG + 4*f + 2*h
                if f == 0:
                    ops.append(f'v_pk_mul_f32 {vr(vWf+2*h,2)}, {vr(cg,2)}, {vr(yp,2)} op_sel:[0,{s}] op_sel_hi:[1,{s}]')
                else:
                    ops.append(f'v_pk_fma_f32 {vr(vWf+2*h,2)}, {vr(cg,2)}, {vr(yp,2)}, {vr(vWf+2*h,2)} op_sel:[0,{s},0] op_sel_hi:[1,{s},1]')
        ops.append(f'v_cvt_pk_bf16_f32 v{dst}, v{vWf}, v{vWf+1}')
        ops.append(f'v_cvt_pk_bf16_f32 v{dst+1}, v{vWf+2}, v{vWf+3}')
        return ops

    def h_mfma():
        ops = []
        for p, H in ((0, vH0), (1, vH1)):
            ops.append(f'v_mfma_f32_32x32x16_bf16 {vr(H,16)}, {vr(vAL,4)}, {vr(vBR+8*p,4)}, 0')
            ops.append(f'v_mfma_f32_32x32x16_bf16 {vr(H,16)}, {vr(vAH,4)}, {vr(vBR+8*p+4,4)}, {vr(H,16)}')
        return ops

    def hpair(q):
        if q == 7:
            return vHS, vHS + 2
        qq = q % 8
        return vH0 + 2*qq, vH1 + 2*qq

    def z_ops(q):
        h0, h1 = hpair(q)
        if scaled:
            return []
        return [f'v_pk_mul_f32 {vr(vT,2)}, {vr(h0,2)}, s[{sCL}:{sCL+1}]',
                f'v_pk_mul_f32 {vr(vT+2,2)}, {vr(h1,2)}, s[{sCL}:{sCL+1}]']

    def exp_ops(q):
        h0, h1 = hpair(q)
        if scaled:
            return [f'v_exp_f32 v{vT}, v{h0}', f'v_exp_f32 v{vT+1}, v{h0+1}',
                    f'v_exp_f32 v{vT+2}, v{h1}', f'v_exp_f32 v{vT+3}, v{h1+1}']
        return [f'v_exp_f32 v{vT+i}, v{vT+i}' for i in range(4)]

    add_ops = [f'v_pk_add_f32 {vr(vT,2)}, {vr(vT,2)}, 1.0 op_sel_hi:[1,0]',
               f'v_pk_add_f32 {vr(vT+2,2)}, {vr(vT+2,2)}, 1.0 op_sel_hi:[1,0]']
    rcp_ops = [f'v_rcp_f32 v{vT+i}, v{vT+i}' for i in range(4)]

    def r_ops(q):
        h0, h1 = hpair(q)
        rb = vR + 4*(q % 2)
        return [f'v_pk_mul_f32 {vr(rb,2)}, {vr(h0,2)}, {vr(vT,2)}',
                f'v_pk_mul_f32 {vr(rb+2,2)}, {vr(h1,2)}, {vr(vT+2,2)}']

    a.I(f'v_add_u32 v{vEntA}, s{sSEG0}, v{vL15}')
    a.I(f'v_lshlrev_b32 v{vEntA}, 2, v{vEntA}')
    a.I(f'v_lshrrev_b32 v{vTmp}, 2, v{vLane}')
    a.I(f'v_add_u32 v{vYA}, s{sSEG0}, v{vTmp}')
    a.I(f'v_lshlrev_b32 v{vYA}, 3, v{vYA}')
    a.I(f'v_bfe_u32 v{vTmp}, v{vLane}, 3, 2')
    a.I(f'v_and_b32 v{vTmp+4}, 3, v{vLane}')
    a.I(f'v_lshl_add_u32 v{vTmp}, v{vTmp}, 2, v{vTmp+4}')
    a.I(f'v_add_u32 v{vTmp}, s{sSEG0}, v{vTmp}')
    a.I(f'v_lshlrev_b32 v{vTmp}, 5, v{vTmp}')
    a.I(f'v_lshrrev_b32 v{vTmp+4}, 5, v{vLane}')
    a.I(f'v_lshl_add_u32 v{vEfA}, v{vTmp+4}, 4, v{vTmp}')
    a.I(f'v_add_u32 v{vEfA}, {EFS}, v{vEfA}')
    a.I(f'v_mov_b32 v{vTmp}, {ZERO16}')
    a.I(f'v_cndmask_b32 v{vAL_A}, v{vTmp}, v{vEfA}, s[{sMLO}:{sMLO+1}]')
    a.I(f'v_cndmask_b32 v{vAH_A}, v{vTmp}, v{vEfA}, s[{sMHI}:{sMHI+1}]')
    a.I(f'ds_read_b32 v{vENTc}, v{vEntA} offset:{ENT}')
    a.I(f'ds_read_b64 {vr(vYraw,2)}, v{vYA} offset:{YS}')
    a.I(f'ds_read_b128 {vr(vAL,4)}, v{vAL_A}')
    a.I(f'ds_read_b128 {vr(vAH,4)}, v{vAH_A}')
    a.I(f'v_cmp_gt_i32 vcc, s{sN}, v{vL15}')
    for i in range(8):
        a.I(f'v_mov_b32 v{vTP+8+i}, 0')
    for i in range(4):
        a.I(f'v_mov_b32 v{vR+4+i}, 0')
    a.I(f's_mov_b32 s{sE+15}, 0')
    a.I(f's_mov_b32 s{sCNT}, s{sN}')
    a.I(f's_sub_i32 s{sREM}, s{sN}, 16')
    a.I('s_waitcnt lgkmcnt(3)')
    a.I(f'v_cndmask_b32 v{vENTc}, 0, v{vENTc}, vcc')
    a.I('s_nop 0')
    for j in range(5):
        a.I(f'v_readlane_b32 s{sE+j}, v{vENTc}, {j}')
    a.I('s_nop 3')
    for j in range(4):
        a.I(f's_and_b32 s{sXO}, s{sE+j}, 0xfffffc00')
        a.I(f'buffer_load_dwordx4 {vr(vXR+4*j,4)}, v{vL16}, s[{sX}:{sX+3}], s{sXO} offen')
    a.I(f's_and_b32 s{sXO}, s{sE+4}, 0xfffffc00')
    a.I('s_waitcnt vmcnt(4) lgkmcnt(0)')
    for op in h_mfma():
        a.I(op)
    for op in w_compute(vWc):
        a.I(op)
    a.I('s_nop 7')
    for op in z_ops(0) + exp_ops(0):
        a.I(op)
    a.I('s_nop 0')
    for op in add_ops + rcp_ops:
        a.I(op)
    a.I('s_nop 0')
    for op in r_ops(0) + z_ops(1):
        a.I(op)

    a.L('K2_LOOP')
    wn_ops = w_compute(vWn)
    for j in range(16):
        a(f'    ; ---- slot {j}')
        if j == 0:
            a.I(f'ds_read_b32 v{vENTn}, v{vEntA} offset:{ENT+64}')
            a.I(f'ds_read_b64 {vr(vYraw,2)}, v{vYA} offset:{YS+128}')
        a.I('s_waitcnt vmcnt(3)')
        xr = vXR + 4*(j % 4)
        tp = vTP + 8*(j % 2)
        a.I(f'v_mfma_f32_4x4x4_16b_bf16 {vr(tp,4)}, {vr(vWc,2)}, {vr(xr,2)}, 0 cbsz:4 abid:{j}')
        a.I(f'v_mfma_f32_4x4x4_16b_bf16 {vr(tp+4,4)}, {vr(vWc,2)}, {vr(xr+2,2)}, 0 cbsz:4 abid:{j}')
        a.I(f'buffer_load_dwordx4 {vr(xr,4)}, v{vL16}, s[{sX}:{sX+3}], s{sXO} offen' + cfg.get('xld', ''))
        q = j // 2 + 1 if j % 2 == 0 else (j + 1) // 2
        for op in (exp_ops(q) if j % 2 == 0 else rcp_ops):
            a.I(op)
        src_ent = vENTc if j + 5 < 16 else vENTn
        a.I(f'v_readlane_b32 s{sE+(j+5)%16}, v{src_ent}, {(j+5)%16}')
        jm = (j - 1) % 16
        tpm = vTP + 8*((j - 1) % 2)
        rb = vR + 4*((((j - 1) // 2)) % 2)
        sel = (j - 1) & 1
        a.I(f's_set_gpr_idx_on s{sE+jm}, gpr_idx(SRC2,DST)')
        for p in range(2):
            for h in range(2):
                acc = vACC + 4*p + 2*h
                a.I(f'v_pk_fma_f32 {vr(acc,2)}, {vr(tpm+4*p+2*h,2)}, {vr(rb+2*p,2)}, {vr(acc,2)} op_sel:[0,{sel},0] op_sel_hi:[1,{sel},1]')
        a.I('s_set_gpr_idx_off')
        a.I(f's_sub_u32 s{sCNT}, s{sCNT}, 1')
        a.I('s_cbranch_scc1 K2_EXIT')
        a.I(f's_and_b32 s{sXO}, s{sE+(j+5)%16}, 0xfffffc00')
        if j % 2 == 0:
            for op in add_ops:
                a.I(op)
        else:
            for op in r_ops(q) + z_ops(q + 1):
                a.I(op)
        if j == 1:
            a.I(f'v_add_u32 v{vEfA}, 512, v{vEfA}')
            a.I(f'v_mov_b32 v{vTmp}, {ZERO16}')
            a.I(f'v_cndmask_b32 v{vAL_A}, v{vTmp}, v{vEfA}, s[{sMLO}:{sMLO+1}]')
            a.I(f'v_cndmask_b32 v{vAH_A}, v{vTmp}, v{vEfA}, s[{sMHI}:{sMHI+1}]')
            a.I(f'ds_read_b128 {vr(vAL,4)}, v{vAL_A}')
            a.I(f'ds_read_b128 {vr(vAH,4)}, v{vAH_A}')
        if j == 3:
            a.I('s_waitcnt lgkmcnt(0)')
            a.I(f'v_cmp_gt_i32 vcc, s{sREM}, v{vL15}')
            for op in wn_ops[0:4]:
                a.I(op)
            a.I(f'v_cndmask_b32 v{vENTn}, 0, v{vENTn}, vcc')
        if j == 4:
            for op in wn_ops[4:8]:
                a.I(op)
        if j == 5:
            for op in wn_ops[8:14]:
                a.I(op)
        if j == 9:
            a.I(f'v_pk_mov_b32 {vr(vHS,2)}, {vr(vH0+14,2)}, {vr(vH0+14,2)} op_sel:[0,1]')
            a.I(f'v_pk_mov_b32 {vr(vHS+2,2)}, {vr(vH1+14,2)}, {vr(vH1+14,2)} op_sel:[0,1]')
        if j == 11:
            for op in h_mfma():
                a.I(op)
        if j == 15:
            a.I(f'v_mov_b32 v{vWc}, v{vWn}')
            a.I(f'v_mov_b32 v{vWc+1}, v{vWn+1}')
            a.I(f'v_mov_b32 v{vENTc}, v{vENTn}')
            a.I(f'v_add_u32 v{vEntA}, 64, v{vEntA}')
            a.I(f'v_add_u32 v{vYA}, 128, v{vYA}')
            a.I(f's_sub_i32 s{sREM}, s{sREM}, 16')
            a.I('s_branch K2_LOOP')
    a.L('K2_EXIT')
    a.I('s_waitcnt vmcnt(0) lgkmcnt(0)')
    a.I(f's_add_u32 s{sRND}, s{sRND}, 1')
    a.I(f's_cmp_lt_u32 s{sRND}, s{sMAXR}')
    a.I('s_cbranch_scc0 K2_TAIL')
    a.I('s_barrier')
    a.I('s_branch K2_ROUND')

    a.L('K2_TAIL')
    if cfg.get('stamps'):
        a.I(f's_cmp_eq_u32 s{sW}, 0')
        a.I('s_cbranch_scc0 K2_ST3')
        stamp(a, cfg, 3, sDBG, 66, vXR)
        a.L('K2_ST3')
    a.I(f's_and_b32 s{sT0}, s{sW}, 3')
    a.I(f's_lshl_b32 s{sT0}, s{sT0}, 13')
    a.I(f's_add_u32 s{sT0}, s{sT0}, {BMIX_OFF:#x}')
    a.I(f's_add_u32 s{sT1}, s{sT0}, 4096')
    for t in range(2):
        for ks in range(4):
            a.I(f'buffer_load_dwordx4 {vr(vBM+16*t+4*ks,4)}, v{vL16}, s[{sWS}:{sWS+3}], s{sT0 if t == 0 else sT1} offen offset:{1024*ks}')
    a.I(f's_mul_i32 s{sT2}, s{sW}, {4*AGG_STRIDE}')
    a.I(f's_add_u32 s{sT2}, s{sT2}, {AGG}')
    a.I(f'v_lshl_add_u32 v{vTmp}, v{vLane}, 2, s{sT2}')
    for s in range(5):
        for o in range(4):
            t = vXR + s * 4 + o
            a.I(f'v_cvt_pk_bf16_f32 v{t}, v{vACC+8*s+o}, v{vACC+8*s+4+o}')
            a.I(f'ds_write_b32 v{vTmp}, v{t} offset:{(32*s + o) * AGG_STRIDE}')
    a.I('s_waitcnt lgkmcnt(0)')
    a.I('s_barrier')
    a.I(f'v_mul_u32_u24 v{vTmp}, {AGG_STRIDE}, v{vL15}')
    a.I(f'v_lshrrev_b32 v{vTmp+4}, 4, v{vLane}')
    a.I(f'v_lshl_add_u32 v{vTmp}, v{vTmp+4}, 4, v{vTmp}')
    a.I(f's_lshr_b32 s{sT0}, s{sW}, 2')
    a.I(f's_mul_i32 s{sT1}, s{sT0}, {5*16*AGG_STRIDE}')
    a.I(f's_add_u32 s{sT1}, s{sT1}, {AGG}')
    a.I(f'v_add_u32 v{vTmp}, s{sT1}, v{vTmp}')
    a.I(f's_mul_i32 s{sT1}, s{sT0}, 20')
    a.I(f'v_add_u32 v{vTmp+4}, s{sT1}, v{vTmp+4}')
    a.I(f'v_lshlrev_b32 v{vTmp+4}, 18, v{vTmp+4}')
    a.I(f's_lshl_b32 s{sT1}, s{sB}, 10')
    a.I(f's_and_b32 s{sT2}, s{sW}, 3')
    a.I(f's_lshl_b32 s{sT2}, s{sT2}, 8')
    a.I(f's_add_u32 s{sT1}, s{sT1}, s{sT2}')
    a.I(f'v_lshl_add_u32 v{vTmp+5}, v{vL15}, 4, s{sT1}')
    a.I(f'v_add_u32 v{vTmp+4}, v{vTmp+4}, v{vTmp+5}')
    vA = (vH0, vH0 + 16 - 16 + 16)
    vA = (vH0, vH1)
    vD = (vTP, vTP + 8)
    vO = (vXR, vXR + 4, vXR + 8, vXR + 12)
    def a_reads(tt):
        for ks in range(4):
            a.I(f'ds_read_b128 {vr(vA[tt%2]+4*ks,4)}, v{vTmp} offset:{tt*16*AGG_STRIDE + 64*ks}')
    a_reads(0)
    a.I('s_waitcnt vmcnt(0)')
    for tt in range(5):
        if tt + 1 < 5:
            a_reads(tt + 1)
            a.I('s_waitcnt lgkmcnt(4)')
        else:
            a.I('s_waitcnt lgkmcnt(0)')
        D = vD[tt % 2]
        for ks in range(4):
            for t in range(2):
                c = '0' if ks == 0 else vr(D+4*t, 4)
                a.I(f'v_mfma_f32_16x16x32_bf16 {vr(D+4*t,4)}, {vr(vA[tt%2]+4*ks,4)}, {vr(vBM+16*t+4*ks,4)}, {c}')
        if tt > 0:
            Dp = vD[(tt - 1) % 2]; O = vO[(tt - 1) % 4]
            a.I(f'v_cvt_pk_bf16_f32 v{O}, v{Dp}, v{Dp+1}')
            a.I(f'v_cvt_pk_bf16_f32 v{O+1}, v{Dp+2}, v{Dp+3}')
            a.I(f'v_cvt_pk_bf16_f32 v{O+2}, v{Dp+4}, v{Dp+5}')
            a.I(f'v_cvt_pk_bf16_f32 v{O+3}, v{Dp+6}, v{Dp+7}')
            a.I(f'buffer_store_dwordx4 {vr(O,4)}, v{vTmp+4}, s[{sOUT}:{sOUT+3}], 0 offen' + cfg.get('ost', ''))
            a.I(f'v_add_u32 v{vTmp+4}, {4 << 18:#x}, v{vTmp+4}')
    Dp = vD[4 % 2]; O = vO[0]
    a.I('s_nop 7')
    a.I(f'v_cvt_pk_bf16_f32 v{O}, v{Dp}, v{Dp+1}')
    a.I(f'v_cvt_pk_bf16_f32 v{O+1}, v{Dp+2}, v{Dp+3}')
    a.I(f'v_cvt_pk_bf16_f32 v{O+2}, v{Dp+4}, v{Dp+5}')
    a.I(f'v_cvt_pk_bf16_f32 v{O+3}, v{Dp+6}, v{Dp+7}')
    a.I(f'buffer_store_dwordx4 {vr(O,4)}, v{vTmp+4}, s[{sOUT}:{sOUT+3}], 0 offen' + cfg.get('ost', ''))
    if cfg.get('stamps'):
        a.I(f's_cmp_eq_u32 s{sW}, 0')
        a.I('s_cbranch_scc0 K2_ST4')
        a.I('s_waitcnt vmcnt(0)')
        stamp(a, cfg, 4, sDBG, 66, vH0)
        a.L('K2_ST4')
    a.L('K2_END')
    a.I('s_endpgm')
    return name, NV, 72


def vOneConst(a, v, val):
    a.I(f'v_mov_b32 v{v}, {val}')
    return v


def build(cfg):
    a = Asm()
    a('; @launch kernel=bin_kernel grid=(256,1,1) block=(640,1,1) lds=2048')
    a(f'; @launch kernel=main_kernel grid=(256,1,1) block=(512,1,1) lds={K2_LDS}')
    a('.amdgcn_target "amdgcn-amd-amdhsa--gfx950"')
    a('.text')
    k1 = gen_k1(a, cfg)
    k2 = gen_k2(a, cfg)
    a('.section .rodata,"a"')
    for k in (k1, k2):
        a('.p2align 6')
        kd(a, *k)
    return a.text()


if __name__ == '__main__':
    cfg = {}
    out = sys.argv[1] if len(sys.argv) > 1 else 'gather_scatter__tensor_product_equiv_tfn__graph.s'
    for kv in sys.argv[2:]:
        k, v = kv.split('=', 1)
        try:
            v = int(v)
        except ValueError:
            pass
        cfg[k] = v
    open(out, 'w').write(build(cfg))
    print('wrote', out)
```

```python
import sys, struct

N_NODES = 10000
N_EDGES = 160000
CHUNK = 625
REC_OFF = 0
TAB_OFF = 0x800000
BRAD_OFF = 0x840000
CGW_OFF = 0x841000
BMIX_OFF = 0x842000
WS_SIZE = 0x850000
X_BYTES = N_NODES * 1024

def f2u(x):
    return struct.unpack('<I', struct.pack('<f', x))[0]
LOG2E = 1.4426950408889634
LN2 = 0.6931471805599453


class Asm:
    def __init__(self):
        self.lines = []
    def __call__(self, s=''):
        for ln in s.split('\n'):
            self.lines.append(ln)
    def I(self, s):
        self.lines.append('    ' + s)
    def L(self, name):
        self.lines.append(name + ':')
    def text(self):
        return '\n'.join(self.lines) + '\n'


def vr(base, n=1):
    return f'v{base}' if n == 1 else f'v[{base}:{base+n-1}]'
def sr(base, n=1):
    return f's{base}' if n == 1 else f's[{base}:{base+n-1}]'


def srd(a, dst, ptr, size):
    a.I(f's_mov_b32 s{dst}, s{ptr}')
    a.I(f's_and_b32 s{dst+1}, s{ptr+1}, 0xffff')
    a.I(f's_mov_b32 s{dst+2}, {size:#x}')
    a.I(f's_mov_b32 s{dst+3}, 0x20000')


def scan_dpp(a, v, full64):
    for sh in (1, 2, 4, 8):
        a.I('s_nop 1')
        a.I(f'v_add_u32_dpp v{v}, v{v}, v{v} row_shr:{sh} row_mask:0xf bank_mask:0xf')
    a.I('s_nop 1')
    a.I(f'v_add_u32_dpp v{v}, v{v}, v{v} row_bcast:15 row_mask:0xa bank_mask:0xf')
    if full64:
        a.I('s_nop 1')
        a.I(f'v_add_u32_dpp v{v}, v{v}, v{v} row_bcast:31 row_mask:0xc bank_mask:0xf')


def hist_prefix(a, vC, vS, vTot, vLane16, hist_off, base_off):
    a.I(f'ds_read_b128 {vr(vC,4)}, v{vLane16} offset:{hist_off}')
    a.I('s_waitcnt lgkmcnt(0)')
    a.I(f'v_add_u32 v{vS+2}, v{vC}, v{vC+1}')
    a.I(f'v_add_u32 v{vS+3}, v{vS+2}, v{vC+2}')
    a.I(f'v_add_u32 v{vTot}, v{vS+3}, v{vC+3}')
    a.I(f'v_mov_b32 v{vS}, v{vTot}')
    scan_dpp(a, vTot, True)
    a.I('s_nop 0')
    a.I(f'v_sub_u32 v{vS}, v{vTot}, v{vS}')
    a.I(f'v_add_u32 v{vS+1}, v{vS}, v{vC}')
    a.I(f'v_add_u32 v{vS+2}, v{vS}, v{vS+2}')
    a.I(f'v_add_u32 v{vS+3}, v{vS}, v{vS+3}')
    a.I(f'ds_write_b128 v{vLane16}, {vr(vS,4)} offset:{base_off}')


def stamp(a, cfg, idx, sdbg, tmp_s, tmp_v):
    if not cfg.get('stamps'):
        return
    a.I(f's_memrealtime s[{tmp_s}:{tmp_s+1}]')
    a.I('s_waitcnt lgkmcnt(0)')
    a.I(f'v_mov_b32 v{tmp_v}, s{tmp_s}')
    a.I(f'v_mov_b32 v{tmp_v+1}, s{sdbg}')
    a.I(f'buffer_store_dword v{tmp_v}, v{tmp_v+1}, s[{cfg["stamp_srd"]}:{cfg["stamp_srd"]+3}], 0 offen offset:{idx*4}')


STAMP_OFF = 0x900000


def gen_k1(a, cfg):
    name = 'bin_kernel'
    NPF = cfg.get('npf1', 6)
    scaled = cfg.get('scaled', False)
    a(f'.globl {name}\n.p2align 8\n.type {name},@function\n{name}:')
    sDST, sSRC, sY, sEF, sWS, sX, sPREP = 8, 12, 16, 20, 24, 28, 32
    a.I('s_cmp_ge_u32 s2, 256')
    a.I('s_cbranch_scc1 K1_END')
    a.I('s_load_dwordx4 s[44:47], s[0:1], 0')
    a.I('s_load_dwordx4 s[48:51], s[0:1], 16')
    a.I('s_load_dwordx4 s[52:55], s[0:1], 32')
    a.I('s_load_dwordx4 s[56:59], s[0:1], 48')
    a.I('s_load_dwordx2 s[60:61], s[0:1], 80')
    vT, vLane, vT4, vE, vOff = 0, 1, 2, 3, 4
    vDst, vSrc = 5, 6
    vRec = 8
    vY = 9
    vEF = 12
    vKey, vRank, vOne, vTmp = 20, 21, 22, 23
    vC, vS, vTot, vL16 = 24, 28, 32, 33
    vPrep, vPrepAddr, vPf = 34, 35, 36
    vT2 = 37
    a.I(f'v_and_b32 v{vLane}, 63, v0')
    a.I(f'v_lshlrev_b32 v{vT4}, 2, v0')
    a.I(f'v_lshrrev_b32 v{vTmp}, 6, v0')
    a.I(f'v_mov_b32 v{vOne}, 1')
    a.I(f'v_readfirstlane_b32 s4, v{vTmp}')
    a.I(f'v_mov_b32 v{vTmp}, 0')
    a.I(f'v_lshlrev_b32 v{vL16}, 4, v{vLane}')
    a.I('v_cmp_gt_u32 vcc, 256, v0')
    a.I('s_and_saveexec_b64 s[6:7], vcc')
    a.I('s_cbranch_execz K1_Z')
    a.I(f'ds_write_b32 v{vT4}, v{vTmp}')
    a.L('K1_Z')
    a.I('s_mov_b64 exec, s[6:7]')
    a.I(f's_mul_i32 s5, s2, {CHUNK}')
    a.I(f'v_add_u32 v{vE}, s5, v0')
    a.I('s_waitcnt lgkmcnt(0)')
    srd(a, sDST, 48, N_EDGES * 4)
    srd(a, sSRC, 46, N_EDGES * 4)
    srd(a, sY, 50, N_EDGES * 8)
    srd(a, sEF, 52, N_EDGES * 32)
    srd(a, sWS, 60, WS_SIZE if not cfg.get('stamps') else STAMP_OFF + 0x10000)
    srd(a, sX, 44, X_BYTES)
    if cfg.get('stamps'):
        cfg['stamp_srd'] = sWS
        a.I(f's_lshl_b32 s62, s2, 6')
        a.I(f's_add_u32 s62, s62, {STAMP_OFF:#x}')
        a.I('s_cmp_eq_u32 s4, 0')
        a.I('s_cbranch_scc0 K1_ST0')
        stamp(a, cfg, 0, 62, 64, 38)
        a.L('K1_ST0')
    a.I(f'v_mov_b32 v{vPrepAddr}, 0x7ffffff0')
    a.I('s_cmp_eq_u32 s4, 9')
    a.I('s_cbranch_scc1 K1_PA')
    a.I('s_cmp_eq_u32 s4, 8')
    a.I('s_cbranch_scc0 K1_PDONE')
    a.I('s_cmp_lt_u32 s2, 32')
    a.I('s_cbranch_scc1 K1_PB')
    a.I('s_cmp_eq_u32 s2, 32')
    a.I('s_cbranch_scc0 K1_PDONE')
    srd(a, sPREP, 56, 128)
    a.I(f'v_and_b32 v{vTmp}, 3, v{vLane}')
    a.I(f'v_lshlrev_b32 v{vTmp}, 4, v{vTmp}')
    a.I(f'v_and_b32 v{vT2}, 12, v{vLane}')
    a.I(f'v_add_u32 v{vTmp}, v{vTmp}, v{vT2}')
    a.I(f'v_lshrrev_b32 v{vT2}, 4, v{vLane}')
    a.I(f'v_add_lshl_u32 v{vTmp}, v{vTmp}, v{vT2}, 1')
    a.I(f'buffer_load_ushort v{vPrep}, v{vTmp}, s[{sPREP}:{sPREP+3}], 0 offen')
    a.I(f'v_lshlrev_b32 v{vPrepAddr}, 2, v{vLane}')
    a.I(f'v_add_u32 v{vPrepAddr}, {CGW_OFF:#x}, v{vPrepAddr}')
    a.I('s_branch K1_PDONE')
    a.L('K1_PB')
    srd(a, sPREP, 54, 16 * 128 * 2)
    a.I('s_lshl_b32 s5, s2, 6')
    a.I(f'v_add_u32 v{vPrepAddr}, s5, v{vLane}')
    a.I(f'v_lshrrev_b32 v{vTmp}, 3, v{vPrepAddr}')
    a.I(f'v_bfe_u32 v{vT2}, v{vTmp}, 5, 1')
    a.I(f'v_lshlrev_b32 v{vT2}, 3, v{vT2}')
    a.I(f'v_and_b32 v{vPf}, 7, v{vPrepAddr}')
    a.I(f'v_add_u32 v{vT2}, v{vT2}, v{vPf}')
    a.I(f'v_lshlrev_b32 v{vT2}, 7, v{vT2}')
    a.I(f'v_and_b32 v{vPf}, 31, v{vTmp}')
    a.I(f'v_lshl_add_u32 v{vT2}, v{vPf}, 1, v{vT2}')
    a.I(f'v_bfe_u32 v{vPf}, v{vTmp}, 6, 1')
    a.I(f'v_lshl_add_u32 v{vT2}, v{vPf}, 6, v{vT2}')
    a.I(f'v_bfe_u32 v{vPf}, v{vTmp}, 7, 1')
    a.I(f'v_add_lshl_u32 v{vT2}, v{vT2}, v{vPf}, 1')
    a.I(f'buffer_load_ushort v{vPrep}, v{vT2}, s[{sPREP}:{sPREP+3}], 0 offen')
    a.I(f'v_lshlrev_b32 v{vPrepAddr}, 1, v{vPrepAddr}')
    a.I(f'v_add_u32 v{vPrepAddr}, {BRAD_OFF:#x}, v{vPrepAddr}')
    a.I('s_branch K1_PDONE')
    a.L('K1_PA')
    srd(a, sPREP, 58, 128 * 128 * 2)
    a.I('s_lshl_b32 s5, s2, 6')
    a.I(f'v_add_u32 v{vPrepAddr}, s5, v{vLane}')
    a.I(f'v_lshrrev_b32 v{vTmp}, 3, v{vPrepAddr}')
    a.I(f'v_bfe_u32 v{vT2}, v{vTmp}, 6, 2')
    a.I(f'v_lshlrev_b32 v{vT2}, 5, v{vT2}')
    a.I(f'v_bfe_u32 v{vPf}, v{vTmp}, 4, 2')
    a.I(f'v_lshl_add_u32 v{vT2}, v{vPf}, 3, v{vT2}')
    a.I(f'v_and_b32 v{vPf}, 7, v{vPrepAddr}')
    a.I(f'v_add_u32 v{vT2}, v{vT2}, v{vPf}')
    a.I(f'v_lshlrev_b32 v{vT2}, 7, v{vT2}')
    a.I(f'v_and_b32 v{vPf}, 15, v{vTmp}')
    a.I(f'v_lshl_add_u32 v{vT2}, v{vPf}, 1, v{vT2}')
    a.I(f'v_lshrrev_b32 v{vPf}, 9, v{vTmp}')
    a.I(f'v_lshl_add_u32 v{vT2}, v{vPf}, 5, v{vT2}')
    a.I(f'v_bfe_u32 v{vPf}, v{vTmp}, 8, 1')
    a.I(f'v_add_lshl_u32 v{vT2}, v{vT2}, v{vPf}, 1')
    a.I(f'buffer_load_ushort v{vPrep}, v{vT2}, s[{sPREP}:{sPREP+3}], 0 offen')
    a.I(f'v_lshlrev_b32 v{vPrepAddr}, 1, v{vPrepAddr}')
    a.I(f'v_add_u32 v{vPrepAddr}, {BMIX_OFF:#x}, v{vPrepAddr}')
    a.L('K1_PDONE')
    a.I(f'v_lshlrev_b32 v{vOff}, 2, v{vE}')
    a.I(f'buffer_load_dword v{vDst}, v{vOff}, s[{sDST}:{sDST+3}], 0 offen')
    a.I(f'buffer_load_dword v{vSrc}, v{vOff}, s[{sSRC}:{sSRC+3}], 0 offen')
    a.I(f'v_lshlrev_b32 v{vOff}, 3, v{vE}')
    a.I(f'buffer_load_dwordx2 {vr(vRec,2)}, v{vOff}, s[{sY}:{sY+3}], 0 offen')
    a.I(f'v_lshlrev_b32 v{vOff}, 5, v{vE}')
    a.I(f'buffer_load_dwordx4 {vr(vEF,4)}, v{vOff}, s[{sEF}:{sEF+3}], 0 offen')
    a.I(f'buffer_load_dwordx4 {vr(vEF+4,4)}, v{vOff}, s[{sEF}:{sEF+3}], 0 offen offset:16')
    a.I('s_lshr_b32 s5, s2, 3')
    a.I('s_lshl_b32 s63, s4, 5')
    a.I('s_add_u32 s5, s5, s63')
    a.I('s_lshl_b32 s5, s5, 13')
    a.I(f's_cmp_lt_u32 s4, {NPF}')
    a.I(f's_cselect_b32 s5, s5, 0x7ff00000')
    a.I(f'v_lshlrev_b32 v{vPf}, 7, v{vLane}')
    a.I(f'v_add_u32 v{vPf}, s5, v{vPf}')
    a.I(f'buffer_load_dword v{vPf}, v{vPf}, s[{sX}:{sX+3}], 0 offen')
    a.I('s_waitcnt lgkmcnt(0)')
    a.I('s_barrier')
    a.I(f'v_cmp_gt_u32 vcc, {CHUNK}, v0')
    a.I('s_and_saveexec_b64 s[6:7], vcc')
    a.I('s_waitcnt vmcnt(5)')
    a.I(f'v_and_b32 v{vKey}, 7, v{vDst}')
    a.I(f'v_bfe_u32 v{vTmp}, v{vDst}, 3, 5')
    a.I(f'v_lshl_or_b32 v{vKey}, v{vKey}, 5, v{vTmp}')
    a.I(f'v_lshlrev_b32 v{vKey}, 2, v{vKey}')
    a.I(f'ds_add_rtn_u32 v{vRank}, v{vKey}, v{vOne}')
    a.I('s_mov_b64 exec, s[6:7]')
    a.I('s_waitcnt lgkmcnt(0)')
    a.I('s_barrier')
    hist_prefix(a, vC, vS, vTot, vL16, 0, 1024)
    for i in range(4):
        a.I(f'v_lshl_or_b32 v{vC+i}, v{vC+i}, 16, v{vS+i}')
    a.I(f'v_cmp_gt_u32 vcc, {CHUNK}, v0')
    a.I('s_waitcnt lgkmcnt(0)')
    a.I('s_and_saveexec_b64 s[6:7], vcc')
    a.I(f'ds_read_b32 v{vTmp}, v{vKey} offset:1024')
    a.I(f's_mul_i32 s5, s2, {CHUNK}')
    a.I(f'v_lshrrev_b32 v{vT2}, 8, v{vDst}')
    a.I('s_waitcnt vmcnt(1)')
    a.I(f'v_lshl_or_b32 v{vRec+2}, v{vT2}, 14, v{vSrc}')
    a.I(f'v_mov_b32 v{vRec+3}, v{vE}')
    a.I('s_waitcnt lgkmcnt(0)')
    a.I(f'v_add3_u32 v{vTmp}, v{vTmp}, v{vRank}, s5')
    a.I(f'v_mul_u32_u24 v{vTmp}, 48, v{vTmp}')
    st = cfg.get('k1st', '')
    a.I(f'buffer_store_dwordx4 {vr(vRec,4)}, v{vTmp}, s[{sWS}:{sWS+3}], 0 offen' + st)
    a.I(f'buffer_store_dwordx4 {vr(vEF,4)}, v{vTmp}, s[{sWS}:{sWS+3}], 0 offen offset:16' + st)
    a.I(f'buffer_store_dwordx4 {vr(vEF+4,4)}, v{vTmp}, s[{sWS}:{sWS+3}], 0 offen offset:32' + st)
    a.I('s_mov_b64 exec, s[6:7]')
    a.I('s_cmp_eq_u32 s4, 0')
    a.I('s_cbranch_scc0 K1_NT')
    a.I('s_lshl_b32 s5, s2, 10')
    a.I(f's_add_u32 s5, s5, {TAB_OFF:#x}')
    a.I(f'buffer_store_dwordx4 {vr(vC,4)}, v{vL16}, s[{sWS}:{sWS+3}], s5 offen' + st)
    if cfg.get('stamps'):
        stamp(a, cfg, 1, 62, 64, 38)
    a.L('K1_NT')
    a.I('s_cmp_eq_u32 s4, 9')
    a.I('s_cbranch_scc1 K1_PS16')
    a.I('s_cmp_eq_u32 s4, 8')
    a.I('s_cbranch_scc0 K1_END')
    a.I('s_cmp_lt_u32 s2, 32')
    a.I('s_cbranch_scc1 K1_PSR')
    a.I('s_cmp_eq_u32 s2, 32')
    a.I('s_cbranch_scc0 K1_END')
    a.I(f'v_lshlrev_b32 v{vPrep}, 16, v{vPrep}')
    if scaled:
        a.I(f'v_mul_f32 v{vPrep}, {f2u(-LN2):#x}, v{vPrep}')
    a.I(f'buffer_store_dword v{vPrep}, v{vPrepAddr}, s[{sWS}:{sWS+3}], 0 offen')
    a.I('s_branch K1_END')
    a.L('K1_PSR')
    if scaled:
        a.I(f'v_lshlrev_b32 v{vPrep}, 16, v{vPrep}')
        a.I(f'v_mul_f32 v{vPrep}, {f2u(-LOG2E):#x}, v{vPrep}')
        a.I(f'v_cvt_pk_bf16_f32 v{vPrep}, v{vPrep}, v{vPrep}')
    a.L('K1_PS16')
    a.I(f'buffer_store_short v{vPrep}, v{vPrepAddr}, s[{sWS}:{sWS+3}], 0 offen')
    a.L('K1_END')
    a.I('s_endpgm')
    return name, 40, 72


def kd(a, name, nv, ns):
    a(f""".amdhsa_kernel {name}
  .amdhsa_next_free_vgpr {nv}
  .amdhsa_next_free_sgpr {ns}
  .amdhsa_accum_offset {(nv + 3) // 4 * 4}
  .amdhsa_group_segment_fixed_size 0
  .amdhsa_kernarg_size 88
  .amdhsa_user_sgpr_count 2
  .amdhsa_user_sgpr_kernarg_segment_ptr 1
  .amdhsa_system_sgpr_workgroup_id_x 1
  .amdhsa_float_denorm_mode_32 3
.end_amdhsa_kernel""")


HIST = 0
BASE = 1024
MAXR = 2048
ZERO16 = 2064
WL = 4096
CAP = 1024
ENT = 8192
YS = 12800
EFS = 21248
AGG = 55040
AGG_STRIDE = 272
K2_LDS = AGG + 160 * AGG_STRIDE


def gen_k2(a, cfg):
    name = 'main_kernel'
    scaled = cfg.get('scaled', False)
    NPF1 = cfg.get('npf1', 6)
    NPF2 = cfg.get('npf2', 0)
    a(f'.globl {name}\n.p2align 8\n.type {name},@function\n{name}:')
    sX, sWS, sOUT = 8, 12, 16
    sW, sB, sKEY, sNW, sRND, sMAXR = 4, 5, 6, 7, 20, 21
    sSEG0, sN, sCNT, sXO, sREM = 22, 23, 24, 25, 26
    sT0, sT1, sT2 = 27, 28, 29
    sMLO, sMHI = 30, 32
    sCL = 34
    sSAVE = 36
    sV0, sV1 = 38, 40
    sE = 48
    sDBG = 64
    vLane, vL16, vL15 = 1, 2, 3
    vTmp = 4
    vEntA, vYA, vEfA = 12, 13, 14
    vAL_A, vAH_A = 15, 16
    vENTc, vENTn = 17, 18
    vWc, vWn = 20, 22
    vYraw = 24
    vYf = 26
    vWf = 30
    vHS = 34
    vT = 38
    vR = 42
    vAL, vAH = 52, 56
    vACC = 64
    vXR = 104
    vTP = 120
    vH0, vH1 = 136, 152
    vBR = 168
    vCG = 184
    vBM = 200
    NV = 232
    vRecA, vRecB = 104, 116
    vP = 136

    a.I('s_cmp_ge_u32 s2, 256')
    a.I('s_cbranch_scc1 K2_END')
    a.I('s_load_dwordx2 s[44:45], s[0:1], 0')
    a.I('s_load_dwordx2 s[46:47], s[0:1], 64')
    a.I('s_load_dwordx2 s[42:43], s[0:1], 80')
    a.I(f'v_and_b32 v{vLane}, 63, v0')
    a.I(f'v_lshrrev_b32 v{vTmp}, 6, v0')
    a.I(f'v_lshlrev_b32 v{vL16}, 4, v{vLane}')
    a.I(f'v_readfirstlane_b32 s{sW}, v{vTmp}')
    a.I(f'v_and_b32 v{vL15}, 15, v{vLane}')
    a.I(f's_mov_b32 s{sB}, s2')
    a.I(f's_and_b32 s{sKEY}, s2, 7')
    a.I(f's_lshl_b32 s{sKEY}, s{sKEY}, 5')
    a.I(f's_lshr_b32 s{sT0}, s2, 3')
    a.I(f's_or_b32 s{sKEY}, s{sKEY}, s{sT0}')
    a.I(f'v_mov_b32 v{vTmp+1}, 0')
    a.I(f'v_lshlrev_b32 v{vTmp+2}, 2, v0')
    a.I('v_cmp_gt_u32 vcc, 256, v0')
    a.I(f's_and_saveexec_b64 s[{sSAVE}:{sSAVE+1}], vcc')
    a.I('s_cbranch_execz K2_Z0')
    a.I(f'ds_write_b32 v{vTmp+2}, v{vTmp+1} offset:{HIST}')
    a.L('K2_Z0')
    a.I(f's_mov_b64 exec, s[{sSAVE}:{sSAVE+1}]')
    a.I(f'v_subrev_u32 v{vTmp+3}, 256, v0')
    a.I(f'v_cmp_gt_u32 vcc, 8, v{vTmp+3}')
    a.I(f's_and_saveexec_b64 s[{sSAVE}:{sSAVE+1}], vcc')
    a.I('s_cbranch_execz K2_Z1')
    a.I(f'ds_write_b32 v{vTmp+2}, v{vTmp+1} offset:{MAXR-1024}')
    a.L('K2_Z1')
    a.I(f's_mov_b64 exec, s[{sSAVE}:{sSAVE+1}]')
    for i in range(40):
        a.I(f'v_mov_b32 v{vACC+i}, 0')
    a.I(f's_mov_b32 s{sMLO}, 0x0f0f0f0f')
    a.I(f's_mov_b32 s{sMLO+1}, 0x0f0f0f0f')
    a.I(f's_mov_b32 s{sMHI}, 0xf0f0f0f0')
    a.I(f's_mov_b32 s{sMHI+1}, 0xf0f0f0f0')
    a.I(f's_mov_b32 s{sCL}, {f2u(-LOG2E):#x}')
    a.I(f's_mov_b32 s{sCL+1}, {f2u(-LOG2E):#x}')
    a.I(f's_mov_b32 s{sRND}, 0')
    a.I('s_waitcnt lgkmcnt(0)')
    srd(a, sX, 44, X_BYTES)
    srd(a, sWS, 42, WS_SIZE if not cfg.get('stamps') else STAMP_OFF + 0x10000)
    srd(a, sOUT, 46, X_BYTES)
    if cfg.get('stamps'):
        cfg['stamp_srd'] = sWS
        a.I(f's_lshl_b32 s{sDBG}, s2, 6')
        a.I(f's_add_u32 s{sDBG}, s{sDBG}, {STAMP_OFF + 0x8000:#x}')
        a.I(f's_cmp_eq_u32 s{sW}, 0')
        a.I('s_cbranch_scc0 K2_ST0')
        stamp(a, cfg, 0, sDBG, 66, vTmp+4)
        a.L('K2_ST0')
    vChunk, vTab, vCnt, vInc, vExc, vRb = vP, vP+1, vP+2, vP+3, vP+4, vP+5
    a.I(f'v_and_b32 v{vChunk}, 31, v{vLane}')
    a.I(f's_lshl_b32 s{sT0}, s{sW}, 5')
    a.I(f'v_add_u32 v{vChunk}, s{sT0}, v{vChunk}')
    a.I(f'v_lshlrev_b32 v{vTmp}, 10, v{vChunk}')
    a.I(f's_lshl_b32 s{sT0}, s{sKEY}, 2')
    a.I(f's_add_u32 s{sT0}, s{sT0}, {TAB_OFF:#x}')
    a.I(f'buffer_load_dword v{vTab}, v{vTmp}, s[{sWS}:{sWS+3}], s{sT0} offen')
    a.I('s_barrier')
    a.I('s_waitcnt vmcnt(0)')
    vCntP, vExcP, vRbP = vTmp+1, vTmp+2, vTmp+3
    a.I(f'v_lshrrev_b32 v{vCntP}, 16, v{vTab}')
    a.I(f'v_and_b32 v{vRbP}, 0xffff, v{vTab}')
    a.I(f'v_mov_b32 v{vInc}, v{vCntP}')
    a.I(f'v_mad_u32_u24 v{vRbP}, v{vChunk}, v{vOneConst(a, vTmp+4, CHUNK)}, v{vRbP}')
    scan_dpp(a, vInc, False)
    a.I('s_nop 0')
    a.I(f'v_sub_u32 v{vExcP}, v{vInc}, v{vCntP}')
    a.I(f'v_readlane_b32 s{sNW}, v{vInc}, 31')
    a.I('s_nop 3')
    a.I(f's_add_u32 s{sT0}, s{sNW}, 127')
    a.I(f's_lshr_b32 s{sT0}, s{sT0}, 7')
    a.I(f'v_mov_b32 v{vTmp}, s{sT0}')
    a.I(f'v_mov_b32 v{vTmp+4}, {MAXR}')
    a.I(f'ds_max_u32 v{vTmp+4}, v{vTmp}')
    a.L('K2_ROUND')
    vK, vHi, vAd, vVal = vP, vP+1, vP+2, vP+3
    a.I(f's_lshl_b32 s{sT0}, s{sRND}, 7')
    a.I(f'v_sub_u32 v{vK}, s{sT0}, v{vExcP}')
    a.I(f'v_add_u32 v{vHi}, 128, v{vK}')
    a.I(f'v_min_i32 v{vHi}, v{vHi}, v{vCntP}')
    a.I(f'v_max_i32 v{vK}, 0, v{vK}')
    a.I(f'v_lshrrev_b32 v{vTmp}, 5, v{vLane}')
    a.I(f'v_add_u32 v{vK}, v{vK}, v{vTmp}')
    a.I(f'v_add_u32 v{vVal}, v{vRbP}, v{vK}')
    a.I(f'v_add_u32 v{vAd}, v{vExcP}, v{vK}')
    a.I(f'v_subrev_u32 v{vAd}, s{sT0}, v{vAd}')
    a.I(f's_lshl_b32 s{sT1}, s{sW}, 9')
    a.I(f's_add_u32 s{sT1}, s{sT1}, {WL}')
    a.I(f'v_lshl_add_u32 v{vAd}, v{vAd}, 2, s{sT1}')
    a.L('K2_EXP')
    a.I(f'v_cmp_lt_i32 vcc, v{vK}, v{vHi}')
    a.I('s_and_b64 exec, exec, vcc')
    a.I('s_cbranch_scc0 K2_EXPD')
    a.I(f'ds_write_b32 v{vAd}, v{vVal}')
    a.I(f'v_add_u32 v{vK}, 2, v{vK}')
    a.I(f'v_add_u32 v{vVal}, 2, v{vVal}')
    a.I(f'v_add_u32 v{vAd}, 8, v{vAd}')
    a.I('s_branch K2_EXP')
    a.L('K2_EXPD')
    a.I('s_mov_b64 exec, -1')
    a.I(f'v_lshl_add_u32 v{vTmp}, v{vLane}, 2, s{sT1}')
    a.I('s_waitcnt lgkmcnt(0)')
    a.I(f'ds_read_b32 v{vP}, v{vTmp}')
    a.I(f'ds_read_b32 v{vP+1}, v{vTmp} offset:256')
    a.I(f's_sub_i32 s{sT2}, s{sNW}, s{sT0}')
    a.I(f'v_cmp_gt_i32 s[{sV0}:{sV0+1}], s{sT2}, v{vLane}')
    a.I(f'v_add_u32 v{vTmp}, 64, v{vLane}')
    a.I(f'v_cmp_gt_i32 s[{sV1}:{sV1+1}], s{sT2}, v{vTmp}')
    a.I(f'v_mov_b32 v{vTmp}, 0x7ffffff0')
    a.I('s_waitcnt lgkmcnt(0)')
    a.I(f'v_mul_u32_u24 v{vP}, 48, v{vP}')
    a.I(f'v_mul_u32_u24 v{vP+1}, 48, v{vP+1}')
    a.I(f'v_cndmask_b32 v{vP}, v{vTmp}, v{vP}, s[{sV0}:{sV0+1}]')
    a.I(f'v_cndmask_b32 v{vP+1}, v{vTmp}, v{vP+1}, s[{sV1}:{sV1+1}]')
    for rec, vo in ((vRecA, vP), (vRecB, vP+1)):
        for q in range(3):
            a.I(f'buffer_load_dwordx4 {vr(rec+4*q,4)}, v{vo}, s[{sWS}:{sWS+3}], 0 offen offset:{16*q}')
    a.I(f'v_add_u32 v{vTmp}, {BRAD_OFF:#x}, v{vL16}')
    for q in range(4):
        a.I(f'buffer_load_dwordx4 {vr(vBR+4*q,4)}, v{vTmp}, s[{sWS}:{sWS+3}], 0 offen offset:{1024*q}')
    a.I(f'v_and_b32 v{vTmp}, 3, v{vLane}')
    a.I(f'v_lshlrev_b32 v{vTmp}, 6, v{vTmp}')
    a.I(f'v_add_u32 v{vTmp}, {CGW_OFF:#x}, v{vTmp}')
    for q in range(4):
        a.I(f'buffer_load_dwordx4 {vr(vCG+4*q,4)}, v{vTmp}, s[{sWS}:{sWS+3}], 0 offen offset:{16*q}')
    nextra = 8
    if NPF2 > 0:
        a.I(f's_lshr_b32 s{sT0}, s{sB}, 3')
        a.I(f's_add_u32 s{sT1}, s{sW}, {NPF1}')
        a.I(f's_lshl_b32 s{sT1}, s{sT1}, 5')
        a.I(f's_add_u32 s{sT0}, s{sT0}, s{sT1}')
        a.I(f's_lshl_b32 s{sT0}, s{sT0}, 13')
        a.I(f's_cmp_lt_u32 s{sW}, {NPF2}')
        a.I(f's_cselect_b32 s{sT0}, s{sT0}, 0x7ff00000')
        a.I(f'v_lshlrev_b32 v{vTmp}, 7, v{vLane}')
        a.I(f'v_add_u32 v{vTmp}, s{sT0}, v{vTmp}')
        a.I(f'buffer_load_dword v{vTmp+5}, v{vTmp}, s[{sX}:{sX+3}], 0 offen')
        nextra += 1
    a.I(f's_waitcnt vmcnt({nextra})')
    if cfg.get('stamps'):
        a.I(f's_cmp_eq_u32 s{sW}, 0')
        a.I('s_cbranch_scc0 K2_ST1')
        stamp(a, cfg, 1, sDBG, 66, vP+20)
        a.L('K2_ST1')
    vOne = vP+2
    a.I(f'v_mov_b32 v{vOne}, 1')
    vBin = (vP+4, vP+5); vEnt = (vP+6, vP+7); vRank = (vP+8, vP+9)
    for i, rec in enumerate((vRecA, vRecB)):
        w0 = rec + 2
        a.I(f'v_and_b32 v{vTmp}, 0x3fff, v{w0}')
        a.I(f'v_bfe_u32 v{vP+10}, v{w0}, 14, 3')
        a.I(f'v_mul_u32_u24 v{vP+11}, 838, v{vTmp}')
        a.I(f'v_lshrrev_b32 v{vP+11}, 18, v{vP+11}')
        a.I(f'v_lshl_add_u32 v{vP+11}, v{vP+10}, 5, v{vP+11}')
        a.I(f'v_lshlrev_b32 v{vBin[i]}, 2, v{vP+11}')
        a.I(f'v_bfe_u32 v{vP+10}, v{w0}, 17, 3')
        a.I(f'v_lshlrev_b32 v{vP+10}, 3, v{vP+10}')
        a.I(f'v_lshl_or_b32 v{vEnt[i]}, v{vTmp}, 10, v{vP+10}')
    for i, m in enumerate((sV0, sV1)):
        a.I(f's_mov_b64 exec, s[{m}:{m+1}]')
        a.I(f's_cbranch_execz K2_H{i}')
        a.I(f'ds_add_rtn_u32 v{vRank[i]}, v{vBin[i]}, v{vOne} offset:{HIST}')
        a.L(f'K2_H{i}')
    a.I('s_mov_b64 exec, -1')
    a.I('s_waitcnt lgkmcnt(0)')
    a.I('s_barrier')
    vC, vS, vTot = vP+12, vP+16, vP+20
    a.I(f'v_mov_b32 v{vTmp}, {MAXR}')
    a.I(f'ds_read_b32 v{vTmp+5}, v{vTmp}')
    hist_prefix(a, vC, vS, vTot, vL16, HIST, BASE)
    a.I(f'v_readfirstlane_b32 s{sMAXR}, v{vTmp+5}')
    a.I(f's_lshl_b32 s{sT0}, s{sW}, 3')
    a.I(f'v_readlane_b32 s{sSEG0}, v{vS}, s{sT0}')
    a.I(f's_add_u32 s{sT0}, s{sT0}, 8')
    a.I(f's_min_u32 s{sT0}, s{sT0}, 63')
    a.I(f'v_readlane_b32 s{sT1}, v{vS}, s{sT0}')
    a.I(f'v_readlane_b32 s{sT2}, v{vTot}, 63')
    a.I('s_nop 3')
    a.I(f's_cmp_eq_u32 s{sW}, 7')
    a.I(f's_cselect_b32 s{sT1}, s{sT2}, s{sT1}')
    a.I(f's_sub_u32 s{sN}, s{sT1}, s{sSEG0}')
    a.I('s_waitcnt lgkmcnt(0)')
    a.I(f'ds_read_b32 v{vP+10}, v{vBin[0]} offset:{BASE}')
    a.I(f'ds_read_b32 v{vP+11}, v{vBin[1]} offset:{BASE}')
    a.I('s_waitcnt lgkmcnt(0)')
    for i, (m, rec) in enumerate(((sV0, vRecA), (sV1, vRecB))):
        a.I(f's_mov_b64 exec, s[{m}:{m+1}]')
        a.I(f's_cbranch_execz K2_S{i}')
        a.I(f'v_add_u32 v{vRank[i]}, v{vRank[i]}, v{vP+10+i}')
        a.I(f'v_lshlrev_b32 v{vTmp}, 2, v{vRank[i]}')
        a.I(f'ds_write_b32 v{vTmp}, v{vEnt[i]} offset:{ENT}')
        a.I(f'v_lshlrev_b32 v{vTmp+4}, 3, v{vRank[i]}')
        a.I(f'ds_write_b64 v{vTmp+4}, {vr(rec,2)} offset:{YS}')
        a.I(f'v_lshlrev_b32 v{vTmp+5}, 5, v{vRank[i]}')
        a.I(f'ds_write_b128 v{vTmp+5}, {vr(rec+4,4)} offset:{EFS}')
        a.I(f'ds_write_b128 v{vTmp+5}, {vr(rec+8,4)} offset:{EFS+16}')
        a.L(f'K2_S{i}')
    a.I('s_mov_b64 exec, -1')
    a.I('s_waitcnt lgkmcnt(0)')
    a.I('s_barrier')
    a.I(f'v_mov_b32 v{vTmp}, 0')
    a.I(f'v_lshlrev_b32 v{vTmp+4}, 2, v0')
    a.I('v_cmp_gt_u32 vcc, 256, v0')
    a.I(f's_and_saveexec_b64 s[{sSAVE}:{sSAVE+1}], vcc')
    a.I('s_cbranch_execz K2_Z2')
    a.I(f'ds_write_b32 v{vTmp+4}, v{vTmp} offset:{HIST}')
    a.L('K2_Z2')
    a.I(f's_mov_b64 exec, s[{sSAVE}:{sSAVE+1}]')
    if cfg.get('stamps'):
        a.I(f's_cmp_eq_u32 s{sW}, 0')
        a.I('s_cbranch_scc0 K2_ST2')
        stamp(a, cfg, 2, sDBG, 66, vP+22)
        a.L('K2_ST2')

    def w_compute(dst):
        ops = []
        ops.append(f'v_lshlrev_b32 v{vYf}, 16, v{vYraw}')
        ops.append(f'v_and_b32 v{vYf+1}, 0xffff0000, v{vYraw}')
        ops.append(f'v_lshlrev_b32 v{vYf+2}, 16, v{vYraw+1}')
        ops.append(f'v_and_b32 v{vYf+3}, 0xffff0000, v{vYraw+1}')
        for f in range(4):
            yp = vYf + (f & 2)
            s = f & 1
            for h in range(2):
                cg = vCG + 4*f + 2*h
                if f == 0:
                    ops.append(f'v_pk_mul_f32 {vr(vWf+2*h,2)}, {vr(cg,2)}, {vr(yp,2)} op_sel:[0,{s}] op_sel_hi:[1,{s}]')
                else:
                    ops.append(f'v_pk_fma_f32 {vr(vWf+2*h,2)}, {vr(cg,2)}, {vr(yp,2)}, {vr(vWf+2*h,2)} op_sel:[0,{s},0] op_sel_hi:[1,{s},1]')
        ops.append(f'v_cvt_pk_bf16_f32 v{dst}, v{vWf}, v{vWf+1}')
        ops.append(f'v_cvt_pk_bf16_f32 v{dst+1}, v{vWf+2}, v{vWf+3}')
        return ops

    def h_mfma():
        ops = []
        for p, H in ((0, vH0), (1, vH1)):
            ops.append(f'v_mfma_f32_32x32x16_bf16 {vr(H,16)}, {vr(vAL,4)}, {vr(vBR+8*p,4)}, 0')
            ops.append(f'v_mfma_f32_32x32x16_bf16 {vr(H,16)}, {vr(vAH,4)}, {vr(vBR+8*p+4,4)}, {vr(H,16)}')
        return ops

    def hpair(q):
        if q == 7:
            return vHS, vHS + 2
        qq = q % 8
        return vH0 + 2*qq, vH1 + 2*qq

    def z_ops(q):
        h0, h1 = hpair(q)
        if scaled:
            return []
        return [f'v_pk_mul_f32 {vr(vT,2)}, {vr(h0,2)}, s[{sCL}:{sCL+1}]',
                f'v_pk_mul_f32 {vr(vT+2,2)}, {vr(h1,2)}, s[{sCL}:{sCL+1}]']

    def exp_ops(q):
        h0, h1 = hpair(q)
        if scaled:
            return [f'v_exp_f32 v{vT}, v{h0}', f'v_exp_f32 v{vT+1}, v{h0+1}',
                    f'v_exp_f32 v{vT+2}, v{h1}', f'v_exp_f32 v{vT+3}, v{h1+1}']
        return [f'v_exp_f32 v{vT+i}, v{vT+i}' for i in range(4)]

    add_ops = [f'v_pk_add_f32 {vr(vT,2)}, {vr(vT,2)}, 1.0 op_sel_hi:[1,0]',
               f'v_pk_add_f32 {vr(vT+2,2)}, {vr(vT+2,2)}, 1.0 op_sel_hi:[1,0]']
    rcp_ops = [f'v_rcp_f32 v{vT+i}, v{vT+i}' for i in range(4)]

    def r_ops(q):
        h0, h1 = hpair(q)
        rb = vR + 4*(q % 2)
        return [f'v_pk_mul_f32 {vr(rb,2)}, {vr(h0,2)}, {vr(vT,2)}',
                f'v_pk_mul_f32 {vr(rb+2,2)}, {vr(h1,2)}, {vr(vT+2,2)}']

    a.I(f'v_add_u32 v{vEntA}, s{sSEG0}, v{vL15}')
    a.I(f'v_lshlrev_b32 v{vEntA}, 2, v{vEntA}')
    a.I(f'v_lshrrev_b32 v{vTmp}, 2, v{vLane}')
    a.I(f'v_add_u32 v{vYA}, s{sSEG0}, v{vTmp}')
    a.I(f'v_lshlrev_b32 v{vYA}, 3, v{vYA}')
    a.I(f'v_bfe_u32 v{vTmp}, v{vLane}, 3, 2')
    a.I(f'v_and_b32 v{vTmp+4}, 3, v{vLane}')
    a.I(f'v_lshl_add_u32 v{vTmp}, v{vTmp}, 2, v{vTmp+4}')
    a.I(f'v_add_u32 v{vTmp}, s{sSEG0}, v{vTmp}')
    a.I(f'v_lshlrev_b32 v{vTmp}, 5, v{vTmp}')
    a.I(f'v_lshrrev_b32 v{vTmp+4}, 5, v{vLane}')
    a.I(f'v_lshl_add_u32 v{vEfA}, v{vTmp+4}, 4, v{vTmp}')
    a.I(f'v_add_u32 v{vEfA}, {EFS}, v{vEfA}')
    a.I(f'v_mov_b32 v{vTmp}, {ZERO16}')
    a.I(f'v_cndmask_b32 v{vAL_A}, v{vTmp}, v{vEfA}, s[{sMLO}:{sMLO+1}]')
    a.I(f'v_cndmask_b32 v{vAH_A}, v{vTmp}, v{vEfA}, s[{sMHI}:{sMHI+1}]')
    a.I(f'ds_read_b32 v{vENTc}, v{vEntA} offset:{ENT}')
    a.I(f'ds_read_b64 {vr(vYraw,2)}, v{vYA} offset:{YS}')
    a.I(f'ds_read_b128 {vr(vAL,4)}, v{vAL_A}')
    a.I(f'ds_read_b128 {vr(vAH,4)}, v{vAH_A}')
    a.I(f'v_cmp_gt_i32 vcc, s{sN}, v{vL15}')
    for i in range(8):
        a.I(f'v_mov_b32 v{vTP+8+i}, 0')
    for i in range(4):
        a.I(f'v_mov_b32 v{vR+4+i}, 0')
    a.I(f's_mov_b32 s{sE+15}, 0')
    a.I(f's_mov_b32 s{sCNT}, s{sN}')
    a.I(f's_sub_i32 s{sREM}, s{sN}, 16')
    a.I('s_waitcnt lgkmcnt(3)')
    a.I(f'v_cndmask_b32 v{vENTc}, 0, v{vENTc}, vcc')
    a.I('s_nop 0')
    for j in range(5):
        a.I(f'v_readlane_b32 s{sE+j}, v{vENTc}, {j}')
    a.I('s_nop 3')
    for j in range(4):
        a.I(f's_and_b32 s{sXO}, s{sE+j}, 0xfffffc00')
        a.I(f'buffer_load_dwordx4 {vr(vXR+4*j,4)}, v{vL16}, s[{sX}:{sX+3}], s{sXO} offen')
    a.I(f's_and_b32 s{sXO}, s{sE+4}, 0xfffffc00')
    a.I('s_waitcnt vmcnt(4) lgkmcnt(0)')
    for op in h_mfma():
        a.I(op)
    for op in w_compute(vWc):
        a.I(op)
    a.I('s_nop 7')
    for op in z_ops(0) + exp_ops(0):
        a.I(op)
    a.I('s_nop 0')
    for op in add_ops + rcp_ops:
        a.I(op)
    a.I('s_nop 0')
    for op in r_ops(0) + z_ops(1):
        a.I(op)

    a.L('K2_LOOP')
    wn_ops = w_compute(vWn)
    for j in range(16):
        a(f'    ; ---- slot {j}')
        if j == 0:
            a.I(f'ds_read_b32 v{vENTn}, v{vEntA} offset:{ENT+64}')
            a.I(f'ds_read_b64 {vr(vYraw,2)}, v{vYA} offset:{YS+128}')
        a.I('s_waitcnt vmcnt(3)')
        xr = vXR + 4*(j % 4)
        tp = vTP + 8*(j % 2)
        a.I(f'v_mfma_f32_4x4x4_16b_bf16 {vr(tp,4)}, {vr(vWc,2)}, {vr(xr,2)}, 0 cbsz:4 abid:{j}')
        a.I(f'v_mfma_f32_4x4x4_16b_bf16 {vr(tp+4,4)}, {vr(vWc,2)}, {vr(xr+2,2)}, 0 cbsz:4 abid:{j}')
        a.I(f'buffer_load_dwordx4 {vr(xr,4)}, v{vL16}, s[{sX}:{sX+3}], s{sXO} offen' + cfg.get('xld', ''))
        q = j // 2 + 1 if j % 2 == 0 else (j + 1) // 2
        for op in (exp_ops(q) if j % 2 == 0 else rcp_ops):
            a.I(op)
        src_ent = vENTc if j + 5 < 16 else vENTn
        a.I(f'v_readlane_b32 s{sE+(j+5)%16}, v{src_ent}, {(j+5)%16}')
        jm = (j - 1) % 16
        tpm = vTP + 8*((j - 1) % 2)
        rb = vR + 4*((((j - 1) // 2)) % 2)
        sel = (j - 1) & 1
        a.I(f's_set_gpr_idx_on s{sE+jm}, gpr_idx(SRC2,DST)')
        for p in range(2):
            for h in range(2):
                acc = vACC + 4*p + 2*h
                a.I(f'v_pk_fma_f32 {vr(acc,2)}, {vr(tpm+4*p+2*h,2)}, {vr(rb+2*p,2)}, {vr(acc,2)} op_sel:[0,{sel},0] op_sel_hi:[1,{sel},1]')
        a.I('s_set_gpr_idx_off')
        a.I(f's_sub_u32 s{sCNT}, s{sCNT}, 1')
        a.I('s_cbranch_scc1 K2_EXIT')
        a.I(f's_and_b32 s{sXO}, s{sE+(j+5)%16}, 0xfffffc00')
        if j % 2 == 0:
            for op in add_ops:
                a.I(op)
        else:
            for op in r_ops(q) + z_ops(q + 1):
                a.I(op)
        if j == 1:
            a.I(f'v_add_u32 v{vEfA}, 512, v{vEfA}')
            a.I(f'v_mov_b32 v{vTmp}, {ZERO16}')
            a.I(f'v_cndmask_b32 v{vAL_A}, v{vTmp}, v{vEfA}, s[{sMLO}:{sMLO+1}]')
            a.I(f'v_cndmask_b32 v{vAH_A}, v{vTmp}, v{vEfA}, s[{sMHI}:{sMHI+1}]')
            a.I(f'ds_read_b128 {vr(vAL,4)}, v{vAL_A}')
            a.I(f'ds_read_b128 {vr(vAH,4)}, v{vAH_A}')
        if j == 3:
            a.I('s_waitcnt lgkmcnt(0)')
            a.I(f'v_cmp_gt_i32 vcc, s{sREM}, v{vL15}')
            for op in wn_ops[0:4]:
                a.I(op)
            a.I(f'v_cndmask_b32 v{vENTn}, 0, v{vENTn}, vcc')
        if j == 4:
            for op in wn_ops[4:8]:
                a.I(op)
        if j == 5:
            for op in wn_ops[8:14]:
                a.I(op)
        if j == 9:
            a.I(f'v_pk_mov_b32 {vr(vHS,2)}, {vr(vH0+14,2)}, {vr(vH0+14,2)} op_sel:[0,1]')
            a.I(f'v_pk_mov_b32 {vr(vHS+2,2)}, {vr(vH1+14,2)}, {vr(vH1+14,2)} op_sel:[0,1]')
        if j == 11:
            for op in h_mfma():
                a.I(op)
        if j == 15:
            a.I(f'v_mov_b32 v{vWc}, v{vWn}')
            a.I(f'v_mov_b32 v{vWc+1}, v{vWn+1}')
            a.I(f'v_mov_b32 v{vENTc}, v{vENTn}')
            a.I(f'v_add_u32 v{vEntA}, 64, v{vEntA}')
            a.I(f'v_add_u32 v{vYA}, 128, v{vYA}')
            a.I(f's_sub_i32 s{sREM}, s{sREM}, 16')
            a.I('s_branch K2_LOOP')
    a.L('K2_EXIT')
    a.I('s_waitcnt vmcnt(0) lgkmcnt(0)')
    a.I(f's_add_u32 s{sRND}, s{sRND}, 1')
    a.I(f's_cmp_lt_u32 s{sRND}, s{sMAXR}')
    a.I('s_cbranch_scc0 K2_TAIL')
    a.I('s_barrier')
    a.I('s_branch K2_ROUND')

    a.L('K2_TAIL')
    if cfg.get('stamps'):
        a.I(f's_cmp_eq_u32 s{sW}, 0')
        a.I('s_cbranch_scc0 K2_ST3')
        stamp(a, cfg, 3, sDBG, 66, vXR)
        a.L('K2_ST3')
    a.I(f's_and_b32 s{sT0}, s{sW}, 3')
    a.I(f's_lshl_b32 s{sT0}, s{sT0}, 13')
    a.I(f's_add_u32 s{sT0}, s{sT0}, {BMIX_OFF:#x}')
    a.I(f's_add_u32 s{sT1}, s{sT0}, 4096')
    for t in range(2):
        for ks in range(4):
            a.I(f'buffer_load_dwordx4 {vr(vBM+16*t+4*ks,4)}, v{vL16}, s[{sWS}:{sWS+3}], s{sT0 if t == 0 else sT1} offen offset:{1024*ks}')
    a.I(f's_mul_i32 s{sT2}, s{sW}, {4*AGG_STRIDE}')
    a.I(f's_add_u32 s{sT2}, s{sT2}, {AGG}')
    a.I(f'v_lshl_add_u32 v{vTmp}, v{vLane}, 2, s{sT2}')
    for s in range(5):
        for o in range(4):
            t = vXR + s * 4 + o
            a.I(f'v_cvt_pk_bf16_f32 v{t}, v{vACC+8*s+o}, v{vACC+8*s+4+o}')
            a.I(f'ds_write_b32 v{vTmp}, v{t} offset:{(32*s + o) * AGG_STRIDE}')
    a.I('s_waitcnt lgkmcnt(0)')
    a.I('s_barrier')
    a.I(f'v_mul_u32_u24 v{vTmp}, {AGG_STRIDE}, v{vL15}')
    a.I(f'v_lshrrev_b32 v{vTmp+4}, 4, v{vLane}')
    a.I(f'v_lshl_add_u32 v{vTmp}, v{vTmp+4}, 4, v{vTmp}')
    a.I(f's_lshr_b32 s{sT0}, s{sW}, 2')
    a.I(f's_mul_i32 s{sT1}, s{sT0}, {5*16*AGG_STRIDE}')
    a.I(f's_add_u32 s{sT1}, s{sT1}, {AGG}')
    a.I(f'v_add_u32 v{vTmp}, s{sT1}, v{vTmp}')
    a.I(f's_mul_i32 s{sT1}, s{sT0}, 20')
    a.I(f'v_add_u32 v{vTmp+4}, s{sT1}, v{vTmp+4}')
    a.I(f'v_lshlrev_b32 v{vTmp+4}, 18, v{vTmp+4}')
    a.I(f's_lshl_b32 s{sT1}, s{sB}, 10')
    a.I(f's_and_b32 s{sT2}, s{sW}, 3')
    a.I(f's_lshl_b32 s{sT2}, s{sT2}, 8')
    a.I(f's_add_u32 s{sT1}, s{sT1}, s{sT2}')
    a.I(f'v_lshl_add_u32 v{vTmp+5}, v{vL15}, 4, s{sT1}')
    a.I(f'v_add_u32 v{vTmp+4}, v{vTmp+4}, v{vTmp+5}')
    vA = (vH0, vH0 + 16 - 16 + 16)
    vA = (vH0, vH1)
    vD = (vTP, vTP + 8)
    vO = (vXR, vXR + 4, vXR + 8, vXR + 12)
    def a_reads(tt):
        for ks in range(4):
            a.I(f'ds_read_b128 {vr(vA[tt%2]+4*ks,4)}, v{vTmp} offset:{tt*16*AGG_STRIDE + 64*ks}')
    a_reads(0)
    a.I('s_waitcnt vmcnt(0)')
    for tt in range(5):
        if tt + 1 < 5:
            a_reads(tt + 1)
            a.I('s_waitcnt lgkmcnt(4)')
        else:
            a.I('s_waitcnt lgkmcnt(0)')
        D = vD[tt % 2]
        for ks in range(4):
            for t in range(2):
                c = '0' if ks == 0 else vr(D+4*t, 4)
                a.I(f'v_mfma_f32_16x16x32_bf16 {vr(D+4*t,4)}, {vr(vA[tt%2]+4*ks,4)}, {vr(vBM+16*t+4*ks,4)}, {c}')
        if tt > 0:
            Dp = vD[(tt - 1) % 2]; O = vO[(tt - 1) % 4]
            a.I(f'v_cvt_pk_bf16_f32 v{O}, v{Dp}, v{Dp+1}')
            a.I(f'v_cvt_pk_bf16_f32 v{O+1}, v{Dp+2}, v{Dp+3}')
            a.I(f'v_cvt_pk_bf16_f32 v{O+2}, v{Dp+4}, v{Dp+5}')
            a.I(f'v_cvt_pk_bf16_f32 v{O+3}, v{Dp+6}, v{Dp+7}')
            a.I(f'buffer_store_dwordx4 {vr(O,4)}, v{vTmp+4}, s[{sOUT}:{sOUT+3}], 0 offen' + cfg.get('ost', ''))
            a.I(f'v_add_u32 v{vTmp+4}, {4 << 18:#x}, v{vTmp+4}')
    Dp = vD[4 % 2]; O = vO[0]
    a.I('s_nop 7')
    a.I(f'v_cvt_pk_bf16_f32 v{O}, v{Dp}, v{Dp+1}')
    a.I(f'v_cvt_pk_bf16_f32 v{O+1}, v{Dp+2}, v{Dp+3}')
    a.I(f'v_cvt_pk_bf16_f32 v{O+2}, v{Dp+4}, v{Dp+5}')
    a.I(f'v_cvt_pk_bf16_f32 v{O+3}, v{Dp+6}, v{Dp+7}')
    a.I(f'buffer_store_dwordx4 {vr(O,4)}, v{vTmp+4}, s[{sOUT}:{sOUT+3}], 0 offen' + cfg.get('ost', ''))
    if cfg.get('stamps'):
        a.I(f's_cmp_eq_u32 s{sW}, 0')
        a.I('s_cbranch_scc0 K2_ST4')
        a.I('s_waitcnt vmcnt(0)')
        stamp(a, cfg, 4, sDBG, 66, vH0)
        a.L('K2_ST4')
    a.L('K2_END')
    a.I('s_endpgm')
    return name, NV, 72


def vOneConst(a, v, val):
    a.I(f'v_mov_b32 v{v}, {val}')
    return v


def build(cfg):
    a = Asm()
    for _ in range(cfg.get('pre', 0)):
        a('; @launch kernel=nop_kernel grid=(1,1,1) block=(64,1,1) lds=0')
    a('; @launch kernel=bin_kernel grid=(256,1,1) block=(640,1,1) lds=2048')
    a(f'; @launch kernel=main_kernel grid=(256,1,1) block=(512,1,1) lds={K2_LDS}')
    for _ in range(cfg.get('post', 0)):
        a('; @launch kernel=nop_kernel grid=(1,1,1) block=(64,1,1) lds=0')
    a('.amdgcn_target "amdgcn-amd-amdhsa--gfx950"')
    a('.text')
    k1 = gen_k1(a, cfg)
    k2 = gen_k2(a, cfg)
    ks = [k1, k2]
    if cfg.get('pre', 0) or cfg.get('post', 0):
        a('.globl nop_kernel\n.p2align 8\n.type nop_kernel,@function\nnop_kernel:\n    s_endpgm')
        ks.append(('nop_kernel', 8, 16))
    a('.section .rodata,"a"')
    for k in ks:
        a('.p2align 6')
        kd(a, *k)
    return a.text()


if __name__ == '__main__':
    cfg = {}
    out = sys.argv[1] if len(sys.argv) > 1 else 'gather_scatter__tensor_product_equiv_tfn__graph.s'
    for kv in sys.argv[2:]:
        k, v = kv.split('=', 1)
        try:
            v = int(v)
        except ValueError:
            pass
        cfg[k] = v
    open(out, 'w').write(build(cfg))
    print('wrote', out)
```

```python
import sys, struct

N_NODES = 10000
N_EDGES = 160000
CHUNK = 625
REC_OFF = 0
TAB_OFF = 0x800000
BRAD_OFF = 0x840000
CGW_OFF = 0x841000
BMIX_OFF = 0x842000
WS_SIZE = 0x850000
X_BYTES = N_NODES * 1024

def f2u(x):
    return struct.unpack('<I', struct.pack('<f', x))[0]
LOG2E = 1.4426950408889634
LN2 = 0.6931471805599453


class Asm:
    def __init__(self):
        self.lines = []
    def __call__(self, s=''):
        for ln in s.split('\n'):
            self.lines.append(ln)
    def I(self, s):
        self.lines.append('    ' + s)
    def L(self, name):
        self.lines.append(name + ':')
    def text(self):
        return '\n'.join(self.lines) + '\n'


def vr(base, n=1):
    return f'v{base}' if n == 1 else f'v[{base}:{base+n-1}]'
def sr(base, n=1):
    return f's{base}' if n == 1 else f's[{base}:{base+n-1}]'


def srd(a, dst, ptr, size):
    a.I(f's_mov_b32 s{dst}, s{ptr}')
    a.I(f's_and_b32 s{dst+1}, s{ptr+1}, 0xffff')
    a.I(f's_mov_b32 s{dst+2}, {size:#x}')
    a.I(f's_mov_b32 s{dst+3}, 0x20000')


def scan_dpp(a, v, full64):
    for sh in (1, 2, 4, 8):
        a.I('s_nop 1')
        a.I(f'v_add_u32_dpp v{v}, v{v}, v{v} row_shr:{sh} row_mask:0xf bank_mask:0xf')
    a.I('s_nop 1')
    a.I(f'v_add_u32_dpp v{v}, v{v}, v{v} row_bcast:15 row_mask:0xa bank_mask:0xf')
    if full64:
        a.I('s_nop 1')
        a.I(f'v_add_u32_dpp v{v}, v{v}, v{v} row_bcast:31 row_mask:0xc bank_mask:0xf')


def hist_prefix(a, vC, vS, vTot, vLane16, hist_off, base_off):
    a.I(f'ds_read_b128 {vr(vC,4)}, v{vLane16} offset:{hist_off}')
    a.I('s_waitcnt lgkmcnt(0)')
    a.I(f'v_add_u32 v{vS+2}, v{vC}, v{vC+1}')
    a.I(f'v_add_u32 v{vS+3}, v{vS+2}, v{vC+2}')
    a.I(f'v_add_u32 v{vTot}, v{vS+3}, v{vC+3}')
    a.I(f'v_mov_b32 v{vS}, v{vTot}')
    scan_dpp(a, vTot, True)
    a.I('s_nop 0')
    a.I(f'v_sub_u32 v{vS}, v{vTot}, v{vS}')
    a.I(f'v_add_u32 v{vS+1}, v{vS}, v{vC}')
    a.I(f'v_add_u32 v{vS+2}, v{vS}, v{vS+2}')
    a.I(f'v_add_u32 v{vS+3}, v{vS}, v{vS+3}')
    a.I(f'ds_write_b128 v{vLane16}, {vr(vS,4)} offset:{base_off}')


def stamp(a, cfg, idx, sdbg, tmp_s, tmp_v):
    if not cfg.get('stamps'):
        return
    a.I(f's_memrealtime s[{tmp_s}:{tmp_s+1}]')
    a.I('s_waitcnt lgkmcnt(0)')
    a.I(f'v_mov_b32 v{tmp_v}, s{tmp_s}')
    a.I(f'v_mov_b32 v{tmp_v+1}, s{sdbg}')
    a.I(f'buffer_store_dword v{tmp_v}, v{tmp_v+1}, s[{cfg["stamp_srd"]}:{cfg["stamp_srd"]+3}], 0 offen offset:{idx*4}')


STAMP_OFF = 0x900000


def gen_k1(a, cfg):
    name = 'bin_kernel'
    NPF = cfg.get('npf1', 6)
    scaled = cfg.get('scaled', False)
    a(f'.globl {name}\n.p2align 8\n.type {name},@function\n{name}:')
    sDST, sSRC, sY, sEF, sWS, sX, sPREP = 8, 12, 16, 20, 24, 28, 32
    a.I('s_cmp_ge_u32 s2, 256')
    a.I('s_cbranch_scc1 K1_END')
    a.I('s_load_dwordx4 s[44:47], s[0:1], 0')
    a.I('s_load_dwordx4 s[48:51], s[0:1], 16')
    a.I('s_load_dwordx4 s[52:55], s[0:1], 32')
    a.I('s_load_dwordx4 s[56:59], s[0:1], 48')
    a.I('s_load_dwordx2 s[60:61], s[0:1], 80')
    vT, vLane, vT4, vE, vOff = 0, 1, 2, 3, 4
    vDst, vSrc = 5, 6
    vRec = 8
    vY = 9
    vEF = 12
    vKey, vRank, vOne, vTmp = 20, 21, 22, 23
    vC, vS, vTot, vL16 = 24, 28, 32, 33
    vPrep, vPrepAddr, vPf = 34, 35, 36
    vT2 = 37
    a.I(f'v_and_b32 v{vLane}, 63, v0')
    a.I(f'v_lshlrev_b32 v{vT4}, 2, v0')
    a.I(f'v_lshrrev_b32 v{vTmp}, 6, v0')
    a.I(f'v_mov_b32 v{vOne}, 1')
    a.I(f'v_readfirstlane_b32 s4, v{vTmp}')
    a.I(f'v_mov_b32 v{vTmp}, 0')
    a.I(f'v_lshlrev_b32 v{vL16}, 4, v{vLane}')
    a.I('v_cmp_gt_u32 vcc, 256, v0')
    a.I('s_and_saveexec_b64 s[6:7], vcc')
    a.I('s_cbranch_execz K1_Z')
    a.I(f'ds_write_b32 v{vT4}, v{vTmp}')
    a.L('K1_Z')
    a.I('s_mov_b64 exec, s[6:7]')
    a.I(f's_mul_i32 s5, s2, {CHUNK}')
    a.I(f'v_add_u32 v{vE}, s5, v0')
    a.I('s_waitcnt lgkmcnt(0)')
    srd(a, sDST, 48, N_EDGES * 4)
    srd(a, sSRC, 46, N_EDGES * 4)
    srd(a, sY, 50, N_EDGES * 8)
    srd(a, sEF, 52, N_EDGES * 32)
    srd(a, sWS, 60, WS_SIZE if not cfg.get('stamps') else STAMP_OFF + 0x10000)
    srd(a, sX, 44, X_BYTES)
    if cfg.get('stamps'):
        cfg['stamp_srd'] = sWS
        a.I(f's_lshl_b32 s62, s2, 6')
        a.I(f's_add_u32 s62, s62, {STAMP_OFF:#x}')
        a.I('s_cmp_eq_u32 s4, 0')
        a.I('s_cbranch_scc0 K1_ST0')
        stamp(a, cfg, 0, 62, 64, 38)
        a.L('K1_ST0')
    a.I(f'v_mov_b32 v{vPrepAddr}, 0x7ffffff0')
    a.I('s_cmp_eq_u32 s4, 9')
    a.I('s_cbranch_scc1 K1_PA')
    a.I('s_cmp_eq_u32 s4, 8')
    a.I('s_cbranch_scc0 K1_PDONE')
    a.I('s_cmp_lt_u32 s2, 32')
    a.I('s_cbranch_scc1 K1_PB')
    a.I('s_cmp_eq_u32 s2, 32')
    a.I('s_cbranch_scc0 K1_PDONE')
    srd(a, sPREP, 56, 128)
    a.I(f'v_and_b32 v{vTmp}, 3, v{vLane}')
    a.I(f'v_lshlrev_b32 v{vTmp}, 4, v{vTmp}')
    a.I(f'v_and_b32 v{vT2}, 12, v{vLane}')
    a.I(f'v_add_u32 v{vTmp}, v{vTmp}, v{vT2}')
    a.I(f'v_lshrrev_b32 v{vT2}, 4, v{vLane}')
    a.I(f'v_add_lshl_u32 v{vTmp}, v{vTmp}, v{vT2}, 1')
    a.I(f'buffer_load_ushort v{vPrep}, v{vTmp}, s[{sPREP}:{sPREP+3}], 0 offen')
    a.I(f'v_lshlrev_b32 v{vPrepAddr}, 2, v{vLane}')
    a.I(f'v_add_u32 v{vPrepAddr}, {CGW_OFF:#x}, v{vPrepAddr}')
    a.I('s_branch K1_PDONE')
    a.L('K1_PB')
    srd(a, sPREP, 54, 16 * 128 * 2)
    a.I('s_lshl_b32 s5, s2, 6')
    a.I(f'v_add_u32 v{vPrepAddr}, s5, v{vLane}')
    a.I(f'v_lshrrev_b32 v{vTmp}, 3, v{vPrepAddr}')
    a.I(f'v_bfe_u32 v{vT2}, v{vTmp}, 5, 1')
    a.I(f'v_lshlrev_b32 v{vT2}, 3, v{vT2}')
    a.I(f'v_and_b32 v{vPf}, 7, v{vPrepAddr}')
    a.I(f'v_add_u32 v{vT2}, v{vT2}, v{vPf}')
    a.I(f'v_lshlrev_b32 v{vT2}, 7, v{vT2}')
    a.I(f'v_and_b32 v{vPf}, 31, v{vTmp}')
    a.I(f'v_lshl_add_u32 v{vT2}, v{vPf}, 1, v{vT2}')
    a.I(f'v_bfe_u32 v{vPf}, v{vTmp}, 6, 1')
    a.I(f'v_lshl_add_u32 v{vT2}, v{vPf}, 6, v{vT2}')
    a.I(f'v_bfe_u32 v{vPf}, v{vTmp}, 7, 1')
    a.I(f'v_add_lshl_u32 v{vT2}, v{vT2}, v{vPf}, 1')
    a.I(f'buffer_load_ushort v{vPrep}, v{vT2}, s[{sPREP}:{sPREP+3}], 0 offen')
    a.I(f'v_lshlrev_b32 v{vPrepAddr}, 1, v{vPrepAddr}')
    a.I(f'v_add_u32 v{vPrepAddr}, {BRAD_OFF:#x}, v{vPrepAddr}')
    a.I('s_branch K1_PDONE')
    a.L('K1_PA')
    srd(a, sPREP, 58, 128 * 128 * 2)
    a.I('s_lshl_b32 s5, s2, 6')
    a.I(f'v_add_u32 v{vPrepAddr}, s5, v{vLane}')
    a.I(f'v_lshrrev_b32 v{vTmp}, 3, v{vPrepAddr}')
    a.I(f'v_bfe_u32 v{vT2}, v{vTmp}, 6, 2')
    a.I(f'v_lshlrev_b32 v{vT2}, 5, v{vT2}')
    a.I(f'v_bfe_u32 v{vPf}, v{vTmp}, 4, 2')
    a.I(f'v_lshl_add_u32 v{vT2}, v{vPf}, 3, v{vT2}')
    a.I(f'v_and_b32 v{vPf}, 7, v{vPrepAddr}')
    a.I(f'v_add_u32 v{vT2}, v{vT2}, v{vPf}')
    a.I(f'v_lshlrev_b32 v{vT2}, 7, v{vT2}')
    a.I(f'v_and_b32 v{vPf}, 15, v{vTmp}')
    a.I(f'v_lshl_add_u32 v{vT2}, v{vPf}, 1, v{vT2}')
    a.I(f'v_lshrrev_b32 v{vPf}, 9, v{vTmp}')
    a.I(f'v_lshl_add_u32 v{vT2}, v{vPf}, 5, v{vT2}')
    a.I(f'v_bfe_u32 v{vPf}, v{vTmp}, 8, 1')
    a.I(f'v_add_lshl_u32 v{vT2}, v{vT2}, v{vPf}, 1')
    a.I(f'buffer_load_ushort v{vPrep}, v{vT2}, s[{sPREP}:{sPREP+3}], 0 offen')
    a.I(f'v_lshlrev_b32 v{vPrepAddr}, 1, v{vPrepAddr}')
    a.I(f'v_add_u32 v{vPrepAddr}, {BMIX_OFF:#x}, v{vPrepAddr}')
    a.L('K1_PDONE')
    a.I(f'v_lshlrev_b32 v{vOff}, 2, v{vE}')
    a.I(f'buffer_load_dword v{vDst}, v{vOff}, s[{sDST}:{sDST+3}], 0 offen')
    a.I(f'buffer_load_dword v{vSrc}, v{vOff}, s[{sSRC}:{sSRC+3}], 0 offen')
    a.I(f'v_lshlrev_b32 v{vOff}, 3, v{vE}')
    a.I(f'buffer_load_dwordx2 {vr(vRec,2)}, v{vOff}, s[{sY}:{sY+3}], 0 offen')
    a.I(f'v_lshlrev_b32 v{vOff}, 5, v{vE}')
    a.I(f'buffer_load_dwordx4 {vr(vEF,4)}, v{vOff}, s[{sEF}:{sEF+3}], 0 offen')
    a.I(f'buffer_load_dwordx4 {vr(vEF+4,4)}, v{vOff}, s[{sEF}:{sEF+3}], 0 offen offset:16')
    a.I('s_lshr_b32 s5, s2, 3')
    a.I('s_lshl_b32 s63, s4, 5')
    a.I('s_add_u32 s5, s5, s63')
    a.I('s_lshl_b32 s5, s5, 13')
    a.I(f's_cmp_lt_u32 s4, {NPF}')
    a.I(f's_cselect_b32 s5, s5, 0x7ff00000')
    a.I(f'v_lshlrev_b32 v{vPf}, 7, v{vLane}')
    a.I(f'v_add_u32 v{vPf}, s5, v{vPf}')
    a.I(f'buffer_load_dword v{vPf}, v{vPf}, s[{sX}:{sX+3}], 0 offen')
    a.I('s_waitcnt lgkmcnt(0)')
    a.I('s_barrier')
    a.I(f'v_cmp_gt_u32 vcc, {CHUNK}, v0')
    a.I('s_and_saveexec_b64 s[6:7], vcc')
    a.I('s_waitcnt vmcnt(5)')
    a.I(f'v_and_b32 v{vKey}, 7, v{vDst}')
    a.I(f'v_bfe_u32 v{vTmp}, v{vDst}, 3, 5')
    a.I(f'v_lshl_or_b32 v{vKey}, v{vKey}, 5, v{vTmp}')
    a.I(f'v_lshlrev_b32 v{vKey}, 2, v{vKey}')
    a.I(f'ds_add_rtn_u32 v{vRank}, v{vKey}, v{vOne}')
    a.I('s_mov_b64 exec, s[6:7]')
    a.I('s_waitcnt lgkmcnt(0)')
    a.I('s_barrier')
    hist_prefix(a, vC, vS, vTot, vL16, 0, 1024)
    for i in range(4):
        a.I(f'v_lshl_or_b32 v{vC+i}, v{vC+i}, 16, v{vS+i}')
    a.I(f'v_cmp_gt_u32 vcc, {CHUNK}, v0')
    a.I('s_waitcnt lgkmcnt(0)')
    a.I('s_and_saveexec_b64 s[6:7], vcc')
    a.I(f'ds_read_b32 v{vTmp}, v{vKey} offset:1024')
    a.I(f's_mul_i32 s5, s2, {CHUNK}')
    a.I(f'v_lshrrev_b32 v{vT2}, 8, v{vDst}')
    a.I('s_waitcnt vmcnt(1)')
    a.I(f'v_lshl_or_b32 v{vRec+2}, v{vT2}, 14, v{vSrc}')
    a.I(f'v_mov_b32 v{vRec+3}, v{vE}')
    a.I('s_waitcnt lgkmcnt(0)')
    a.I(f'v_add3_u32 v{vTmp}, v{vTmp}, v{vRank}, s5')
    a.I(f'v_mul_u32_u24 v{vTmp}, 48, v{vTmp}')
    st = cfg.get('k1st', '')
    a.I(f'buffer_store_dwordx4 {vr(vRec,4)}, v{vTmp}, s[{sWS}:{sWS+3}], 0 offen' + st)
    a.I(f'buffer_store_dwordx4 {vr(vEF,4)}, v{vTmp}, s[{sWS}:{sWS+3}], 0 offen offset:16' + st)
    a.I(f'buffer_store_dwordx4 {vr(vEF+4,4)}, v{vTmp}, s[{sWS}:{sWS+3}], 0 offen offset:32' + st)
    if cfg.get('k1extra'):
        a.I(f's_mov_b32 s{sWS+2}, 0x4000000')
        a.I('s_mov_b32 s5, 0x1000000')
        a.I(f'buffer_store_dwordx4 {vr(vRec,4)}, v{vTmp}, s[{sWS}:{sWS+3}], s5 offen' + st)
        a.I(f'buffer_store_dwordx4 {vr(vEF,4)}, v{vTmp}, s[{sWS}:{sWS+3}], s5 offen offset:16' + st)
        a.I(f'buffer_store_dwordx4 {vr(vEF+4,4)}, v{vTmp}, s[{sWS}:{sWS+3}], s5 offen offset:32' + st)
    a.I('s_mov_b64 exec, s[6:7]')
    a.I('s_cmp_eq_u32 s4, 0')
    a.I('s_cbranch_scc0 K1_NT')
    a.I('s_lshl_b32 s5, s2, 10')
    a.I(f's_add_u32 s5, s5, {TAB_OFF:#x}')
    a.I(f'buffer_store_dwordx4 {vr(vC,4)}, v{vL16}, s[{sWS}:{sWS+3}], s5 offen' + st)
    if cfg.get('stamps'):
        stamp(a, cfg, 1, 62, 64, 38)
    a.L('K1_NT')
    a.I('s_cmp_eq_u32 s4, 9')
    a.I('s_cbranch_scc1 K1_PS16')
    a.I('s_cmp_eq_u32 s4, 8')
    a.I('s_cbranch_scc0 K1_END')
    a.I('s_cmp_lt_u32 s2, 32')
    a.I('s_cbranch_scc1 K1_PSR')
    a.I('s_cmp_eq_u32 s2, 32')
    a.I('s_cbranch_scc0 K1_END')
    a.I(f'v_lshlrev_b32 v{vPrep}, 16, v{vPrep}')
    if scaled:
        a.I(f'v_mul_f32 v{vPrep}, {f2u(-LN2):#x}, v{vPrep}')
    a.I(f'buffer_store_dword v{vPrep}, v{vPrepAddr}, s[{sWS}:{sWS+3}], 0 offen')
    a.I('s_branch K1_END')
    a.L('K1_PSR')
    if scaled:
        a.I(f'v_lshlrev_b32 v{vPrep}, 16, v{vPrep}')
        a.I(f'v_mul_f32 v{vPrep}, {f2u(-LOG2E):#x}, v{vPrep}')
        a.I(f'v_cvt_pk_bf16_f32 v{vPrep}, v{vPrep}, v{vPrep}')
    a.L('K1_PS16')
    a.I(f'buffer_store_short v{vPrep}, v{vPrepAddr}, s[{sWS}:{sWS+3}], 0 offen')
    a.L('K1_END')
    a.I('s_endpgm')
    return name, 40, 72


def kd(a, name, nv, ns):
    a(f""".amdhsa_kernel {name}
  .amdhsa_next_free_vgpr {nv}
  .amdhsa_next_free_sgpr {ns}
  .amdhsa_accum_offset {(nv + 3) // 4 * 4}
  .amdhsa_group_segment_fixed_size 0
  .amdhsa_kernarg_size 88
  .amdhsa_user_sgpr_count 2
  .amdhsa_user_sgpr_kernarg_segment_ptr 1
  .amdhsa_system_sgpr_workgroup_id_x 1
  .amdhsa_float_denorm_mode_32 3
.end_amdhsa_kernel""")


HIST = 0
BASE = 1024
MAXR = 2048
ZERO16 = 2064
WL = 4096
CAP = 1024
ENT = 8192
YS = 12800
EFS = 21248
AGG = 55040
AGG_STRIDE = 272
K2_LDS = AGG + 160 * AGG_STRIDE


def gen_k2(a, cfg):
    name = 'main_kernel'
    scaled = cfg.get('scaled', False)
    NPF1 = cfg.get('npf1', 6)
    NPF2 = cfg.get('npf2', 0)
    a(f'.globl {name}\n.p2align 8\n.type {name},@function\n{name}:')
    sX, sWS, sOUT = 8, 12, 16
    sW, sB, sKEY, sNW, sRND, sMAXR = 4, 5, 6, 7, 20, 21
    sSEG0, sN, sCNT, sXO, sREM = 22, 23, 24, 25, 26
    sT0, sT1, sT2 = 27, 28, 29
    sMLO, sMHI = 30, 32
    sCL = 34
    sSAVE = 36
    sV0, sV1 = 38, 40
    sE = 48
    sDBG = 64
    vLane, vL16, vL15 = 1, 2, 3
    vTmp = 4
    vEntA, vYA, vEfA = 12, 13, 14
    vAL_A, vAH_A = 15, 16
    vENTc, vENTn = 17, 18
    vWc, vWn = 20, 22
    vYraw = 24
    vYf = 26
    vWf = 30
    vHS = 34
    vT = 38
    vR = 42
    vAL, vAH = 52, 56
    vACC = 64
    vXR = 104
    vTP = 120
    vH0, vH1 = 136, 152
    vBR = 168
    vCG = 184
    vBM = 200
    NV = 232
    vRecA, vRecB = 104, 116
    vP = 136

    a.I('s_cmp_ge_u32 s2, 256')
    a.I('s_cbranch_scc1 K2_END')
    a.I('s_load_dwordx2 s[44:45], s[0:1], 0')
    a.I('s_load_dwordx2 s[46:47], s[0:1], 64')
    a.I('s_load_dwordx2 s[42:43], s[0:1], 80')
    a.I(f'v_and_b32 v{vLane}, 63, v0')
    a.I(f'v_lshrrev_b32 v{vTmp}, 6, v0')
    a.I(f'v_lshlrev_b32 v{vL16}, 4, v{vLane}')
    a.I(f'v_readfirstlane_b32 s{sW}, v{vTmp}')
    a.I(f'v_and_b32 v{vL15}, 15, v{vLane}')
    a.I(f's_mov_b32 s{sB}, s2')
    a.I(f's_and_b32 s{sKEY}, s2, 7')
    a.I(f's_lshl_b32 s{sKEY}, s{sKEY}, 5')
    a.I(f's_lshr_b32 s{sT0}, s2, 3')
    a.I(f's_or_b32 s{sKEY}, s{sKEY}, s{sT0}')
    a.I(f'v_mov_b32 v{vTmp+1}, 0')
    a.I(f'v_lshlrev_b32 v{vTmp+2}, 2, v0')
    a.I('v_cmp_gt_u32 vcc, 256, v0')
    a.I(f's_and_saveexec_b64 s[{sSAVE}:{sSAVE+1}], vcc')
    a.I('s_cbranch_execz K2_Z0')
    a.I(f'ds_write_b32 v{vTmp+2}, v{vTmp+1} offset:{HIST}')
    a.L('K2_Z0')
    a.I(f's_mov_b64 exec, s[{sSAVE}:{sSAVE+1}]')
    a.I(f'v_subrev_u32 v{vTmp+3}, 256, v0')
    a.I(f'v_cmp_gt_u32 vcc, 8, v{vTmp+3}')
    a.I(f's_and_saveexec_b64 s[{sSAVE}:{sSAVE+1}], vcc')
    a.I('s_cbranch_execz K2_Z1')
    a.I(f'ds_write_b32 v{vTmp+2}, v{vTmp+1} offset:{MAXR-1024}')
    a.L('K2_Z1')
    a.I(f's_mov_b64 exec, s[{sSAVE}:{sSAVE+1}]')
    for i in range(40):
        a.I(f'v_mov_b32 v{vACC+i}, 0')
    a.I(f's_mov_b32 s{sMLO}, 0x0f0f0f0f')
    a.I(f's_mov_b32 s{sMLO+1}, 0x0f0f0f0f')
    a.I(f's_mov_b32 s{sMHI}, 0xf0f0f0f0')
    a.I(f's_mov_b32 s{sMHI+1}, 0xf0f0f0f0')
    a.I(f's_mov_b32 s{sCL}, {f2u(-LOG2E):#x}')
    a.I(f's_mov_b32 s{sCL+1}, {f2u(-LOG2E):#x}')
    a.I(f's_mov_b32 s{sRND}, 0')
    a.I('s_waitcnt lgkmcnt(0)')
    srd(a, sX, 44, X_BYTES)
    srd(a, sWS, 42, WS_SIZE if not cfg.get('stamps') else STAMP_OFF + 0x10000)
    srd(a, sOUT, 46, X_BYTES)
    if cfg.get('stamps'):
        cfg['stamp_srd'] = sWS
        a.I(f's_lshl_b32 s{sDBG}, s2, 6')
        a.I(f's_add_u32 s{sDBG}, s{sDBG}, {STAMP_OFF + 0x8000:#x}')
        a.I(f's_cmp_eq_u32 s{sW}, 0')
        a.I('s_cbranch_scc0 K2_ST0')
        stamp(a, cfg, 0, sDBG, 66, vTmp+4)
        a.L('K2_ST0')
    vChunk, vTab, vCnt, vInc, vExc, vRb = vP, vP+1, vP+2, vP+3, vP+4, vP+5
    a.I(f'v_and_b32 v{vChunk}, 31, v{vLane}')
    a.I(f's_lshl_b32 s{sT0}, s{sW}, 5')
    a.I(f'v_add_u32 v{vChunk}, s{sT0}, v{vChunk}')
    a.I(f'v_lshlrev_b32 v{vTmp}, 10, v{vChunk}')
    a.I(f's_lshl_b32 s{sT0}, s{sKEY}, 2')
    a.I(f's_add_u32 s{sT0}, s{sT0}, {TAB_OFF:#x}')
    a.I(f'buffer_load_dword v{vTab}, v{vTmp}, s[{sWS}:{sWS+3}], s{sT0} offen')
    a.I('s_barrier')
    a.I('s_waitcnt vmcnt(0)')
    vCntP, vExcP, vRbP = vTmp+1, vTmp+2, vTmp+3
    a.I(f'v_lshrrev_b32 v{vCntP}, 16, v{vTab}')
    a.I(f'v_and_b32 v{vRbP}, 0xffff, v{vTab}')
    a.I(f'v_mov_b32 v{vInc}, v{vCntP}')
    a.I(f'v_mad_u32_u24 v{vRbP}, v{vChunk}, v{vOneConst(a, vTmp+4, CHUNK)}, v{vRbP}')
    scan_dpp(a, vInc, False)
    a.I('s_nop 0')
    a.I(f'v_sub_u32 v{vExcP}, v{vInc}, v{vCntP}')
    a.I(f'v_readlane_b32 s{sNW}, v{vInc}, 31')
    a.I('s_nop 3')
    a.I(f's_add_u32 s{sT0}, s{sNW}, 127')
    a.I(f's_lshr_b32 s{sT0}, s{sT0}, 7')
    a.I(f'v_mov_b32 v{vTmp}, s{sT0}')
    a.I(f'v_mov_b32 v{vTmp+4}, {MAXR}')
    a.I(f'ds_max_u32 v{vTmp+4}, v{vTmp}')
    a.L('K2_ROUND')
    vK, vHi, vAd, vVal = vP, vP+1, vP+2, vP+3
    a.I(f's_lshl_b32 s{sT0}, s{sRND}, 7')
    a.I(f'v_sub_u32 v{vK}, s{sT0}, v{vExcP}')
    a.I(f'v_add_u32 v{vHi}, 128, v{vK}')
    a.I(f'v_min_i32 v{vHi}, v{vHi}, v{vCntP}')
    a.I(f'v_max_i32 v{vK}, 0, v{vK}')
    a.I(f'v_lshrrev_b32 v{vTmp}, 5, v{vLane}')
    a.I(f'v_add_u32 v{vK}, v{vK}, v{vTmp}')
    a.I(f'v_add_u32 v{vVal}, v{vRbP}, v{vK}')
    a.I(f'v_add_u32 v{vAd}, v{vExcP}, v{vK}')
    a.I(f'v_subrev_u32 v{vAd}, s{sT0}, v{vAd}')
    a.I(f's_lshl_b32 s{sT1}, s{sW}, 9')
    a.I(f's_add_u32 s{sT1}, s{sT1}, {WL}')
    a.I(f'v_lshl_add_u32 v{vAd}, v{vAd}, 2, s{sT1}')
    a.L('K2_EXP')
    a.I(f'v_cmp_lt_i32 vcc, v{vK}, v{vHi}')
    a.I('s_and_b64 exec, exec, vcc')
    a.I('s_cbranch_scc0 K2_EXPD')
    a.I(f'ds_write_b32 v{vAd}, v{vVal}')
    a.I(f'v_add_u32 v{vK}, 2, v{vK}')
    a.I(f'v_add_u32 v{vVal}, 2, v{vVal}')
    a.I(f'v_add_u32 v{vAd}, 8, v{vAd}')
    a.I('s_branch K2_EXP')
    a.L('K2_EXPD')
    a.I('s_mov_b64 exec, -1')
    a.I(f'v_lshl_add_u32 v{vTmp}, v{vLane}, 2, s{sT1}')
    a.I('s_waitcnt lgkmcnt(0)')
    a.I(f'ds_read_b32 v{vP}, v{vTmp}')
    a.I(f'ds_read_b32 v{vP+1}, v{vTmp} offset:256')
    a.I(f's_sub_i32 s{sT2}, s{sNW}, s{sT0}')
    a.I(f'v_cmp_gt_i32 s[{sV0}:{sV0+1}], s{sT2}, v{vLane}')
    a.I(f'v_add_u32 v{vTmp}, 64, v{vLane}')
    a.I(f'v_cmp_gt_i32 s[{sV1}:{sV1+1}], s{sT2}, v{vTmp}')
    a.I(f'v_mov_b32 v{vTmp}, 0x7ffffff0')
    a.I('s_waitcnt lgkmcnt(0)')
    a.I(f'v_mul_u32_u24 v{vP}, 48, v{vP}')
    a.I(f'v_mul_u32_u24 v{vP+1}, 48, v{vP+1}')
    a.I(f'v_cndmask_b32 v{vP}, v{vTmp}, v{vP}, s[{sV0}:{sV0+1}]')
    a.I(f'v_cndmask_b32 v{vP+1}, v{vTmp}, v{vP+1}, s[{sV1}:{sV1+1}]')
    for rec, vo in ((vRecA, vP), (vRecB, vP+1)):
        for q in range(3):
            a.I(f'buffer_load_dwordx4 {vr(rec+4*q,4)}, v{vo}, s[{sWS}:{sWS+3}], 0 offen offset:{16*q}')
    a.I(f'v_add_u32 v{vTmp}, {BRAD_OFF:#x}, v{vL16}')
    for q in range(4):
        a.I(f'buffer_load_dwordx4 {vr(vBR+4*q,4)}, v{vTmp}, s[{sWS}:{sWS+3}], 0 offen offset:{1024*q}')
    a.I(f'v_and_b32 v{vTmp}, 3, v{vLane}')
    a.I(f'v_lshlrev_b32 v{vTmp}, 6, v{vTmp}')
    a.I(f'v_add_u32 v{vTmp}, {CGW_OFF:#x}, v{vTmp}')
    for q in range(4):
        a.I(f'buffer_load_dwordx4 {vr(vCG+4*q,4)}, v{vTmp}, s[{sWS}:{sWS+3}], 0 offen offset:{16*q}')
    nextra = 8
    if NPF2 > 0:
        a.I(f's_lshr_b32 s{sT0}, s{sB}, 3')
        a.I(f's_add_u32 s{sT1}, s{sW}, {NPF1}')
        a.I(f's_lshl_b32 s{sT1}, s{sT1}, 5')
        a.I(f's_add_u32 s{sT0}, s{sT0}, s{sT1}')
        a.I(f's_lshl_b32 s{sT0}, s{sT0}, 13')
        a.I(f's_cmp_lt_u32 s{sW}, {NPF2}')
        a.I(f's_cselect_b32 s{sT0}, s{sT0}, 0x7ff00000')
        a.I(f'v_lshlrev_b32 v{vTmp}, 7, v{vLane}')
        a.I(f'v_add_u32 v{vTmp}, s{sT0}, v{vTmp}')
        a.I(f'buffer_load_dword v{vTmp+5}, v{vTmp}, s[{sX}:{sX+3}], 0 offen')
        nextra += 1
    a.I(f's_waitcnt vmcnt({nextra})')
    if cfg.get('stamps'):
        a.I(f's_cmp_eq_u32 s{sW}, 0')
        a.I('s_cbranch_scc0 K2_ST1')
        stamp(a, cfg, 1, sDBG, 66, vP+20)
        a.L('K2_ST1')
    vOne = vP+2
    a.I(f'v_mov_b32 v{vOne}, 1')
    vBin = (vP+4, vP+5); vEnt = (vP+6, vP+7); vRank = (vP+8, vP+9)
    for i, rec in enumerate((vRecA, vRecB)):
        w0 = rec + 2
        a.I(f'v_and_b32 v{vTmp}, 0x3fff, v{w0}')
        a.I(f'v_bfe_u32 v{vP+10}, v{w0}, 14, 3')
        a.I(f'v_mul_u32_u24 v{vP+11}, 838, v{vTmp}')
        a.I(f'v_lshrrev_b32 v{vP+11}, 18, v{vP+11}')
        a.I(f'v_lshl_add_u32 v{vP+11}, v{vP+10}, 5, v{vP+11}')
        a.I(f'v_lshlrev_b32 v{vBin[i]}, 2, v{vP+11}')
        a.I(f'v_bfe_u32 v{vP+10}, v{w0}, 17, 3')
        a.I(f'v_lshlrev_b32 v{vP+10}, 3, v{vP+10}')
        a.I(f'v_lshl_or_b32 v{vEnt[i]}, v{vTmp}, 10, v{vP+10}')
    for i, m in enumerate((sV0, sV1)):
        a.I(f's_mov_b64 exec, s[{m}:{m+1}]')
        a.I(f's_cbranch_execz K2_H{i}')
        a.I(f'ds_add_rtn_u32 v{vRank[i]}, v{vBin[i]}, v{vOne} offset:{HIST}')
        a.L(f'K2_H{i}')
    a.I('s_mov_b64 exec, -1')
    a.I('s_waitcnt lgkmcnt(0)')
    a.I('s_barrier')
    vC, vS, vTot = vP+12, vP+16, vP+20
    a.I(f'v_mov_b32 v{vTmp}, {MAXR}')
    a.I(f'ds_read_b32 v{vTmp+5}, v{vTmp}')
    hist_prefix(a, vC, vS, vTot, vL16, HIST, BASE)
    a.I(f'v_readfirstlane_b32 s{sMAXR}, v{vTmp+5}')
    a.I(f's_lshl_b32 s{sT0}, s{sW}, 3')
    a.I(f'v_readlane_b32 s{sSEG0}, v{vS}, s{sT0}')
    a.I(f's_add_u32 s{sT0}, s{sT0}, 8')
    a.I(f's_min_u32 s{sT0}, s{sT0}, 63')
    a.I(f'v_readlane_b32 s{sT1}, v{vS}, s{sT0}')
    a.I(f'v_readlane_b32 s{sT2}, v{vTot}, 63')
    a.I('s_nop 3')
    a.I(f's_cmp_eq_u32 s{sW}, 7')
    a.I(f's_cselect_b32 s{sT1}, s{sT2}, s{sT1}')
    a.I(f's_sub_u32 s{sN}, s{sT1}, s{sSEG0}')
    a.I('s_waitcnt lgkmcnt(0)')
    a.I(f'ds_read_b32 v{vP+10}, v{vBin[0]} offset:{BASE}')
    a.I(f'ds_read_b32 v{vP+11}, v{vBin[1]} offset:{BASE}')
    a.I('s_waitcnt lgkmcnt(0)')
    for i, (m, rec) in enumerate(((sV0, vRecA), (sV1, vRecB))):
        a.I(f's_mov_b64 exec, s[{m}:{m+1}]')
        a.I(f's_cbranch_execz K2_S{i}')
        a.I(f'v_add_u32 v{vRank[i]}, v{vRank[i]}, v{vP+10+i}')
        a.I(f'v_lshlrev_b32 v{vTmp}, 2, v{vRank[i]}')
        a.I(f'ds_write_b32 v{vTmp}, v{vEnt[i]} offset:{ENT}')
        a.I(f'v_lshlrev_b32 v{vTmp+4}, 3, v{vRank[i]}')
        a.I(f'ds_write_b64 v{vTmp+4}, {vr(rec,2)} offset:{YS}')
        a.I(f'v_lshlrev_b32 v{vTmp+5}, 5, v{vRank[i]}')
        a.I(f'ds_write_b128 v{vTmp+5}, {vr(rec+4,4)} offset:{EFS}')
        a.I(f'ds_write_b128 v{vTmp+5}, {vr(rec+8,4)} offset:{EFS+16}')
        a.L(f'K2_S{i}')
    a.I('s_mov_b64 exec, -1')
    a.I('s_waitcnt lgkmcnt(0)')
    a.I('s_barrier')
    a.I(f'v_mov_b32 v{vTmp}, 0')
    a.I(f'v_lshlrev_b32 v{vTmp+4}, 2, v0')
    a.I('v_cmp_gt_u32 vcc, 256, v0')
    a.I(f's_and_saveexec_b64 s[{sSAVE}:{sSAVE+1}], vcc')
    a.I('s_cbranch_execz K2_Z2')
    a.I(f'ds_write_b32 v{vTmp+4}, v{vTmp} offset:{HIST}')
    a.L('K2_Z2')
    a.I(f's_mov_b64 exec, s[{sSAVE}:{sSAVE+1}]')
    if cfg.get('stamps'):
        a.I(f's_cmp_eq_u32 s{sW}, 0')
        a.I('s_cbranch_scc0 K2_ST2')
        stamp(a, cfg, 2, sDBG, 66, vP+22)
        a.L('K2_ST2')

    def w_compute(dst):
        ops = []
        ops.append(f'v_lshlrev_b32 v{vYf}, 16, v{vYraw}')
        ops.append(f'v_and_b32 v{vYf+1}, 0xffff0000, v{vYraw}')
        ops.append(f'v_lshlrev_b32 v{vYf+2}, 16, v{vYraw+1}')
        ops.append(f'v_and_b32 v{vYf+3}, 0xffff0000, v{vYraw+1}')
        for f in range(4):
            yp = vYf + (f & 2)
            s = f & 1
            for h in range(2):
                cg = vCG + 4*f + 2*h
                if f == 0:
                    ops.append(f'v_pk_mul_f32 {vr(vWf+2*h,2)}, {vr(cg,2)}, {vr(yp,2)} op_sel:[0,{s}] op_sel_hi:[1,{s}]')
                else:
                    ops.append(f'v_pk_fma_f32 {vr(vWf+2*h,2)}, {vr(cg,2)}, {vr(yp,2)}, {vr(vWf+2*h,2)} op_sel:[0,{s},0] op_sel_hi:[1,{s},1]')
        ops.append(f'v_cvt_pk_bf16_f32 v{dst}, v{vWf}, v{vWf+1}')
        ops.append(f'v_cvt_pk_bf16_f32 v{dst+1}, v{vWf+2}, v{vWf+3}')
        return ops

    def h_mfma():
        ops = []
        for p, H in ((0, vH0), (1, vH1)):
            ops.append(f'v_mfma_f32_32x32x16_bf16 {vr(H,16)}, {vr(vAL,4)}, {vr(vBR+8*p,4)}, 0')
            ops.append(f'v_mfma_f32_32x32x16_bf16 {vr(H,16)}, {vr(vAH,4)}, {vr(vBR+8*p+4,4)}, {vr(H,16)}')
        return ops

    def hpair(q):
        if q == 7:
            return vHS, vHS + 2
        qq = q % 8
        return vH0 + 2*qq, vH1 + 2*qq

    def z_ops(q):
        h0, h1 = hpair(q)
        if scaled:
            return []
        return [f'v_pk_mul_f32 {vr(vT,2)}, {vr(h0,2)}, s[{sCL}:{sCL+1}]',
                f'v_pk_mul_f32 {vr(vT+2,2)}, {vr(h1,2)}, s[{sCL}:{sCL+1}]']

    def exp_ops(q):
        h0, h1 = hpair(q)
        if scaled:
            return [f'v_exp_f32 v{vT}, v{h0}', f'v_exp_f32 v{vT+1}, v{h0+1}',
                    f'v_exp_f32 v{vT+2}, v{h1}', f'v_exp_f32 v{vT+3}, v{h1+1}']
        return [f'v_exp_f32 v{vT+i}, v{vT+i}' for i in range(4)]

    add_ops = [f'v_pk_add_f32 {vr(vT,2)}, {vr(vT,2)}, 1.0 op_sel_hi:[1,0]',
               f'v_pk_add_f32 {vr(vT+2,2)}, {vr(vT+2,2)}, 1.0 op_sel_hi:[1,0]']
    rcp_ops = [f'v_rcp_f32 v{vT+i}, v{vT+i}' for i in range(4)]

    def r_ops(q):
        h0, h1 = hpair(q)
        rb = vR + 4*(q % 2)
        return [f'v_pk_mul_f32 {vr(rb,2)}, {vr(h0,2)}, {vr(vT,2)}',
                f'v_pk_mul_f32 {vr(rb+2,2)}, {vr(h1,2)}, {vr(vT+2,2)}']

    a.I(f'v_add_u32 v{vEntA}, s{sSEG0}, v{vL15}')
    a.I(f'v_lshlrev_b32 v{vEntA}, 2, v{vEntA}')
    a.I(f'v_lshrrev_b32 v{vTmp}, 2, v{vLane}')
    a.I(f'v_add_u32 v{vYA}, s{sSEG0}, v{vTmp}')
    a.I(f'v_lshlrev_b32 v{vYA}, 3, v{vYA}')
    a.I(f'v_bfe_u32 v{vTmp}, v{vLane}, 3, 2')
    a.I(f'v_and_b32 v{vTmp+4}, 3, v{vLane}')
    a.I(f'v_lshl_add_u32 v{vTmp}, v{vTmp}, 2, v{vTmp+4}')
    a.I(f'v_add_u32 v{vTmp}, s{sSEG0}, v{vTmp}')
    a.I(f'v_lshlrev_b32 v{vTmp}, 5, v{vTmp}')
    a.I(f'v_lshrrev_b32 v{vTmp+4}, 5, v{vLane}')
    a.I(f'v_lshl_add_u32 v{vEfA}, v{vTmp+4}, 4, v{vTmp}')
    a.I(f'v_add_u32 v{vEfA}, {EFS}, v{vEfA}')
    a.I(f'v_mov_b32 v{vTmp}, {ZERO16}')
    a.I(f'v_cndmask_b32 v{vAL_A}, v{vTmp}, v{vEfA}, s[{sMLO}:{sMLO+1}]')
    a.I(f'v_cndmask_b32 v{vAH_A}, v{vTmp}, v{vEfA}, s[{sMHI}:{sMHI+1}]')
    a.I(f'ds_read_b32 v{vENTc}, v{vEntA} offset:{ENT}')
    a.I(f'ds_read_b64 {vr(vYraw,2)}, v{vYA} offset:{YS}')
    a.I(f'ds_read_b128 {vr(vAL,4)}, v{vAL_A}')
    a.I(f'ds_read_b128 {vr(vAH,4)}, v{vAH_A}')
    a.I(f'v_cmp_gt_i32 vcc, s{sN}, v{vL15}')
    for i in range(8):
        a.I(f'v_mov_b32 v{vTP+8+i}, 0')
    for i in range(4):
        a.I(f'v_mov_b32 v{vR+4+i}, 0')
    a.I(f's_mov_b32 s{sE+15}, 0')
    a.I(f's_mov_b32 s{sCNT}, s{sN}')
    a.I(f's_sub_i32 s{sREM}, s{sN}, 16')
    a.I('s_waitcnt lgkmcnt(3)')
    a.I(f'v_cndmask_b32 v{vENTc}, 0, v{vENTc}, vcc')
    a.I('s_nop 0')
    for j in range(5):
        a.I(f'v_readlane_b32 s{sE+j}, v{vENTc}, {j}')
    a.I('s_nop 3')
    for j in range(4):
        a.I(f's_and_b32 s{sXO}, s{sE+j}, 0xfffffc00')
        a.I(f'buffer_load_dwordx4 {vr(vXR+4*j,4)}, v{vL16}, s[{sX}:{sX+3}], s{sXO} offen')
    a.I(f's_and_b32 s{sXO}, s{sE+4}, 0xfffffc00')
    a.I('s_waitcnt vmcnt(4) lgkmcnt(0)')
    for op in h_mfma():
        a.I(op)
    for op in w_compute(vWc):
        a.I(op)
    a.I('s_nop 7')
    for op in z_ops(0) + exp_ops(0):
        a.I(op)
    a.I('s_nop 0')
    for op in add_ops + rcp_ops:
        a.I(op)
    a.I('s_nop 0')
    for op in r_ops(0) + z_ops(1):
        a.I(op)

    a.L('K2_LOOP')
    wn_ops = w_compute(vWn)
    for j in range(16):
        a(f'    ; ---- slot {j}')
        if j == 0:
            a.I(f'ds_read_b32 v{vENTn}, v{vEntA} offset:{ENT+64}')
            a.I(f'ds_read_b64 {vr(vYraw,2)}, v{vYA} offset:{YS+128}')
        a.I('s_waitcnt vmcnt(3)')
        xr = vXR + 4*(j % 4)
        tp = vTP + 8*(j % 2)
        a.I(f'v_mfma_f32_4x4x4_16b_bf16 {vr(tp,4)}, {vr(vWc,2)}, {vr(xr,2)}, 0 cbsz:4 abid:{j}')
        a.I(f'v_mfma_f32_4x4x4_16b_bf16 {vr(tp+4,4)}, {vr(vWc,2)}, {vr(xr+2,2)}, 0 cbsz:4 abid:{j}')
        a.I(f'buffer_load_dwordx4 {vr(xr,4)}, v{vL16}, s[{sX}:{sX+3}], s{sXO} offen' + cfg.get('xld', ''))
        q = j // 2 + 1 if j % 2 == 0 else (j + 1) // 2
        for op in (exp_ops(q) if j % 2 == 0 else rcp_ops):
            a.I(op)
        src_ent = vENTc if j + 5 < 16 else vENTn
        a.I(f'v_readlane_b32 s{sE+(j+5)%16}, v{src_ent}, {(j+5)%16}')
        jm = (j - 1) % 16
        tpm = vTP + 8*((j - 1) % 2)
        rb = vR + 4*((((j - 1) // 2)) % 2)
        sel = (j - 1) & 1
        a.I(f's_set_gpr_idx_on s{sE+jm}, gpr_idx(SRC2,DST)')
        for p in range(2):
            for h in range(2):
                acc = vACC + 4*p + 2*h
                a.I(f'v_pk_fma_f32 {vr(acc,2)}, {vr(tpm+4*p+2*h,2)}, {vr(rb+2*p,2)}, {vr(acc,2)} op_sel:[0,{sel},0] op_sel_hi:[1,{sel},1]')
        a.I('s_set_gpr_idx_off')
        a.I(f's_sub_u32 s{sCNT}, s{sCNT}, 1')
        a.I('s_cbranch_scc1 K2_EXIT')
        a.I(f's_and_b32 s{sXO}, s{sE+(j+5)%16}, 0xfffffc00')
        if j % 2 == 0:
            for op in add_ops:
                a.I(op)
        else:
            for op in r_ops(q) + z_ops(q + 1):
                a.I(op)
        if j == 1:
            a.I(f'v_add_u32 v{vEfA}, 512, v{vEfA}')
            a.I(f'v_mov_b32 v{vTmp}, {ZERO16}')
            a.I(f'v_cndmask_b32 v{vAL_A}, v{vTmp}, v{vEfA}, s[{sMLO}:{sMLO+1}]')
            a.I(f'v_cndmask_b32 v{vAH_A}, v{vTmp}, v{vEfA}, s[{sMHI}:{sMHI+1}]')
            a.I(f'ds_read_b128 {vr(vAL,4)}, v{vAL_A}')
            a.I(f'ds_read_b128 {vr(vAH,4)}, v{vAH_A}')
        if j == 3:
            a.I('s_waitcnt lgkmcnt(0)')
            a.I(f'v_cmp_gt_i32 vcc, s{sREM}, v{vL15}')
            for op in wn_ops[0:4]:
                a.I(op)
            a.I(f'v_cndmask_b32 v{vENTn}, 0, v{vENTn}, vcc')
        if j == 4:
            for op in wn_ops[4:8]:
                a.I(op)
        if j == 5:
            for op in wn_ops[8:14]:
                a.I(op)
        if j == 9:
            a.I(f'v_pk_mov_b32 {vr(vHS,2)}, {vr(vH0+14,2)}, {vr(vH0+14,2)} op_sel:[0,1]')
            a.I(f'v_pk_mov_b32 {vr(vHS+2,2)}, {vr(vH1+14,2)}, {vr(vH1+14,2)} op_sel:[0,1]')
        if j == 11:
            for op in h_mfma():
                a.I(op)
        if j == 15:
            a.I(f'v_mov_b32 v{vWc}, v{vWn}')
            a.I(f'v_mov_b32 v{vWc+1}, v{vWn+1}')
            a.I(f'v_mov_b32 v{vENTc}, v{vENTn}')
            a.I(f'v_add_u32 v{vEntA}, 64, v{vEntA}')
            a.I(f'v_add_u32 v{vYA}, 128, v{vYA}')
            a.I(f's_sub_i32 s{sREM}, s{sREM}, 16')
            a.I('s_branch K2_LOOP')
    a.L('K2_EXIT')
    a.I('s_waitcnt vmcnt(0) lgkmcnt(0)')
    a.I(f's_add_u32 s{sRND}, s{sRND}, 1')
    a.I(f's_cmp_lt_u32 s{sRND}, s{sMAXR}')
    a.I('s_cbranch_scc0 K2_TAIL')
    a.I('s_barrier')
    a.I('s_branch K2_ROUND')

    a.L('K2_TAIL')
    if cfg.get('stamps'):
        a.I(f's_cmp_eq_u32 s{sW}, 0')
        a.I('s_cbranch_scc0 K2_ST3')
        stamp(a, cfg, 3, sDBG, 66, vXR)
        a.L('K2_ST3')
    a.I(f's_and_b32 s{sT0}, s{sW}, 3')
    a.I(f's_lshl_b32 s{sT0}, s{sT0}, 13')
    a.I(f's_add_u32 s{sT0}, s{sT0}, {BMIX_OFF:#x}')
    a.I(f's_add_u32 s{sT1}, s{sT0}, 4096')
    for t in range(2):
        for ks in range(4):
            a.I(f'buffer_load_dwordx4 {vr(vBM+16*t+4*ks,4)}, v{vL16}, s[{sWS}:{sWS+3}], s{sT0 if t == 0 else sT1} offen offset:{1024*ks}')
    a.I(f's_mul_i32 s{sT2}, s{sW}, {4*AGG_STRIDE}')
    a.I(f's_add_u32 s{sT2}, s{sT2}, {AGG}')
    a.I(f'v_lshl_add_u32 v{vTmp}, v{vLane}, 2, s{sT2}')
    for s in range(5):
        for o in range(4):
            t = vXR + s * 4 + o
            a.I(f'v_cvt_pk_bf16_f32 v{t}, v{vACC+8*s+o}, v{vACC+8*s+4+o}')
            a.I(f'ds_write_b32 v{vTmp}, v{t} offset:{(32*s + o) * AGG_STRIDE}')
    a.I('s_waitcnt lgkmcnt(0)')
    a.I('s_barrier')
    a.I(f'v_mul_u32_u24 v{vTmp}, {AGG_STRIDE}, v{vL15}')
    a.I(f'v_lshrrev_b32 v{vTmp+4}, 4, v{vLane}')
    a.I(f'v_lshl_add_u32 v{vTmp}, v{vTmp+4}, 4, v{vTmp}')
    a.I(f's_lshr_b32 s{sT0}, s{sW}, 2')
    a.I(f's_mul_i32 s{sT1}, s{sT0}, {5*16*AGG_STRIDE}')
    a.I(f's_add_u32 s{sT1}, s{sT1}, {AGG}')
    a.I(f'v_add_u32 v{vTmp}, s{sT1}, v{vTmp}')
    a.I(f's_mul_i32 s{sT1}, s{sT0}, 20')
    a.I(f'v_add_u32 v{vTmp+4}, s{sT1}, v{vTmp+4}')
    a.I(f'v_lshlrev_b32 v{vTmp+4}, 18, v{vTmp+4}')
    a.I(f's_lshl_b32 s{sT1}, s{sB}, 10')
    a.I(f's_and_b32 s{sT2}, s{sW}, 3')
    a.I(f's_lshl_b32 s{sT2}, s{sT2}, 8')
    a.I(f's_add_u32 s{sT1}, s{sT1}, s{sT2}')
    a.I(f'v_lshl_add_u32 v{vTmp+5}, v{vL15}, 4, s{sT1}')
    a.I(f'v_add_u32 v{vTmp+4}, v{vTmp+4}, v{vTmp+5}')
    vA = (vH0, vH0 + 16 - 16 + 16)
    vA = (vH0, vH1)
    vD = (vTP, vTP + 8)
    vO = (vXR, vXR + 4, vXR + 8, vXR + 12)
    def a_reads(tt):
        for ks in range(4):
            a.I(f'ds_read_b128 {vr(vA[tt%2]+4*ks,4)}, v{vTmp} offset:{tt*16*AGG_STRIDE + 64*ks}')
    a_reads(0)
    a.I('s_waitcnt vmcnt(0)')
    for tt in range(5):
        if tt + 1 < 5:
            a_reads(tt + 1)
            a.I('s_waitcnt lgkmcnt(4)')
        else:
            a.I('s_waitcnt lgkmcnt(0)')
        D = vD[tt % 2]
        for ks in range(4):
            for t in range(2):
                c = '0' if ks == 0 else vr(D+4*t, 4)
                a.I(f'v_mfma_f32_16x16x32_bf16 {vr(D+4*t,4)}, {vr(vA[tt%2]+4*ks,4)}, {vr(vBM+16*t+4*ks,4)}, {c}')
        if tt > 0:
            Dp = vD[(tt - 1) % 2]; O = vO[(tt - 1) % 4]
            a.I(f'v_cvt_pk_bf16_f32 v{O}, v{Dp}, v{Dp+1}')
            a.I(f'v_cvt_pk_bf16_f32 v{O+1}, v{Dp+2}, v{Dp+3}')
            a.I(f'v_cvt_pk_bf16_f32 v{O+2}, v{Dp+4}, v{Dp+5}')
            a.I(f'v_cvt_pk_bf16_f32 v{O+3}, v{Dp+6}, v{Dp+7}')
            a.I(f'buffer_store_dwordx4 {vr(O,4)}, v{vTmp+4}, s[{sOUT}:{sOUT+3}], 0 offen' + cfg.get('ost', ''))
            if cfg.get('k2extra'):
                a.I(f's_mov_b32 s{sWS+2}, 0x4000000')
                a.I(f's_mov_b32 s{sT2}, 0x2000000')
                a.I(f'buffer_store_dwordx4 {vr(O,4)}, v{vTmp+4}, s[{sWS}:{sWS+3}], s{sT2} offen' + cfg.get('ost', ''))
            a.I(f'v_add_u32 v{vTmp+4}, {4 << 18:#x}, v{vTmp+4}')
    Dp = vD[4 % 2]; O = vO[0]
    a.I('s_nop 7')
    a.I(f'v_cvt_pk_bf16_f32 v{O}, v{Dp}, v{Dp+1}')
    a.I(f'v_cvt_pk_bf16_f32 v{O+1}, v{Dp+2}, v{Dp+3}')
    a.I(f'v_cvt_pk_bf16_f32 v{O+2}, v{Dp+4}, v{Dp+5}')
    a.I(f'v_cvt_pk_bf16_f32 v{O+3}, v{Dp+6}, v{Dp+7}')
    a.I(f'buffer_store_dwordx4 {vr(O,4)}, v{vTmp+4}, s[{sOUT}:{sOUT+3}], 0 offen' + cfg.get('ost', ''))
    if cfg.get('stamps'):
        a.I(f's_cmp_eq_u32 s{sW}, 0')
        a.I('s_cbranch_scc0 K2_ST4')
        a.I('s_waitcnt vmcnt(0)')
        stamp(a, cfg, 4, sDBG, 66, vH0)
        a.L('K2_ST4')
    a.L('K2_END')
    a.I('s_endpgm')
    return name, NV, 72


def vOneConst(a, v, val):
    a.I(f'v_mov_b32 v{v}, {val}')
    return v


def build(cfg):
    a = Asm()
    for _ in range(cfg.get('pre', 0)):
        a('; @launch kernel=nop_kernel grid=(1,1,1) block=(64,1,1) lds=0')
    a('; @launch kernel=bin_kernel grid=(256,1,1) block=(640,1,1) lds=2048')
    a(f'; @launch kernel=main_kernel grid=(256,1,1) block=(512,1,1) lds={K2_LDS}')
    for _ in range(cfg.get('post', 0)):
        a('; @launch kernel=nop_kernel grid=(1,1,1) block=(64,1,1) lds=0')
    a('.amdgcn_target "amdgcn-amd-amdhsa--gfx950"')
    a('.text')
    k1 = gen_k1(a, cfg)
    k2 = gen_k2(a, cfg)
    ks = [k1, k2]
    if cfg.get('pre', 0) or cfg.get('post', 0):
        a('.globl nop_kernel\n.p2align 8\n.type nop_kernel,@function\nnop_kernel:\n    s_endpgm')
        ks.append(('nop_kernel', 8, 16))
    a('.section .rodata,"a"')
    for k in ks:
        a('.p2align 6')
        kd(a, *k)
    return a.text()


if __name__ == '__main__':
    cfg = {}
    out = sys.argv[1] if len(sys.argv) > 1 else 'gather_scatter__tensor_product_equiv_tfn__graph.s'
    for kv in sys.argv[2:]:
        k, v = kv.split('=', 1)
        try:
            v = int(v)
        except ValueError:
            v = v.replace('_', ' ')
        cfg[k] = v
    open(out, 'w').write(build(cfg))
    print('wrote', out)
```

```python
import sys, struct

N_NODES = 10000
N_EDGES = 160000
CHUNK = 625
REC_OFF = 0
TAB_OFF = 0x800000
BRAD_OFF = 0x840000
CGW_OFF = 0x841000
BMIX_OFF = 0x842000
WS_SIZE = 0x850000
X_BYTES = N_NODES * 1024

def f2u(x):
    return struct.unpack('<I', struct.pack('<f', x))[0]
LOG2E = 1.4426950408889634
LN2 = 0.6931471805599453


class Asm:
    def __init__(self):
        self.lines = []
    def __call__(self, s=''):
        for ln in s.split('\n'):
            self.lines.append(ln)
    def I(self, s):
        self.lines.append('    ' + s)
    def L(self, name):
        self.lines.append(name + ':')
    def text(self):
        return '\n'.join(self.lines) + '\n'


def vr(base, n=1):
    return f'v{base}' if n == 1 else f'v[{base}:{base+n-1}]'
def sr(base, n=1):
    return f's{base}' if n == 1 else f's[{base}:{base+n-1}]'


def srd(a, dst, ptr, size):
    a.I(f's_mov_b32 s{dst}, s{ptr}')
    a.I(f's_and_b32 s{dst+1}, s{ptr+1}, 0xffff')
    a.I(f's_mov_b32 s{dst+2}, {size:#x}')
    a.I(f's_mov_b32 s{dst+3}, 0x20000')


def scan_dpp(a, v, full64):
    for sh in (1, 2, 4, 8):
        a.I('s_nop 1')
        a.I(f'v_add_u32_dpp v{v}, v{v}, v{v} row_shr:{sh} row_mask:0xf bank_mask:0xf')
    a.I('s_nop 1')
    a.I(f'v_add_u32_dpp v{v}, v{v}, v{v} row_bcast:15 row_mask:0xa bank_mask:0xf')
    if full64:
        a.I('s_nop 1')
        a.I(f'v_add_u32_dpp v{v}, v{v}, v{v} row_bcast:31 row_mask:0xc bank_mask:0xf')


def hist_prefix(a, vC, vS, vTot, vLane16, hist_off, base_off):
    a.I(f'ds_read_b128 {vr(vC,4)}, v{vLane16} offset:{hist_off}')
    a.I('s_waitcnt lgkmcnt(0)')
    a.I(f'v_add_u32 v{vS+2}, v{vC}, v{vC+1}')
    a.I(f'v_add_u32 v{vS+3}, v{vS+2}, v{vC+2}')
    a.I(f'v_add_u32 v{vTot}, v{vS+3}, v{vC+3}')
    a.I(f'v_mov_b32 v{vS}, v{vTot}')
    scan_dpp(a, vTot, True)
    a.I('s_nop 0')
    a.I(f'v_sub_u32 v{vS}, v{vTot}, v{vS}')
    a.I(f'v_add_u32 v{vS+1}, v{vS}, v{vC}')
    a.I(f'v_add_u32 v{vS+2}, v{vS}, v{vS+2}')
    a.I(f'v_add_u32 v{vS+3}, v{vS}, v{vS+3}')
    a.I(f'ds_write_b128 v{vLane16}, {vr(vS,4)} offset:{base_off}')


def stamp(a, cfg, idx, sdbg, tmp_s, tmp_v):
    if not cfg.get('stamps'):
        return
    a.I(f's_memrealtime s[{tmp_s}:{tmp_s+1}]')
    a.I('s_waitcnt lgkmcnt(0)')
    a.I(f'v_mov_b32 v{tmp_v}, s{tmp_s}')
    a.I(f'v_mov_b32 v{tmp_v+1}, s{sdbg}')
    a.I(f'buffer_store_dword v{tmp_v}, v{tmp_v+1}, s[{cfg["stamp_srd"]}:{cfg["stamp_srd"]+3}], 0 offen offset:{idx*4}')


STAMP_OFF = 0x900000


def gen_k1(a, cfg):
    name = 'bin_kernel'
    NPF = cfg.get('npf1', 6)
    scaled = cfg.get('scaled', False)
    a(f'.globl {name}\n.p2align 8\n.type {name},@function\n{name}:')
    sDST, sSRC, sY, sEF, sWS, sX, sPREP = 8, 12, 16, 20, 24, 28, 32
    a.I('s_cmp_ge_u32 s2, 256')
    a.I('s_cbranch_scc1 K1_END')
    a.I('s_load_dwordx4 s[44:47], s[0:1], 0')
    a.I('s_load_dwordx4 s[48:51], s[0:1], 16')
    a.I('s_load_dwordx4 s[52:55], s[0:1], 32')
    a.I('s_load_dwordx4 s[56:59], s[0:1], 48')
    a.I('s_load_dwordx2 s[60:61], s[0:1], 80')
    vT, vLane, vT4, vE, vOff = 0, 1, 2, 3, 4
    vDst, vSrc = 5, 6
    vRec = 8
    vY = 9
    vEF = 12
    vKey, vRank, vOne, vTmp = 20, 21, 22, 23
    vC, vS, vTot, vL16 = 24, 28, 32, 33
    vPrep, vPrepAddr, vPf = 34, 35, 36
    vT2 = 37
    a.I(f'v_and_b32 v{vLane}, 63, v0')
    a.I(f'v_lshlrev_b32 v{vT4}, 2, v0')
    a.I(f'v_lshrrev_b32 v{vTmp}, 6, v0')
    a.I(f'v_mov_b32 v{vOne}, 1')
    a.I(f'v_readfirstlane_b32 s4, v{vTmp}')
    a.I(f'v_mov_b32 v{vTmp}, 0')
    a.I(f'v_lshlrev_b32 v{vL16}, 4, v{vLane}')
    a.I('v_cmp_gt_u32 vcc, 256, v0')
    a.I('s_and_saveexec_b64 s[6:7], vcc')
    a.I('s_cbranch_execz K1_Z')
    a.I(f'ds_write_b32 v{vT4}, v{vTmp}')
    a.L('K1_Z')
    a.I('s_mov_b64 exec, s[6:7]')
    a.I(f's_mul_i32 s5, s2, {CHUNK}')
    a.I(f'v_add_u32 v{vE}, s5, v0')
    a.I('s_waitcnt lgkmcnt(0)')
    srd(a, sDST, 48, N_EDGES * 4)
    srd(a, sSRC, 46, N_EDGES * 4)
    srd(a, sY, 50, N_EDGES * 8)
    srd(a, sEF, 52, N_EDGES * 32)
    srd(a, sWS, 60, WS_SIZE if not cfg.get('stamps') else STAMP_OFF + 0x10000)
    srd(a, sX, 44, X_BYTES)
    if cfg.get('stamps'):
        cfg['stamp_srd'] = sWS
        a.I(f's_lshl_b32 s62, s2, 6')
        a.I(f's_add_u32 s62, s62, {STAMP_OFF:#x}')
        a.I('s_cmp_eq_u32 s4, 0')
        a.I('s_cbranch_scc0 K1_ST0')
        stamp(a, cfg, 0, 62, 64, 38)
        a.L('K1_ST0')
    a.I(f'v_mov_b32 v{vPrepAddr}, 0x7ffffff0')
    a.I('s_cmp_eq_u32 s4, 9')
    a.I('s_cbranch_scc1 K1_PA')
    a.I('s_cmp_eq_u32 s4, 8')
    a.I('s_cbranch_scc0 K1_PDONE')
    a.I('s_cmp_lt_u32 s2, 32')
    a.I('s_cbranch_scc1 K1_PB')
    a.I('s_cmp_eq_u32 s2, 32')
    a.I('s_cbranch_scc0 K1_PDONE')
    srd(a, sPREP, 56, 128)
    a.I(f'v_and_b32 v{vTmp}, 3, v{vLane}')
    a.I(f'v_lshlrev_b32 v{vTmp}, 4, v{vTmp}')
    a.I(f'v_and_b32 v{vT2}, 12, v{vLane}')
    a.I(f'v_add_u32 v{vTmp}, v{vTmp}, v{vT2}')
    a.I(f'v_lshrrev_b32 v{vT2}, 4, v{vLane}')
    a.I(f'v_add_lshl_u32 v{vTmp}, v{vTmp}, v{vT2}, 1')
    a.I(f'buffer_load_ushort v{vPrep}, v{vTmp}, s[{sPREP}:{sPREP+3}], 0 offen')
    a.I(f'v_lshlrev_b32 v{vPrepAddr}, 2, v{vLane}')
    a.I(f'v_add_u32 v{vPrepAddr}, {CGW_OFF:#x}, v{vPrepAddr}')
    a.I('s_branch K1_PDONE')
    a.L('K1_PB')
    srd(a, sPREP, 54, 16 * 128 * 2)
    a.I('s_lshl_b32 s5, s2, 6')
    a.I(f'v_add_u32 v{vPrepAddr}, s5, v{vLane}')
    a.I(f'v_lshrrev_b32 v{vTmp}, 3, v{vPrepAddr}')
    a.I(f'v_bfe_u32 v{vT2}, v{vTmp}, 5, 1')
    a.I(f'v_lshlrev_b32 v{vT2}, 3, v{vT2}')
    a.I(f'v_and_b32 v{vPf}, 7, v{vPrepAddr}')
    a.I(f'v_add_u32 v{vT2}, v{vT2}, v{vPf}')
    a.I(f'v_lshlrev_b32 v{vT2}, 7, v{vT2}')
    a.I(f'v_and_b32 v{vPf}, 31, v{vTmp}')
    a.I(f'v_lshl_add_u32 v{vT2}, v{vPf}, 1, v{vT2}')
    a.I(f'v_bfe_u32 v{vPf}, v{vTmp}, 6, 1')
    a.I(f'v_lshl_add_u32 v{vT2}, v{vPf}, 6, v{vT2}')
    a.I(f'v_bfe_u32 v{vPf}, v{vTmp}, 7, 1')
    a.I(f'v_add_lshl_u32 v{vT2}, v{vT2}, v{vPf}, 1')
    a.I(f'buffer_load_ushort v{vPrep}, v{vT2}, s[{sPREP}:{sPREP+3}], 0 offen')
    a.I(f'v_lshlrev_b32 v{vPrepAddr}, 1, v{vPrepAddr}')
    a.I(f'v_add_u32 v{vPrepAddr}, {BRAD_OFF:#x}, v{vPrepAddr}')
    a.I('s_branch K1_PDONE')
    a.L('K1_PA')
    srd(a, sPREP, 58, 128 * 128 * 2)
    a.I('s_lshl_b32 s5, s2, 6')
    a.I(f'v_add_u32 v{vPrepAddr}, s5, v{vLane}')
    a.I(f'v_lshrrev_b32 v{vTmp}, 3, v{vPrepAddr}')
    a.I(f'v_bfe_u32 v{vT2}, v{vTmp}, 6, 2')
    a.I(f'v_lshlrev_b32 v{vT2}, 5, v{vT2}')
    a.I(f'v_bfe_u32 v{vPf}, v{vTmp}, 4, 2')
    a.I(f'v_lshl_add_u32 v{vT2}, v{vPf}, 3, v{vT2}')
    a.I(f'v_and_b32 v{vPf}, 7, v{vPrepAddr}')
    a.I(f'v_add_u32 v{vT2}, v{vT2}, v{vPf}')
    a.I(f'v_lshlrev_b32 v{vT2}, 7, v{vT2}')
    a.I(f'v_and_b32 v{vPf}, 15, v{vTmp}')
    a.I(f'v_lshl_add_u32 v{vT2}, v{vPf}, 1, v{vT2}')
    a.I(f'v_lshrrev_b32 v{vPf}, 9, v{vTmp}')
    a.I(f'v_lshl_add_u32 v{vT2}, v{vPf}, 5, v{vT2}')
    a.I(f'v_bfe_u32 v{vPf}, v{vTmp}, 8, 1')
    a.I(f'v_add_lshl_u32 v{vT2}, v{vT2}, v{vPf}, 1')
    a.I(f'buffer_load_ushort v{vPrep}, v{vT2}, s[{sPREP}:{sPREP+3}], 0 offen')
    a.I(f'v_lshlrev_b32 v{vPrepAddr}, 1, v{vPrepAddr}')
    a.I(f'v_add_u32 v{vPrepAddr}, {BMIX_OFF:#x}, v{vPrepAddr}')
    a.L('K1_PDONE')
    a.I(f'v_lshlrev_b32 v{vOff}, 2, v{vE}')
    a.I(f'buffer_load_dword v{vDst}, v{vOff}, s[{sDST}:{sDST+3}], 0 offen')
    a.I(f'buffer_load_dword v{vSrc}, v{vOff}, s[{sSRC}:{sSRC+3}], 0 offen')
    a.I(f'v_lshlrev_b32 v{vOff}, 3, v{vE}')
    a.I(f'buffer_load_dwordx2 {vr(vRec,2)}, v{vOff}, s[{sY}:{sY+3}], 0 offen')
    a.I(f'v_lshlrev_b32 v{vOff}, 5, v{vE}')
    a.I(f'buffer_load_dwordx4 {vr(vEF,4)}, v{vOff}, s[{sEF}:{sEF+3}], 0 offen')
    a.I(f'buffer_load_dwordx4 {vr(vEF+4,4)}, v{vOff}, s[{sEF}:{sEF+3}], 0 offen offset:16')
    a.I('s_lshr_b32 s5, s2, 3')
    a.I('s_lshl_b32 s63, s4, 5')
    a.I('s_add_u32 s5, s5, s63')
    a.I('s_lshl_b32 s5, s5, 13')
    a.I(f's_cmp_lt_u32 s4, {NPF}')
    a.I(f's_cselect_b32 s5, s5, 0x7ff00000')
    a.I(f'v_lshlrev_b32 v{vPf}, 7, v{vLane}')
    a.I(f'v_add_u32 v{vPf}, s5, v{vPf}')
    a.I(f'buffer_load_dword v{vPf}, v{vPf}, s[{sX}:{sX+3}], 0 offen')
    a.I('s_waitcnt lgkmcnt(0)')
    a.I('s_barrier')
    a.I(f'v_cmp_gt_u32 vcc, {CHUNK}, v0')
    a.I('s_and_saveexec_b64 s[6:7], vcc')
    a.I('s_waitcnt vmcnt(5)')
    if cfg.get('stamps'):
        a.I('s_cmp_eq_u32 s4, 0')
        a.I('s_cbranch_scc0 K1_ST2')
        a.I('s_memrealtime s[66:67]')
        a.L('K1_ST2')
    a.I(f'v_and_b32 v{vKey}, 7, v{vDst}')
    a.I(f'v_bfe_u32 v{vTmp}, v{vDst}, 3, 5')
    a.I(f'v_lshl_or_b32 v{vKey}, v{vKey}, 5, v{vTmp}')
    a.I(f'v_lshlrev_b32 v{vKey}, 2, v{vKey}')
    a.I(f'ds_add_rtn_u32 v{vRank}, v{vKey}, v{vOne}')
    a.I('s_mov_b64 exec, s[6:7]')
    a.I('s_waitcnt lgkmcnt(0)')
    a.I('s_barrier')
    hist_prefix(a, vC, vS, vTot, vL16, 0, 1024)
    for i in range(4):
        a.I(f'v_lshl_or_b32 v{vC+i}, v{vC+i}, 16, v{vS+i}')
    a.I(f'v_cmp_gt_u32 vcc, {CHUNK}, v0')
    a.I('s_waitcnt lgkmcnt(0)')
    a.I('s_and_saveexec_b64 s[6:7], vcc')
    a.I(f'ds_read_b32 v{vTmp}, v{vKey} offset:1024')
    a.I(f's_mul_i32 s5, s2, {CHUNK}')
    a.I(f'v_lshrrev_b32 v{vT2}, 8, v{vDst}')
    a.I('s_waitcnt vmcnt(1)')
    if cfg.get('stamps'):
        a.I('s_cmp_eq_u32 s4, 0')
        a.I('s_cbranch_scc0 K1_ST3')
        a.I('s_memrealtime s[68:69]')
        a.L('K1_ST3')
    a.I(f'v_lshl_or_b32 v{vRec+2}, v{vT2}, 14, v{vSrc}')
    a.I(f'v_mov_b32 v{vRec+3}, v{vE}')
    a.I('s_waitcnt lgkmcnt(0)')
    a.I(f'v_add_u32 v{vTmp}, v{vTmp}, v{vRank}')
    a.I(f'v_mul_u32_u24 v{vTmp}, 48, v{vTmp}')
    st = cfg.get('k1st', '')
    STG = 2048
    a.I(f'ds_write_b128 v{vTmp}, {vr(vRec,4)} offset:{STG}')
    a.I(f'ds_write_b128 v{vTmp}, {vr(vEF,4)} offset:{STG+16}')
    a.I(f'ds_write_b128 v{vTmp}, {vr(vEF+4,4)} offset:{STG+32}')
    a.I('s_mov_b64 exec, s[6:7]')
    a.I(f'v_lshlrev_b32 v{vTmp}, 4, v0')
    a.I(f's_mul_i32 s5, s2, {CHUNK*48}')
    a.I('s_waitcnt lgkmcnt(0)')
    a.I('s_barrier')
    a.I(f'ds_read_b128 {vr(vRec,4)}, v{vTmp} offset:{STG}')
    a.I(f'ds_read_b128 {vr(vEF,4)}, v{vTmp} offset:{STG+640*16}')
    a.I(f'ds_read_b128 {vr(vEF+4,4)}, v{vTmp} offset:{STG+1280*16}')
    a.I(f'v_add_u32 v{vT2}, {640*16}, v{vTmp}')
    a.I(f'v_add_u32 v{vOff}, {1280*16}, v{vTmp}')
    a.I(f'v_cmp_gt_u32 vcc, {CHUNK*3-1280}, v0')
    a.I(f'v_mov_b32 v{vKey}, 0x7ff00000')
    a.I(f'v_cndmask_b32 v{vOff}, v{vKey}, v{vOff}, vcc')
    a.I('s_waitcnt lgkmcnt(2)')
    a.I(f'buffer_store_dwordx4 {vr(vRec,4)}, v{vTmp}, s[{sWS}:{sWS+3}], s5 offen' + st)
    a.I('s_waitcnt lgkmcnt(1)')
    a.I(f'buffer_store_dwordx4 {vr(vEF,4)}, v{vT2}, s[{sWS}:{sWS+3}], s5 offen' + st)
    a.I('s_waitcnt lgkmcnt(0)')
    a.I(f'buffer_store_dwordx4 {vr(vEF+4,4)}, v{vOff}, s[{sWS}:{sWS+3}], s5 offen' + st)
    a.I('s_cmp_eq_u32 s4, 0')
    a.I('s_cbranch_scc0 K1_NT')
    a.I('s_lshl_b32 s5, s2, 10')
    a.I(f's_add_u32 s5, s5, {TAB_OFF:#x}')
    a.I(f'buffer_store_dwordx4 {vr(vC,4)}, v{vL16}, s[{sWS}:{sWS+3}], s5 offen' + st)
    if cfg.get('stamps'):
        stamp(a, cfg, 1, 62, 64, 38)
        a.I('v_mov_b32 v38, s66')
        a.I(f'buffer_store_dword v38, v39, s[{sWS}:{sWS+3}], 0 offen offset:8')
        a.I('v_mov_b32 v40, s68')
        a.I(f'buffer_store_dword v40, v39, s[{sWS}:{sWS+3}], 0 offen offset:12')
    a.L('K1_NT')
    a.I('s_cmp_eq_u32 s4, 9')
    a.I('s_cbranch_scc1 K1_PS16')
    a.I('s_cmp_eq_u32 s4, 8')
    a.I('s_cbranch_scc0 K1_END')
    a.I('s_cmp_lt_u32 s2, 32')
    a.I('s_cbranch_scc1 K1_PSR')
    a.I('s_cmp_eq_u32 s2, 32')
    a.I('s_cbranch_scc0 K1_END')
    a.I(f'v_lshlrev_b32 v{vPrep}, 16, v{vPrep}')
    if scaled:
        a.I(f'v_mul_f32 v{vPrep}, {f2u(-LN2):#x}, v{vPrep}')
    a.I(f'buffer_store_dword v{vPrep}, v{vPrepAddr}, s[{sWS}:{sWS+3}], 0 offen')
    a.I('s_branch K1_END')
    a.L('K1_PSR')
    if scaled:
        a.I(f'v_lshlrev_b32 v{vPrep}, 16, v{vPrep}')
        a.I(f'v_mul_f32 v{vPrep}, {f2u(-LOG2E):#x}, v{vPrep}')
        a.I(f'v_cvt_pk_bf16_f32 v{vPrep}, v{vPrep}, v{vPrep}')
    a.L('K1_PS16')
    a.I(f'buffer_store_short v{vPrep}, v{vPrepAddr}, s[{sWS}:{sWS+3}], 0 offen')
    a.L('K1_END')
    a.I('s_endpgm')
    return name, 44, 72


def kd(a, name, nv, ns):
    a(f""".amdhsa_kernel {name}
  .amdhsa_next_free_vgpr {nv}
  .amdhsa_next_free_sgpr {ns}
  .amdhsa_accum_offset {(nv + 3) // 4 * 4}
  .amdhsa_group_segment_fixed_size 0
  .amdhsa_kernarg_size 88
  .amdhsa_user_sgpr_count 2
  .amdhsa_user_sgpr_kernarg_segment_ptr 1
  .amdhsa_system_sgpr_workgroup_id_x 1
  .amdhsa_float_denorm_mode_32 3
.end_amdhsa_kernel""")


HIST = 0
BASE = 1024
MAXR = 2048
ZERO16 = 2064
WL = 4096
CAP = 1024
ENT = 8192
YS = 12800
EFS = 21248
AGG = 55040
AGG_STRIDE = 272
K2_LDS = AGG + 160 * AGG_STRIDE


def gen_k2(a, cfg):
    name = 'main_kernel'
    scaled = cfg.get('scaled', False)
    NPF1 = cfg.get('npf1', 6)
    NPF2 = cfg.get('npf2', 0)
    a(f'.globl {name}\n.p2align 8\n.type {name},@function\n{name}:')
    sX, sWS, sOUT = 8, 12, 16
    sW, sB, sKEY, sNW, sRND, sMAXR = 4, 5, 6, 7, 20, 21
    sSEG0, sN, sCNT, sXO, sREM = 22, 23, 24, 25, 26
    sT0, sT1, sT2 = 27, 28, 29
    sMLO, sMHI = 30, 32
    sCL = 34
    sSAVE = 36
    sV0, sV1 = 38, 40
    sE = 48
    sDBG = 64
    vLane, vL16, vL15 = 1, 2, 3
    vTmp = 4
    vEntA, vYA, vEfA = 12, 13, 14
    vAL_A, vAH_A = 15, 16
    vENTc, vENTn = 17, 18
    vWc, vWn = 20, 22
    vYraw = 24
    vYf = 26
    vWf = 30
    vHS = 34
    vT = 38
    vR = 42
    vAL, vAH = 52, 56
    vACC = 64
    vXR = 104
    vTP = 120
    vH0, vH1 = 136, 152
    vBR = 168
    vCG = 184
    vBM = 200
    NV = 232
    vRecA, vRecB = 104, 116
    vP = 136

    a.I('s_cmp_ge_u32 s2, 256')
    a.I('s_cbranch_scc1 K2_END')
    a.I('s_load_dwordx2 s[44:45], s[0:1], 0')
    a.I('s_load_dwordx2 s[46:47], s[0:1], 64')
    a.I('s_load_dwordx2 s[42:43], s[0:1], 80')
    a.I(f'v_and_b32 v{vLane}, 63, v0')
    a.I(f'v_lshrrev_b32 v{vTmp}, 6, v0')
    a.I(f'v_lshlrev_b32 v{vL16}, 4, v{vLane}')
    a.I(f'v_readfirstlane_b32 s{sW}, v{vTmp}')
    a.I(f'v_and_b32 v{vL15}, 15, v{vLane}')
    a.I(f's_mov_b32 s{sB}, s2')
    a.I(f's_and_b32 s{sKEY}, s2, 7')
    a.I(f's_lshl_b32 s{sKEY}, s{sKEY}, 5')
    a.I(f's_lshr_b32 s{sT0}, s2, 3')
    a.I(f's_or_b32 s{sKEY}, s{sKEY}, s{sT0}')
    a.I(f'v_mov_b32 v{vTmp+1}, 0')
    a.I(f'v_lshlrev_b32 v{vTmp+2}, 2, v0')
    a.I('v_cmp_gt_u32 vcc, 256, v0')
    a.I(f's_and_saveexec_b64 s[{sSAVE}:{sSAVE+1}], vcc')
    a.I('s_cbranch_execz K2_Z0')
    a.I(f'ds_write_b32 v{vTmp+2}, v{vTmp+1} offset:{HIST}')
    a.L('K2_Z0')
    a.I(f's_mov_b64 exec, s[{sSAVE}:{sSAVE+1}]')
    a.I(f'v_subrev_u32 v{vTmp+3}, 256, v0')
    a.I(f'v_cmp_gt_u32 vcc, 8, v{vTmp+3}')
    a.I(f's_and_saveexec_b64 s[{sSAVE}:{sSAVE+1}], vcc')
    a.I('s_cbranch_execz K2_Z1')
    a.I(f'ds_write_b32 v{vTmp+2}, v{vTmp+1} offset:{MAXR-1024}')
    a.L('K2_Z1')
    a.I(f's_mov_b64 exec, s[{sSAVE}:{sSAVE+1}]')
    for i in range(40):
        a.I(f'v_mov_b32 v{vACC+i}, 0')
    a.I(f's_mov_b32 s{sMLO}, 0x0f0f0f0f')
    a.I(f's_mov_b32 s{sMLO+1}, 0x0f0f0f0f')
    a.I(f's_mov_b32 s{sMHI}, 0xf0f0f0f0')
    a.I(f's_mov_b32 s{sMHI+1}, 0xf0f0f0f0')
    a.I(f's_mov_b32 s{sCL}, {f2u(-LOG2E):#x}')
    a.I(f's_mov_b32 s{sCL+1}, {f2u(-LOG2E):#x}')
    a.I(f's_mov_b32 s{sRND}, 0')
    a.I('s_waitcnt lgkmcnt(0)')
    srd(a, sX, 44, X_BYTES)
    srd(a, sWS, 42, WS_SIZE if not cfg.get('stamps') else STAMP_OFF + 0x10000)
    srd(a, sOUT, 46, X_BYTES)
    if cfg.get('stamps'):
        cfg['stamp_srd'] = sWS
        a.I(f's_lshl_b32 s{sDBG}, s2, 6')
        a.I(f's_add_u32 s{sDBG}, s{sDBG}, {STAMP_OFF + 0x8000:#x}')
        a.I(f's_cmp_eq_u32 s{sW}, 0')
        a.I('s_cbranch_scc0 K2_ST0')
        stamp(a, cfg, 0, sDBG, 66, vTmp+4)
        a.L('K2_ST0')
    vChunk, vTab, vCnt, vInc, vExc, vRb = vP, vP+1, vP+2, vP+3, vP+4, vP+5
    a.I(f'v_and_b32 v{vChunk}, 31, v{vLane}')
    a.I(f's_lshl_b32 s{sT0}, s{sW}, 5')
    a.I(f'v_add_u32 v{vChunk}, s{sT0}, v{vChunk}')
    a.I(f'v_lshlrev_b32 v{vTmp}, 10, v{vChunk}')
    a.I(f's_lshl_b32 s{sT0}, s{sKEY}, 2')
    a.I(f's_add_u32 s{sT0}, s{sT0}, {TAB_OFF:#x}')
    a.I(f'buffer_load_dword v{vTab}, v{vTmp}, s[{sWS}:{sWS+3}], s{sT0} offen')
    a.I('s_barrier')
    a.I('s_waitcnt vmcnt(0)')
    vCntP, vExcP, vRbP = vTmp+1, vTmp+2, vTmp+3
    a.I(f'v_lshrrev_b32 v{vCntP}, 16, v{vTab}')
    a.I(f'v_and_b32 v{vRbP}, 0xffff, v{vTab}')
    a.I(f'v_mov_b32 v{vInc}, v{vCntP}')
    a.I(f'v_mad_u32_u24 v{vRbP}, v{vChunk}, v{vOneConst(a, vTmp+4, CHUNK)}, v{vRbP}')
    scan_dpp(a, vInc, False)
    a.I('s_nop 0')
    a.I(f'v_sub_u32 v{vExcP}, v{vInc}, v{vCntP}')
    a.I(f'v_readlane_b32 s{sNW}, v{vInc}, 31')
    a.I('s_nop 3')
    a.I(f's_add_u32 s{sT0}, s{sNW}, 127')
    a.I(f's_lshr_b32 s{sT0}, s{sT0}, 7')
    a.I(f'v_mov_b32 v{vTmp}, s{sT0}')
    a.I(f'v_mov_b32 v{vTmp+4}, {MAXR}')
    a.I(f'ds_max_u32 v{vTmp+4}, v{vTmp}')
    a.L('K2_ROUND')
    vK, vHi, vAd, vVal = vP, vP+1, vP+2, vP+3
    a.I(f's_lshl_b32 s{sT0}, s{sRND}, 7')
    a.I(f'v_sub_u32 v{vK}, s{sT0}, v{vExcP}')
    a.I(f'v_add_u32 v{vHi}, 128, v{vK}')
    a.I(f'v_min_i32 v{vHi}, v{vHi}, v{vCntP}')
    a.I(f'v_max_i32 v{vK}, 0, v{vK}')
    a.I(f'v_lshrrev_b32 v{vTmp}, 5, v{vLane}')
    a.I(f'v_add_u32 v{vK}, v{vK}, v{vTmp}')
    a.I(f'v_add_u32 v{vVal}, v{vRbP}, v{vK}')
    a.I(f'v_add_u32 v{vAd}, v{vExcP}, v{vK}')
    a.I(f'v_subrev_u32 v{vAd}, s{sT0}, v{vAd}')
    a.I(f's_lshl_b32 s{sT1}, s{sW}, 9')
    a.I(f's_add_u32 s{sT1}, s{sT1}, {WL}')
    a.I(f'v_lshl_add_u32 v{vAd}, v{vAd}, 2, s{sT1}')
    a.L('K2_EXP')
    a.I(f'v_cmp_lt_i32 vcc, v{vK}, v{vHi}')
    a.I('s_and_b64 exec, exec, vcc')
    a.I('s_cbranch_scc0 K2_EXPD')
    a.I(f'ds_write_b32 v{vAd}, v{vVal}')
    a.I(f'v_add_u32 v{vK}, 2, v{vK}')
    a.I(f'v_add_u32 v{vVal}, 2, v{vVal}')
    a.I(f'v_add_u32 v{vAd}, 8, v{vAd}')
    a.I('s_branch K2_EXP')
    a.L('K2_EXPD')
    a.I('s_mov_b64 exec, -1')
    a.I(f'v_lshl_add_u32 v{vTmp}, v{vLane}, 2, s{sT1}')
    a.I('s_waitcnt lgkmcnt(0)')
    a.I(f'ds_read_b32 v{vP}, v{vTmp}')
    a.I(f'ds_read_b32 v{vP+1}, v{vTmp} offset:256')
    a.I(f's_sub_i32 s{sT2}, s{sNW}, s{sT0}')
    a.I(f'v_cmp_gt_i32 s[{sV0}:{sV0+1}], s{sT2}, v{vLane}')
    a.I(f'v_add_u32 v{vTmp}, 64, v{vLane}')
    a.I(f'v_cmp_gt_i32 s[{sV1}:{sV1+1}], s{sT2}, v{vTmp}')
    a.I(f'v_mov_b32 v{vTmp}, 0x7ffffff0')
    a.I('s_waitcnt lgkmcnt(0)')
    a.I(f'v_mul_u32_u24 v{vP}, 48, v{vP}')
    a.I(f'v_mul_u32_u24 v{vP+1}, 48, v{vP+1}')
    a.I(f'v_cndmask_b32 v{vP}, v{vTmp}, v{vP}, s[{sV0}:{sV0+1}]')
    a.I(f'v_cndmask_b32 v{vP+1}, v{vTmp}, v{vP+1}, s[{sV1}:{sV1+1}]')
    for rec, vo in ((vRecA, vP), (vRecB, vP+1)):
        for q in range(3):
            a.I(f'buffer_load_dwordx4 {vr(rec+4*q,4)}, v{vo}, s[{sWS}:{sWS+3}], 0 offen offset:{16*q}')
    a.I(f'v_add_u32 v{vTmp}, {BRAD_OFF:#x}, v{vL16}')
    for q in range(4):
        a.I(f'buffer_load_dwordx4 {vr(vBR+4*q,4)}, v{vTmp}, s[{sWS}:{sWS+3}], 0 offen offset:{1024*q}')
    a.I(f'v_and_b32 v{vTmp}, 3, v{vLane}')
    a.I(f'v_lshlrev_b32 v{vTmp}, 6, v{vTmp}')
    a.I(f'v_add_u32 v{vTmp}, {CGW_OFF:#x}, v{vTmp}')
    for q in range(4):
        a.I(f'buffer_load_dwordx4 {vr(vCG+4*q,4)}, v{vTmp}, s[{sWS}:{sWS+3}], 0 offen offset:{16*q}')
    nextra = 8
    if NPF2 > 0:
        a.I(f's_lshr_b32 s{sT0}, s{sB}, 3')
        a.I(f's_add_u32 s{sT1}, s{sW}, {NPF1}')
        a.I(f's_lshl_b32 s{sT1}, s{sT1}, 5')
        a.I(f's_add_u32 s{sT0}, s{sT0}, s{sT1}')
        a.I(f's_lshl_b32 s{sT0}, s{sT0}, 13')
        a.I(f's_cmp_lt_u32 s{sW}, {NPF2}')
        a.I(f's_cselect_b32 s{sT0}, s{sT0}, 0x7ff00000')
        a.I(f'v_lshlrev_b32 v{vTmp}, 7, v{vLane}')
        a.I(f'v_add_u32 v{vTmp}, s{sT0}, v{vTmp}')
        a.I(f'buffer_load_dword v{vTmp+5}, v{vTmp}, s[{sX}:{sX+3}], 0 offen')
        nextra += 1
    a.I(f's_waitcnt vmcnt({nextra})')
    if cfg.get('stamps'):
        a.I(f's_cmp_eq_u32 s{sW}, 0')
        a.I('s_cbranch_scc0 K2_ST1')
        stamp(a, cfg, 1, sDBG, 66, vP+20)
        a.L('K2_ST1')
    vOne = vP+2
    a.I(f'v_mov_b32 v{vOne}, 1')
    vBin = (vP+4, vP+5); vEnt = (vP+6, vP+7); vRank = (vP+8, vP+9)
    for i, rec in enumerate((vRecA, vRecB)):
        w0 = rec + 2
        a.I(f'v_and_b32 v{vTmp}, 0x3fff, v{w0}')
        a.I(f'v_bfe_u32 v{vP+10}, v{w0}, 14, 3')
        a.I(f'v_mul_u32_u24 v{vP+11}, 838, v{vTmp}')
        a.I(f'v_lshrrev_b32 v{vP+11}, 18, v{vP+11}')
        a.I(f'v_lshl_add_u32 v{vP+11}, v{vP+10}, 5, v{vP+11}')
        a.I(f'v_lshlrev_b32 v{vBin[i]}, 2, v{vP+11}')
        a.I(f'v_bfe_u32 v{vP+10}, v{w0}, 17, 3')
        a.I(f'v_lshlrev_b32 v{vP+10}, 3, v{vP+10}')
        a.I(f'v_lshl_or_b32 v{vEnt[i]}, v{vTmp}, 10, v{vP+10}')
    for i, m in enumerate((sV0, sV1)):
        a.I(f's_mov_b64 exec, s[{m}:{m+1}]')
        a.I(f's_cbranch_execz K2_H{i}')
        a.I(f'ds_add_rtn_u32 v{vRank[i]}, v{vBin[i]}, v{vOne} offset:{HIST}')
        a.L(f'K2_H{i}')
    a.I('s_mov_b64 exec, -1')
    a.I('s_waitcnt lgkmcnt(0)')
    a.I('s_barrier')
    vC, vS, vTot = vP+12, vP+16, vP+20
    a.I(f'v_mov_b32 v{vTmp}, {MAXR}')
    a.I(f'ds_read_b32 v{vTmp+5}, v{vTmp}')
    hist_prefix(a, vC, vS, vTot, vL16, HIST, BASE)
    a.I(f'v_readfirstlane_b32 s{sMAXR}, v{vTmp+5}')
    a.I(f's_lshl_b32 s{sT0}, s{sW}, 3')
    a.I(f'v_readlane_b32 s{sSEG0}, v{vS}, s{sT0}')
    a.I(f's_add_u32 s{sT0}, s{sT0}, 8')
    a.I(f's_min_u32 s{sT0}, s{sT0}, 63')
    a.I(f'v_readlane_b32 s{sT1}, v{vS}, s{sT0}')
    a.I(f'v_readlane_b32 s{sT2}, v{vTot}, 63')
    a.I('s_nop 3')
    a.I(f's_cmp_eq_u32 s{sW}, 7')
    a.I(f's_cselect_b32 s{sT1}, s{sT2}, s{sT1}')
    a.I(f's_sub_u32 s{sN}, s{sT1}, s{sSEG0}')
    a.I('s_waitcnt lgkmcnt(0)')
    a.I(f'ds_read_b32 v{vP+10}, v{vBin[0]} offset:{BASE}')
    a.I(f'ds_read_b32 v{vP+11}, v{vBin[1]} offset:{BASE}')
    a.I('s_waitcnt lgkmcnt(0)')
    for i, (m, rec) in enumerate(((sV0, vRecA), (sV1, vRecB))):
        a.I(f's_mov_b64 exec, s[{m}:{m+1}]')
        a.I(f's_cbranch_execz K2_S{i}')
        a.I(f'v_add_u32 v{vRank[i]}, v{vRank[i]}, v{vP+10+i}')
        a.I(f'v_lshlrev_b32 v{vTmp}, 2, v{vRank[i]}')
        a.I(f'ds_write_b32 v{vTmp}, v{vEnt[i]} offset:{ENT}')
        a.I(f'v_lshlrev_b32 v{vTmp+4}, 3, v{vRank[i]}')
        a.I(f'ds_write_b64 v{vTmp+4}, {vr(rec,2)} offset:{YS}')
        a.I(f'v_lshlrev_b32 v{vTmp+5}, 5, v{vRank[i]}')
        a.I(f'ds_write_b128 v{vTmp+5}, {vr(rec+4,4)} offset:{EFS}')
        a.I(f'ds_write_b128 v{vTmp+5}, {vr(rec+8,4)} offset:{EFS+16}')
        a.L(f'K2_S{i}')
    a.I('s_mov_b64 exec, -1')
    a.I('s_waitcnt lgkmcnt(0)')
    a.I('s_barrier')
    a.I(f'v_mov_b32 v{vTmp}, 0')
    a.I(f'v_lshlrev_b32 v{vTmp+4}, 2, v0')
    a.I('v_cmp_gt_u32 vcc, 256, v0')
    a.I(f's_and_saveexec_b64 s[{sSAVE}:{sSAVE+1}], vcc')
    a.I('s_cbranch_execz K2_Z2')
    a.I(f'ds_write_b32 v{vTmp+4}, v{vTmp} offset:{HIST}')
    a.L('K2_Z2')
    a.I(f's_mov_b64 exec, s[{sSAVE}:{sSAVE+1}]')
    if cfg.get('stamps'):
        a.I(f's_cmp_eq_u32 s{sW}, 0')
        a.I('s_cbranch_scc0 K2_ST2')
        stamp(a, cfg, 2, sDBG, 66, vP+22)
        a.L('K2_ST2')

    def w_compute(dst):
        ops = []
        ops.append(f'v_lshlrev_b32 v{vYf}, 16, v{vYraw}')
        ops.append(f'v_and_b32 v{vYf+1}, 0xffff0000, v{vYraw}')
        ops.append(f'v_lshlrev_b32 v{vYf+2}, 16, v{vYraw+1}')
        ops.append(f'v_and_b32 v{vYf+3}, 0xffff0000, v{vYraw+1}')
        for f in range(4):
            yp = vYf + (f & 2)
            s = f & 1
            for h in range(2):
                cg = vCG + 4*f + 2*h
                if f == 0:
                    ops.append(f'v_pk_mul_f32 {vr(vWf+2*h,2)}, {vr(cg,2)}, {vr(yp,2)} op_sel:[0,{s}] op_sel_hi:[1,{s}]')
                else:
                    ops.append(f'v_pk_fma_f32 {vr(vWf+2*h,2)}, {vr(cg,2)}, {vr(yp,2)}, {vr(vWf+2*h,2)} op_sel:[0,{s},0] op_sel_hi:[1,{s},1]')
        ops.append(f'v_cvt_pk_bf16_f32 v{dst}, v{vWf}, v{vWf+1}')
        ops.append(f'v_cvt_pk_bf16_f32 v{dst+1}, v{vWf+2}, v{vWf+3}')
        return ops

    def h_mfma():
        ops = []
        for p, H in ((0, vH0), (1, vH1)):
            ops.append(f'v_mfma_f32_32x32x16_bf16 {vr(H,16)}, {vr(vAL,4)}, {vr(vBR+8*p,4)}, 0')
            ops.append(f'v_mfma_f32_32x32x16_bf16 {vr(H,16)}, {vr(vAH,4)}, {vr(vBR+8*p+4,4)}, {vr(H,16)}')
        return ops

    def hpair(q):
        if q == 7:
            return vHS, vHS + 2
        qq = q % 8
        return vH0 + 2*qq, vH1 + 2*qq

    def z_ops(q):
        h0, h1 = hpair(q)
        if scaled:
            return []
        return [f'v_pk_mul_f32 {vr(vT,2)}, {vr(h0,2)}, s[{sCL}:{sCL+1}]',
                f'v_pk_mul_f32 {vr(vT+2,2)}, {vr(h1,2)}, s[{sCL}:{sCL+1}]']

    def exp_ops(q):
        h0, h1 = hpair(q)
        if scaled:
            return [f'v_exp_f32 v{vT}, v{h0}', f'v_exp_f32 v{vT+1}, v{h0+1}',
                    f'v_exp_f32 v{vT+2}, v{h1}', f'v_exp_f32 v{vT+3}, v{h1+1}']
        return [f'v_exp_f32 v{vT+i}, v{vT+i}' for i in range(4)]

    add_ops = [f'v_pk_add_f32 {vr(vT,2)}, {vr(vT,2)}, 1.0 op_sel_hi:[1,0]',
               f'v_pk_add_f32 {vr(vT+2,2)}, {vr(vT+2,2)}, 1.0 op_sel_hi:[1,0]']
    rcp_ops = [f'v_rcp_f32 v{vT+i}, v{vT+i}' for i in range(4)]

    def r_ops(q):
        h0, h1 = hpair(q)
        rb = vR + 4*(q % 2)
        return [f'v_pk_mul_f32 {vr(rb,2)}, {vr(h0,2)}, {vr(vT,2)}',
                f'v_pk_mul_f32 {vr(rb+2,2)}, {vr(h1,2)}, {vr(vT+2,2)}']

    a.I(f'v_add_u32 v{vEntA}, s{sSEG0}, v{vL15}')
    a.I(f'v_lshlrev_b32 v{vEntA}, 2, v{vEntA}')
    a.I(f'v_lshrrev_b32 v{vTmp}, 2, v{vLane}')
    a.I(f'v_add_u32 v{vYA}, s{sSEG0}, v{vTmp}')
    a.I(f'v_lshlrev_b32 v{vYA}, 3, v{vYA}')
    a.I(f'v_bfe_u32 v{vTmp}, v{vLane}, 3, 2')
    a.I(f'v_and_b32 v{vTmp+4}, 3, v{vLane}')
    a.I(f'v_lshl_add_u32 v{vTmp}, v{vTmp}, 2, v{vTmp+4}')
    a.I(f'v_add_u32 v{vTmp}, s{sSEG0}, v{vTmp}')
    a.I(f'v_lshlrev_b32 v{vTmp}, 5, v{vTmp}')
    a.I(f'v_lshrrev_b32 v{vTmp+4}, 5, v{vLane}')
    a.I(f'v_lshl_add_u32 v{vEfA}, v{vTmp+4}, 4, v{vTmp}')
    a.I(f'v_add_u32 v{vEfA}, {EFS}, v{vEfA}')
    a.I(f'v_mov_b32 v{vTmp}, {ZERO16}')
    a.I(f'v_cndmask_b32 v{vAL_A}, v{vTmp}, v{vEfA}, s[{sMLO}:{sMLO+1}]')
    a.I(f'v_cndmask_b32 v{vAH_A}, v{vTmp}, v{vEfA}, s[{sMHI}:{sMHI+1}]')
    a.I(f'ds_read_b32 v{vENTc}, v{vEntA} offset:{ENT}')
    a.I(f'ds_read_b64 {vr(vYraw,2)}, v{vYA} offset:{YS}')
    a.I(f'ds_read_b128 {vr(vAL,4)}, v{vAL_A}')
    a.I(f'ds_read_b128 {vr(vAH,4)}, v{vAH_A}')
    a.I(f'v_cmp_gt_i32 vcc, s{sN}, v{vL15}')
    for i in range(8):
        a.I(f'v_mov_b32 v{vTP+8+i}, 0')
    for i in range(4):
        a.I(f'v_mov_b32 v{vR+4+i}, 0')
    a.I(f's_mov_b32 s{sE+15}, 0')
    a.I(f's_mov_b32 s{sCNT}, s{sN}')
    a.I(f's_sub_i32 s{sREM}, s{sN}, 16')
    a.I('s_waitcnt lgkmcnt(3)')
    a.I(f'v_cndmask_b32 v{vENTc}, 0, v{vENTc}, vcc')
    a.I('s_nop 0')
    for j in range(5):
        a.I(f'v_readlane_b32 s{sE+j}, v{vENTc}, {j}')
    a.I('s_nop 3')
    for j in range(4):
        a.I(f's_and_b32 s{sXO}, s{sE+j}, 0xfffffc00')
        a.I(f'buffer_load_dwordx4 {vr(vXR+4*j,4)}, v{vL16}, s[{sX}:{sX+3}], s{sXO} offen')
    a.I(f's_and_b32 s{sXO}, s{sE+4}, 0xfffffc00')
    a.I('s_waitcnt vmcnt(4) lgkmcnt(0)')
    for op in h_mfma():
        a.I(op)
    for op in w_compute(vWc):
        a.I(op)
    a.I('s_nop 7')
    for op in z_ops(0) + exp_ops(0):
        a.I(op)
    a.I('s_nop 0')
    for op in add_ops + rcp_ops:
        a.I(op)
    a.I('s_nop 0')
    for op in r_ops(0) + z_ops(1):
        a.I(op)

    a.L('K2_LOOP')
    wn_ops = w_compute(vWn)
    for j in range(16):
        a(f'    ; ---- slot {j}')
        if j == 0:
            a.I(f'ds_read_b32 v{vENTn}, v{vEntA} offset:{ENT+64}')
            a.I(f'ds_read_b64 {vr(vYraw,2)}, v{vYA} offset:{YS+128}')
        a.I('s_waitcnt vmcnt(3)')
        xr = vXR + 4*(j % 4)
        tp = vTP + 8*(j % 2)
        a.I(f'v_mfma_f32_4x4x4_16b_bf16 {vr(tp,4)}, {vr(vWc,2)}, {vr(xr,2)}, 0 cbsz:4 abid:{j}')
        a.I(f'v_mfma_f32_4x4x4_16b_bf16 {vr(tp+4,4)}, {vr(vWc,2)}, {vr(xr+2,2)}, 0 cbsz:4 abid:{j}')
        a.I(f'buffer_load_dwordx4 {vr(xr,4)}, v{vL16}, s[{sX}:{sX+3}], s{sXO} offen' + cfg.get('xld', ''))
        q = j // 2 + 1 if j % 2 == 0 else (j + 1) // 2
        for op in (exp_ops(q) if j % 2 == 0 else rcp_ops):
            a.I(op)
        src_ent = vENTc if j + 5 < 16 else vENTn
        a.I(f'v_readlane_b32 s{sE+(j+5)%16}, v{src_ent}, {(j+5)%16}')
        jm = (j - 1) % 16
        tpm = vTP + 8*((j - 1) % 2)
        rb = vR + 4*((((j - 1) // 2)) % 2)
        sel = (j - 1) & 1
        a.I(f's_set_gpr_idx_on s{sE+jm}, gpr_idx(SRC2,DST)')
        for p in range(2):
            for h in range(2):
                acc = vACC + 4*p + 2*h
                a.I(f'v_pk_fma_f32 {vr(acc,2)}, {vr(tpm+4*p+2*h,2)}, {vr(rb+2*p,2)}, {vr(acc,2)} op_sel:[0,{sel},0] op_sel_hi:[1,{sel},1]')
        a.I('s_set_gpr_idx_off')
        a.I(f's_sub_u32 s{sCNT}, s{sCNT}, 1')
        a.I('s_cbranch_scc1 K2_EXIT')
        a.I(f's_and_b32 s{sXO}, s{sE+(j+5)%16}, 0xfffffc00')
        if j % 2 == 0:
            for op in add_ops:
                a.I(op)
        else:
            for op in r_ops(q) + z_ops(q + 1):
                a.I(op)
        if j == 1:
            a.I(f'v_add_u32 v{vEfA}, 512, v{vEfA}')
            a.I(f'v_mov_b32 v{vTmp}, {ZERO16}')
            a.I(f'v_cndmask_b32 v{vAL_A}, v{vTmp}, v{vEfA}, s[{sMLO}:{sMLO+1}]')
            a.I(f'v_cndmask_b32 v{vAH_A}, v{vTmp}, v{vEfA}, s[{sMHI}:{sMHI+1}]')
            a.I(f'ds_read_b128 {vr(vAL,4)}, v{vAL_A}')
            a.I(f'ds_read_b128 {vr(vAH,4)}, v{vAH_A}')
        if j == 3:
            a.I('s_waitcnt lgkmcnt(0)')
            a.I(f'v_cmp_gt_i32 vcc, s{sREM}, v{vL15}')
            for op in wn_ops[0:4]:
                a.I(op)
            a.I(f'v_cndmask_b32 v{vENTn}, 0, v{vENTn}, vcc')
        if j == 4:
            for op in wn_ops[4:8]:
                a.I(op)
        if j == 5:
            for op in wn_ops[8:14]:
                a.I(op)
        if j == 9:
            a.I(f'v_pk_mov_b32 {vr(vHS,2)}, {vr(vH0+14,2)}, {vr(vH0+14,2)} op_sel:[0,1]')
            a.I(f'v_pk_mov_b32 {vr(vHS+2,2)}, {vr(vH1+14,2)}, {vr(vH1+14,2)} op_sel:[0,1]')
        if j == 11:
            for op in h_mfma():
                a.I(op)
        if j == 15:
            a.I(f'v_mov_b32 v{vWc}, v{vWn}')
            a.I(f'v_mov_b32 v{vWc+1}, v{vWn+1}')
            a.I(f'v_mov_b32 v{vENTc}, v{vENTn}')
            a.I(f'v_add_u32 v{vEntA}, 64, v{vEntA}')
            a.I(f'v_add_u32 v{vYA}, 128, v{vYA}')
            a.I(f's_sub_i32 s{sREM}, s{sREM}, 16')
            a.I('s_branch K2_LOOP')
    a.L('K2_EXIT')
    a.I('s_waitcnt vmcnt(0) lgkmcnt(0)')
    a.I(f's_add_u32 s{sRND}, s{sRND}, 1')
    a.I(f's_cmp_lt_u32 s{sRND}, s{sMAXR}')
    a.I('s_cbranch_scc0 K2_TAIL')
    a.I('s_barrier')
    a.I('s_branch K2_ROUND')

    a.L('K2_TAIL')
    if cfg.get('stamps'):
        a.I(f's_cmp_eq_u32 s{sW}, 0')
        a.I('s_cbranch_scc0 K2_ST3')
        stamp(a, cfg, 3, sDBG, 66, vXR)
        a.L('K2_ST3')
    a.I(f's_and_b32 s{sT0}, s{sW}, 3')
    a.I(f's_lshl_b32 s{sT0}, s{sT0}, 13')
    a.I(f's_add_u32 s{sT0}, s{sT0}, {BMIX_OFF:#x}')
    a.I(f's_add_u32 s{sT1}, s{sT0}, 4096')
    for t in range(2):
        for ks in range(4):
            a.I(f'buffer_load_dwordx4 {vr(vBM+16*t+4*ks,4)}, v{vL16}, s[{sWS}:{sWS+3}], s{sT0 if t == 0 else sT1} offen offset:{1024*ks}')
    a.I(f's_mul_i32 s{sT2}, s{sW}, {4*AGG_STRIDE}')
    a.I(f's_add_u32 s{sT2}, s{sT2}, {AGG}')
    a.I(f'v_lshl_add_u32 v{vTmp}, v{vLane}, 2, s{sT2}')
    for s in range(5):
        for o in range(4):
            t = vXR + s * 4 + o
            a.I(f'v_cvt_pk_bf16_f32 v{t}, v{vACC+8*s+o}, v{vACC+8*s+4+o}')
            a.I(f'ds_write_b32 v{vTmp}, v{t} offset:{(32*s + o) * AGG_STRIDE}')
    a.I('s_waitcnt lgkmcnt(0)')
    a.I('s_barrier')
    a.I(f'v_mul_u32_u24 v{vTmp}, {AGG_STRIDE}, v{vL15}')
    a.I(f'v_lshrrev_b32 v{vTmp+4}, 4, v{vLane}')
    a.I(f'v_lshl_add_u32 v{vTmp}, v{vTmp+4}, 4, v{vTmp}')
    a.I(f's_lshr_b32 s{sT0}, s{sW}, 2')
    a.I(f's_mul_i32 s{sT1}, s{sT0}, {5*16*AGG_STRIDE}')
    a.I(f's_add_u32 s{sT1}, s{sT1}, {AGG}')
    a.I(f'v_add_u32 v{vTmp}, s{sT1}, v{vTmp}')
    a.I(f's_mul_i32 s{sT1}, s{sT0}, 20')
    a.I(f'v_add_u32 v{vTmp+4}, s{sT1}, v{vTmp+4}')
    a.I(f'v_lshlrev_b32 v{vTmp+4}, 18, v{vTmp+4}')
    a.I(f's_lshl_b32 s{sT1}, s{sB}, 10')
    a.I(f's_and_b32 s{sT2}, s{sW}, 3')
    a.I(f's_lshl_b32 s{sT2}, s{sT2}, 8')
    a.I(f's_add_u32 s{sT1}, s{sT1}, s{sT2}')
    a.I(f'v_lshl_add_u32 v{vTmp+5}, v{vL15}, 4, s{sT1}')
    a.I(f'v_add_u32 v{vTmp+4}, v{vTmp+4}, v{vTmp+5}')
    vA = (vH0, vH0 + 16 - 16 + 16)
    vA = (vH0, vH1)
    vD = (vTP, vTP + 8)
    vO = (vXR, vXR + 4, vXR + 8, vXR + 12)
    def a_reads(tt):
        for ks in range(4):
            a.I(f'ds_read_b128 {vr(vA[tt%2]+4*ks,4)}, v{vTmp} offset:{tt*16*AGG_STRIDE + 64*ks}')
    a_reads(0)
    a.I('s_waitcnt vmcnt(0)')
    for tt in range(5):
        if tt + 1 < 5:
            a_reads(tt + 1)
            a.I('s_waitcnt lgkmcnt(4)')
        else:
            a.I('s_waitcnt lgkmcnt(0)')
        D = vD[tt % 2]
        for ks in range(4):
            for t in range(2):
                c = '0' if ks == 0 else vr(D+4*t, 4)
                a.I(f'v_mfma_f32_16x16x32_bf16 {vr(D+4*t,4)}, {vr(vA[tt%2]+4*ks,4)}, {vr(vBM+16*t+4*ks,4)}, {c}')
        if tt > 0:
            Dp = vD[(tt - 1) % 2]; O = vO[(tt - 1) % 4]
            a.I(f'v_cvt_pk_bf16_f32 v{O}, v{Dp}, v{Dp+1}')
            a.I(f'v_cvt_pk_bf16_f32 v{O+1}, v{Dp+2}, v{Dp+3}')
            a.I(f'v_cvt_pk_bf16_f32 v{O+2}, v{Dp+4}, v{Dp+5}')
            a.I(f'v_cvt_pk_bf16_f32 v{O+3}, v{Dp+6}, v{Dp+7}')
            a.I(f'buffer_store_dwordx4 {vr(O,4)}, v{vTmp+4}, s[{sOUT}:{sOUT+3}], 0 offen' + cfg.get('ost', ''))
            if cfg.get('k2extra'):
                a.I(f's_mov_b32 s{sWS+2}, 0x4000000')
                a.I(f's_mov_b32 s{sT2}, 0x2000000')
                a.I(f'buffer_store_dwordx4 {vr(O,4)}, v{vTmp+4}, s[{sWS}:{sWS+3}], s{sT2} offen' + cfg.get('ost', ''))
            a.I(f'v_add_u32 v{vTmp+4}, {4 << 18:#x}, v{vTmp+4}')
    Dp = vD[4 % 2]; O = vO[0]
    a.I('s_nop 7')
    a.I(f'v_cvt_pk_bf16_f32 v{O}, v{Dp}, v{Dp+1}')
    a.I(f'v_cvt_pk_bf16_f32 v{O+1}, v{Dp+2}, v{Dp+3}')
    a.I(f'v_cvt_pk_bf16_f32 v{O+2}, v{Dp+4}, v{Dp+5}')
    a.I(f'v_cvt_pk_bf16_f32 v{O+3}, v{Dp+6}, v{Dp+7}')
    a.I(f'buffer_store_dwordx4 {vr(O,4)}, v{vTmp+4}, s[{sOUT}:{sOUT+3}], 0 offen' + cfg.get('ost', ''))
    if cfg.get('stamps'):
        a.I(f's_cmp_eq_u32 s{sW}, 0')
        a.I('s_cbranch_scc0 K2_ST4')
        a.I('s_waitcnt vmcnt(0)')
        stamp(a, cfg, 4, sDBG, 66, vH0)
        a.L('K2_ST4')
    a.L('K2_END')
    a.I('s_endpgm')
    return name, NV, 72


def vOneConst(a, v, val):
    a.I(f'v_mov_b32 v{v}, {val}')
    return v


def build(cfg):
    a = Asm()
    seq = cfg.get('seq', 'BM')
    for ch in seq:
        if ch == 'B':
            a('; @launch kernel=bin_kernel grid=(256,1,1) block=(640,1,1) lds=32768')
        elif ch == 'M':
            a(f'; @launch kernel=main_kernel grid=(256,1,1) block=(512,1,1) lds={K2_LDS}')
        elif ch == 'n':
            a('; @launch kernel=nop_kernel grid=(1,1,1) block=(64,1,1) lds=0')
        elif ch == 'o':
            a('; @launch kernel=nopb_kernel grid=(1,1,1) block=(64,1,1) lds=0')
        elif ch == 'N':
            a('; @launch kernel=nop_kernel grid=(256,1,1) block=(512,1,1) lds=0')
    a('.amdgcn_target "amdgcn-amd-amdhsa--gfx950"')
    a('.text')
    k1 = gen_k1(a, cfg)
    k2 = gen_k2(a, cfg)
    ks = [k1, k2]
    if 'n' in seq or 'N' in seq:
        a('.globl nop_kernel\n.p2align 8\n.type nop_kernel,@function\nnop_kernel:\n    s_endpgm')
        ks.append(('nop_kernel', 8, 16))
    if 'o' in seq:
        a('.globl nopb_kernel\n.p2align 8\n.type nopb_kernel,@function\nnopb_kernel:\n    s_endpgm')
        ks.append(('nopb_kernel', 8, 16))
    a('.section .rodata,"a"')
    for k in ks:
        a('.p2align 6')
        kd(a, *k)
    return a.text()


if __name__ == '__main__':
    cfg = {}
    out = sys.argv[1] if len(sys.argv) > 1 else 'gather_scatter__tensor_product_equiv_tfn__graph.s'
    for kv in sys.argv[2:]:
        k, v = kv.split('=', 1)
        try:
            v = int(v)
        except ValueError:
            v = v.replace('_', ' ')
        cfg[k] = v
    open(out, 'w').write(build(cfg))
    print('wrote', out)
```

```python
import sys, struct

N_NODES = 10000
N_EDGES = 160000
CHUNK = 625
REC_OFF = 0
TAB_OFF = 0x800000
BRAD_OFF = 0x840000
CGW_OFF = 0x841000
BMIX_OFF = 0x842000
WS_SIZE = 0x850000
X_BYTES = N_NODES * 1024

def f2u(x):
    return struct.unpack('<I', struct.pack('<f', x))[0]
LOG2E = 1.4426950408889634
LN2 = 0.6931471805599453


class Asm:
    def __init__(self):
        self.lines = []
    def __call__(self, s=''):
        for ln in s.split('\n'):
            self.lines.append(ln)
    def I(self, s):
        self.lines.append('    ' + s)
    def L(self, name):
        self.lines.append(name + ':')
    def text(self):
        return '\n'.join(self.lines) + '\n'


def vr(base, n=1):
    return f'v{base}' if n == 1 else f'v[{base}:{base+n-1}]'
def sr(base, n=1):
    return f's{base}' if n == 1 else f's[{base}:{base+n-1}]'


def srd(a, dst, ptr, size):
    a.I(f's_mov_b32 s{dst}, s{ptr}')
    a.I(f's_and_b32 s{dst+1}, s{ptr+1}, 0xffff')
    a.I(f's_mov_b32 s{dst+2}, {size:#x}')
    a.I(f's_mov_b32 s{dst+3}, 0x20000')


def scan_dpp(a, v, full64):
    for sh in (1, 2, 4, 8):
        a.I('s_nop 1')
        a.I(f'v_add_u32_dpp v{v}, v{v}, v{v} row_shr:{sh} row_mask:0xf bank_mask:0xf')
    a.I('s_nop 1')
    a.I(f'v_add_u32_dpp v{v}, v{v}, v{v} row_bcast:15 row_mask:0xa bank_mask:0xf')
    if full64:
        a.I('s_nop 1')
        a.I(f'v_add_u32_dpp v{v}, v{v}, v{v} row_bcast:31 row_mask:0xc bank_mask:0xf')


def hist_prefix(a, vC, vS, vTot, vLane16, hist_off, base_off):
    a.I(f'ds_read_b128 {vr(vC,4)}, v{vLane16} offset:{hist_off}')
    a.I('s_waitcnt lgkmcnt(0)')
    a.I(f'v_add_u32 v{vS+2}, v{vC}, v{vC+1}')
    a.I(f'v_add_u32 v{vS+3}, v{vS+2}, v{vC+2}')
    a.I(f'v_add_u32 v{vTot}, v{vS+3}, v{vC+3}')
    a.I(f'v_mov_b32 v{vS}, v{vTot}')
    scan_dpp(a, vTot, True)
    a.I('s_nop 0')
    a.I(f'v_sub_u32 v{vS}, v{vTot}, v{vS}')
    a.I(f'v_add_u32 v{vS+1}, v{vS}, v{vC}')
    a.I(f'v_add_u32 v{vS+2}, v{vS}, v{vS+2}')
    a.I(f'v_add_u32 v{vS+3}, v{vS}, v{vS+3}')
    a.I(f'ds_write_b128 v{vLane16}, {vr(vS,4)} offset:{base_off}')


def stamp(a, cfg, idx, sdbg, tmp_s, tmp_v):
    if not cfg.get('stamps'):
        return
    a.I(f's_memrealtime s[{tmp_s}:{tmp_s+1}]')
    a.I('s_waitcnt lgkmcnt(0)')
    a.I(f'v_mov_b32 v{tmp_v}, s{tmp_s}')
    a.I(f'v_mov_b32 v{tmp_v+1}, s{sdbg}')
    a.I(f'buffer_store_dword v{tmp_v}, v{tmp_v+1}, s[{cfg["stamp_srd"]}:{cfg["stamp_srd"]+3}], 0 offen offset:{idx*4}')


def lstamp(a, cfg, i, sW):
    if not cfg.get('stamps'):
        return
    a.I(f's_memrealtime s[{80+2*i}:{81+2*i}]')
    a.I('s_waitcnt lgkmcnt(0)')


STAMP_OFF = 0x900000


def gen_k1(a, cfg):
    name = 'bin_kernel'
    NPF = cfg.get('npf1', 0)
    scaled = cfg.get('scaled', False)
    a(f'.globl {name}\n.p2align 8\n.type {name},@function\n{name}:')
    sDST, sSRC, sY, sEF, sWS, sX, sPREP = 8, 12, 16, 20, 24, 28, 32
    a.I('s_cmp_ge_u32 s2, 256')
    a.I('s_cbranch_scc1 K1_END')
    a.I('s_load_dwordx4 s[44:47], s[0:1], 0')
    a.I('s_load_dwordx4 s[48:51], s[0:1], 16')
    a.I('s_load_dwordx4 s[52:55], s[0:1], 32')
    a.I('s_load_dwordx4 s[56:59], s[0:1], 48')
    a.I('s_load_dwordx2 s[60:61], s[0:1], 80')
    if cfg.get('dbgprint'):
        a.I('s_load_dwordx2 s[72:73], s[0:1], 72')
        a.I('s_memrealtime s[74:75]')
    vT, vLane, vT4, vE, vOff = 0, 1, 2, 3, 4
    vDst, vSrc = 5, 6
    vRec = 8
    vY = 9
    vEF = 12
    vKey, vRank, vOne, vTmp = 20, 21, 22, 23
    vC, vS, vTot, vL16 = 24, 28, 32, 33
    vPrep, vPrepAddr, vPf = 34, 35, 36
    vT2 = 37
    a.I(f'v_and_b32 v{vLane}, 63, v0')
    a.I(f'v_lshlrev_b32 v{vT4}, 2, v0')
    a.I(f'v_lshrrev_b32 v{vTmp}, 6, v0')
    a.I(f'v_mov_b32 v{vOne}, 1')
    a.I(f'v_readfirstlane_b32 s4, v{vTmp}')
    a.I(f'v_mov_b32 v{vTmp}, 0')
    a.I(f'v_lshlrev_b32 v{vL16}, 4, v{vLane}')
    a.I('v_cmp_gt_u32 vcc, 256, v0')
    a.I('s_and_saveexec_b64 s[6:7], vcc')
    a.I('s_cbranch_execz K1_Z')
    a.I(f'ds_write_b32 v{vT4}, v{vTmp}')
    a.L('K1_Z')
    a.I('s_mov_b64 exec, s[6:7]')
    a.I(f's_mul_i32 s5, s2, {CHUNK}')
    a.I(f'v_add_u32 v{vE}, s5, v0')
    a.I('s_waitcnt lgkmcnt(0)')
    srd(a, sDST, 48, N_EDGES * 4)
    srd(a, sSRC, 46, N_EDGES * 4)
    srd(a, sY, 50, N_EDGES * 8)
    srd(a, sEF, 52, N_EDGES * 32)
    if cfg.get('wsbase', 0):
        a.I(f's_add_u32 s60, s60, {cfg["wsbase"] << 20:#x}')
        a.I('s_addc_u32 s61, s61, 0')
    srd(a, sWS, 60, WS_SIZE if not cfg.get('stamps') else STAMP_OFF + 0x10000)
    srd(a, sX, 44, X_BYTES)
    if cfg.get('stamps'):
        cfg['stamp_srd'] = sWS
        a.I(f's_lshl_b32 s62, s2, 6')
        a.I(f's_add_u32 s62, s62, {STAMP_OFF:#x}')
        a.I('s_cmp_eq_u32 s4, 0')
        a.I('s_cbranch_scc0 K1_ST0')
        stamp(a, cfg, 0, 62, 64, 38)
        a.L('K1_ST0')
    a.I(f'v_mov_b32 v{vPrepAddr}, 0x7ffffff0')
    a.I('s_cmp_eq_u32 s4, 9')
    a.I('s_cbranch_scc1 K1_PA')
    a.I('s_cmp_eq_u32 s4, 8')
    a.I('s_cbranch_scc0 K1_PDONE')
    a.I('s_cmp_lt_u32 s2, 32')
    a.I('s_cbranch_scc1 K1_PB')
    a.I('s_cmp_eq_u32 s2, 32')
    a.I('s_cbranch_scc0 K1_PDONE')
    srd(a, sPREP, 56, 128)
    a.I(f'v_and_b32 v{vTmp}, 3, v{vLane}')
    a.I(f'v_lshlrev_b32 v{vTmp}, 4, v{vTmp}')
    a.I(f'v_and_b32 v{vT2}, 12, v{vLane}')
    a.I(f'v_add_u32 v{vTmp}, v{vTmp}, v{vT2}')
    a.I(f'v_lshrrev_b32 v{vT2}, 4, v{vLane}')
    a.I(f'v_add_lshl_u32 v{vTmp}, v{vTmp}, v{vT2}, 1')
    a.I(f'buffer_load_ushort v{vPrep}, v{vTmp}, s[{sPREP}:{sPREP+3}], 0 offen')
    a.I(f'v_lshlrev_b32 v{vPrepAddr}, 2, v{vLane}')
    a.I(f'v_add_u32 v{vPrepAddr}, {CGW_OFF:#x}, v{vPrepAddr}')
    a.I('s_branch K1_PDONE')
    a.L('K1_PB')
    srd(a, sPREP, 54, 16 * 128 * 2)
    a.I('s_lshl_b32 s5, s2, 6')
    a.I(f'v_add_u32 v{vPrepAddr}, s5, v{vLane}')
    a.I(f'v_lshrrev_b32 v{vTmp}, 3, v{vPrepAddr}')
    a.I(f'v_bfe_u32 v{vT2}, v{vTmp}, 5, 1')
    a.I(f'v_lshlrev_b32 v{vT2}, 3, v{vT2}')
    a.I(f'v_and_b32 v{vPf}, 7, v{vPrepAddr}')
    a.I(f'v_add_u32 v{vT2}, v{vT2}, v{vPf}')
    a.I(f'v_lshlrev_b32 v{vT2}, 7, v{vT2}')
    a.I(f'v_and_b32 v{vPf}, 31, v{vTmp}')
    a.I(f'v_lshl_add_u32 v{vT2}, v{vPf}, 1, v{vT2}')
    a.I(f'v_bfe_u32 v{vPf}, v{vTmp}, 6, 1')
    a.I(f'v_lshl_add_u32 v{vT2}, v{vPf}, 6, v{vT2}')
    a.I(f'v_bfe_u32 v{vPf}, v{vTmp}, 7, 1')
    a.I(f'v_add_lshl_u32 v{vT2}, v{vT2}, v{vPf}, 1')
    a.I(f'buffer_load_ushort v{vPrep}, v{vT2}, s[{sPREP}:{sPREP+3}], 0 offen')
    a.I(f'v_lshlrev_b32 v{vPrepAddr}, 1, v{vPrepAddr}')
    a.I(f'v_add_u32 v{vPrepAddr}, {BRAD_OFF:#x}, v{vPrepAddr}')
    a.I('s_branch K1_PDONE')
    a.L('K1_PA')
    srd(a, sPREP, 58, 128 * 128 * 2)
    a.I('s_lshl_b32 s5, s2, 6')
    a.I(f'v_add_u32 v{vPrepAddr}, s5, v{vLane}')
    a.I(f'v_lshrrev_b32 v{vTmp}, 3, v{vPrepAddr}')
    a.I(f'v_bfe_u32 v{vT2}, v{vTmp}, 6, 2')
    a.I(f'v_lshlrev_b32 v{vT2}, 5, v{vT2}')
    a.I(f'v_bfe_u32 v{vPf}, v{vTmp}, 4, 2')
    a.I(f'v_lshl_add_u32 v{vT2}, v{vPf}, 3, v{vT2}')
    a.I(f'v_and_b32 v{vPf}, 7, v{vPrepAddr}')
    a.I(f'v_add_u32 v{vT2}, v{vT2}, v{vPf}')
    a.I(f'v_lshlrev_b32 v{vT2}, 7, v{vT2}')
    a.I(f'v_and_b32 v{vPf}, 15, v{vTmp}')
    a.I(f'v_lshl_add_u32 v{vT2}, v{vPf}, 1, v{vT2}')
    a.I(f'v_lshrrev_b32 v{vPf}, 9, v{vTmp}')
    a.I(f'v_lshl_add_u32 v{vT2}, v{vPf}, 5, v{vT2}')
    a.I(f'v_bfe_u32 v{vPf}, v{vTmp}, 8, 1')
    a.I(f'v_add_lshl_u32 v{vT2}, v{vT2}, v{vPf}, 1')
    a.I(f'buffer_load_ushort v{vPrep}, v{vT2}, s[{sPREP}:{sPREP+3}], 0 offen')
    a.I(f'v_lshlrev_b32 v{vPrepAddr}, 1, v{vPrepAddr}')
    a.I(f'v_add_u32 v{vPrepAddr}, {BMIX_OFF:#x}, v{vPrepAddr}')
    a.L('K1_PDONE')
    ld = cfg.get('k1ld', '')
    a.I(f'v_lshlrev_b32 v{vOff}, 2, v{vE}')
    a.I(f'buffer_load_dword v{vDst}, v{vOff}, s[{sDST}:{sDST+3}], 0 offen' + ld)
    a.I(f'buffer_load_dword v{vSrc}, v{vOff}, s[{sSRC}:{sSRC+3}], 0 offen' + ld)
    a.I(f'v_lshlrev_b32 v{vOff}, 3, v{vE}')
    a.I(f'v_lshlrev_b32 v{vT2}, 5, v{vE}')
    a.I('s_waitcnt lgkmcnt(0)')
    a.I('s_barrier')
    a.I(f'buffer_load_dwordx2 {vr(vRec,2)}, v{vOff}, s[{sY}:{sY+3}], 0 offen' + ld)
    a.I(f'buffer_load_dwordx4 {vr(vEF,4)}, v{vT2}, s[{sEF}:{sEF+3}], 0 offen' + ld)
    a.I(f'buffer_load_dwordx4 {vr(vEF+4,4)}, v{vT2}, s[{sEF}:{sEF+3}], 0 offen offset:16' + ld)
    npf = 0
    if NPF > 0:
        a.I('s_lshr_b32 s5, s2, 3')
        a.I('s_lshl_b32 s63, s4, 5')
        a.I('s_add_u32 s5, s5, s63')
        a.I('s_lshl_b32 s5, s5, 13')
        a.I(f's_cmp_lt_u32 s4, {NPF}')
        a.I(f's_cselect_b32 s5, s5, 0x7ff00000')
        a.I(f'v_lshlrev_b32 v{vPf}, 7, v{vLane}')
        a.I(f'v_add_u32 v{vPf}, s5, v{vPf}')
        a.I(f'buffer_load_dword v{vPf}, v{vPf}, s[{sX}:{sX+3}], 0 offen')
        npf = 1
    a.I(f'v_cmp_gt_u32 vcc, {CHUNK}, v0')
    a.I('s_and_saveexec_b64 s[6:7], vcc')
    a.I(f's_waitcnt vmcnt({4+npf})')
    if cfg.get('dbgprint'):
        a.I('s_memrealtime s[76:77]')
    if cfg.get('stamps'):
        a.I('s_cmp_eq_u32 s4, 0')
        a.I('s_cbranch_scc0 K1_ST2')
        a.I('s_memrealtime s[66:67]')
        a.L('K1_ST2')
    a.I(f'v_and_b32 v{vKey}, 7, v{vDst}')
    a.I(f'v_bfe_u32 v{vTmp}, v{vDst}, 3, 5')
    a.I(f'v_lshl_or_b32 v{vKey}, v{vKey}, 5, v{vTmp}')
    a.I(f'v_lshlrev_b32 v{vKey}, 2, v{vKey}')
    a.I(f'ds_add_rtn_u32 v{vRank}, v{vKey}, v{vOne}')
    a.I('s_mov_b64 exec, s[6:7]')
    a.I('s_waitcnt lgkmcnt(0)')
    a.I('s_barrier')
    hist_prefix(a, vC, vS, vTot, vL16, 0, 1024)
    for i in range(4):
        a.I(f'v_lshl_or_b32 v{vC+i}, v{vC+i}, 16, v{vS+i}')
    a.I(f'v_cmp_gt_u32 vcc, {CHUNK}, v0')
    a.I('s_waitcnt lgkmcnt(0)')
    a.I('s_and_saveexec_b64 s[6:7], vcc')
    a.I(f'ds_read_b32 v{vTmp}, v{vKey} offset:1024')
    a.I(f's_mul_i32 s5, s2, {CHUNK}')
    a.I(f'v_lshrrev_b32 v{vT2}, 8, v{vDst}')
    a.I(f's_waitcnt vmcnt({npf})')
    if cfg.get('dbgprint'):
        a.I('s_memrealtime s[78:79]')
    if cfg.get('stamps'):
        a.I('s_cmp_eq_u32 s4, 0')
        a.I('s_cbranch_scc0 K1_ST3')
        a.I('s_memrealtime s[68:69]')
        a.L('K1_ST3')
    a.I(f'v_lshl_or_b32 v{vRec+2}, v{vT2}, 14, v{vSrc}')
    a.I(f'v_mov_b32 v{vRec+3}, v{vE}')
    a.I('s_waitcnt lgkmcnt(0)')
    a.I(f'v_add_u32 v{vTmp}, v{vTmp}, v{vRank}')
    a.I(f'v_mul_u32_u24 v{vTmp}, 48, v{vTmp}')
    st = cfg.get('k1st', '')
    STG = 2048
    a.I(f'ds_write_b128 v{vTmp}, {vr(vRec,4)} offset:{STG}')
    a.I(f'ds_write_b128 v{vTmp}, {vr(vEF,4)} offset:{STG+16}')
    a.I(f'ds_write_b128 v{vTmp}, {vr(vEF+4,4)} offset:{STG+32}')
    a.I('s_mov_b64 exec, s[6:7]')
    a.I(f'v_lshlrev_b32 v{vTmp}, 4, v0')
    a.I(f's_mul_i32 s5, s2, {CHUNK*48}')
    a.I('s_waitcnt lgkmcnt(0)')
    a.I('s_barrier')
    a.I(f'ds_read_b128 {vr(vRec,4)}, v{vTmp} offset:{STG}')
    a.I(f'ds_read_b128 {vr(vEF,4)}, v{vTmp} offset:{STG+640*16}')
    a.I(f'ds_read_b128 {vr(vEF+4,4)}, v{vTmp} offset:{STG+1280*16}')
    a.I(f'v_add_u32 v{vT2}, {640*16}, v{vTmp}')
    a.I(f'v_add_u32 v{vOff}, {1280*16}, v{vTmp}')
    a.I(f'v_cmp_gt_u32 vcc, {CHUNK*3-1280}, v0')
    a.I(f'v_mov_b32 v{vKey}, 0x7ff00000')
    a.I(f'v_cndmask_b32 v{vOff}, v{vKey}, v{vOff}, vcc')
    a.I('s_waitcnt lgkmcnt(2)')
    if not cfg.get('k1nost'):
        a.I(f'buffer_store_dwordx4 {vr(vRec,4)}, v{vTmp}, s[{sWS}:{sWS+3}], s5 offen' + st)
    a.I('s_waitcnt lgkmcnt(1)')
    if not cfg.get('k1nost'):
        a.I(f'buffer_store_dwordx4 {vr(vEF,4)}, v{vT2}, s[{sWS}:{sWS+3}], s5 offen' + st)
    a.I('s_waitcnt lgkmcnt(0)')
    if not cfg.get('k1nost'):
        a.I(f'buffer_store_dwordx4 {vr(vEF+4,4)}, v{vOff}, s[{sWS}:{sWS+3}], s5 offen' + st)
    a.I('s_cmp_eq_u32 s4, 0')
    a.I('s_cbranch_scc0 K1_NT')
    a.I('s_lshl_b32 s5, s2, 10')
    a.I(f's_add_u32 s5, s5, {TAB_OFF:#x}')
    a.I(f'buffer_store_dwordx4 {vr(vC,4)}, v{vL16}, s[{sWS}:{sWS+3}], s5 offen' + st)
    if cfg.get('stamps'):
        stamp(a, cfg, 1, 62, 64, 38)
        a.I('v_mov_b32 v38, s66')
        a.I(f'buffer_store_dword v38, v39, s[{sWS}:{sWS+3}], 0 offen offset:8')
        a.I('v_mov_b32 v40, s68')
        a.I(f'buffer_store_dword v40, v39, s[{sWS}:{sWS+3}], 0 offen offset:12')
    a.L('K1_NT')
    if cfg.get('stamps'):
        a.I('s_memrealtime s[70:71]')
        a.I('s_lshl_b32 s5, s4, 2')
        a.I('s_add_u32 s5, s5, s62')
        a.I('s_waitcnt lgkmcnt(0)')
        a.I('v_mov_b32 v41, s70')
        a.I('v_mov_b32 v42, s5')
        a.I(f'buffer_store_dword v41, v42, s[{sWS}:{sWS+3}], 0 offen offset:16')
        if cfg.get('k1wait'):
            a.I('s_waitcnt vmcnt(0)')
            a.I('s_memrealtime s[70:71]')
            a.I('s_waitcnt lgkmcnt(0)')
            a.I('v_mov_b32 v41, s70')
            a.I(f'buffer_store_dword v41, v42, s[{sWS}:{sWS+3}], 0 offen offset:16')
    if cfg.get('dbgprint'):
        a.I('s_memrealtime s[80:81]')
        a.I('s_waitcnt lgkmcnt(0)')
        a.I('s_and_b32 s5, s2, 63')
        a.I('s_cmp_eq_u32 s5, 0')
        a.I('s_cbranch_scc0 K1_DBGSKIP')
        a.I('s_cmp_eq_u32 s4, 9')
        a.I('s_cbranch_scc0 K1_DBGSKIP')
        a.I('s_mov_b32 s84, s72')
        a.I('s_and_b32 s85, s73, 0xffff')
        a.I('s_mov_b32 s86, 256')
        a.I('s_mov_b32 s87, 0x20000')
        a.I('s_lshr_b32 s5, s2, 6')
        a.I('s_lshl_b32 s5, s5, 4')
        a.I('v_mov_b32 v42, s5')
        for i, r in enumerate((76, 78, 80)):
            a.I(f's_sub_u32 s5, s{r}, s74')
            a.I('v_mov_b32 v41, s5')
            a.I(f'buffer_store_dword v41, v42, s[84:87], 0 offen offset:{4*i}')
        a.L('K1_DBGSKIP')
    a.I('s_cmp_eq_u32 s4, 9')
    a.I('s_cbranch_scc1 K1_PS16')
    a.I('s_cmp_eq_u32 s4, 8')
    a.I('s_cbranch_scc0 K1_END')
    a.I('s_cmp_lt_u32 s2, 32')
    a.I('s_cbranch_scc1 K1_PSR')
    a.I('s_cmp_eq_u32 s2, 32')
    a.I('s_cbranch_scc0 K1_END')
    a.I(f'v_lshlrev_b32 v{vPrep}, 16, v{vPrep}')
    if scaled:
        a.I(f'v_mul_f32 v{vPrep}, {f2u(-LN2):#x}, v{vPrep}')
    a.I(f'buffer_store_dword v{vPrep}, v{vPrepAddr}, s[{sWS}:{sWS+3}], 0 offen')
    a.I('s_branch K1_END')
    a.L('K1_PSR')
    if scaled:
        a.I(f'v_lshlrev_b32 v{vPrep}, 16, v{vPrep}')
        a.I(f'v_mul_f32 v{vPrep}, {f2u(-LOG2E):#x}, v{vPrep}')
        a.I(f'v_cvt_pk_bf16_f32 v{vPrep}, v{vPrep}, v{vPrep}')
    a.L('K1_PS16')
    a.I(f'buffer_store_short v{vPrep}, v{vPrepAddr}, s[{sWS}:{sWS+3}], 0 offen')
    a.L('K1_END')
    a.I('s_endpgm')
    return name, 44, (96 if cfg.get('dbgprint') else 72)


def kd(a, name, nv, ns):
    a(f""".amdhsa_kernel {name}
  .amdhsa_next_free_vgpr {nv}
  .amdhsa_next_free_sgpr {ns}
  .amdhsa_accum_offset {(nv + 3) // 4 * 4}
  .amdhsa_group_segment_fixed_size 0
  .amdhsa_kernarg_size 88
  .amdhsa_user_sgpr_count 2
  .amdhsa_user_sgpr_kernarg_segment_ptr 1
  .amdhsa_system_sgpr_workgroup_id_x 1
  .amdhsa_float_denorm_mode_32 3
.end_amdhsa_kernel""")


HIST = 0
BASE = 1024
MAXR = 2048
ZERO16 = 2064
DEG = 2304
RNK = 2560
PATTERN = [0,1,2,3,4,5,6,0,7,6,5,4,0,3,7,2,7,4,5,6,1,3,2,1,4,5,3,0,7,6,2,1,7,1,2,6,3,5,4,0]
WL = 4096
CAP = 1024
ENT = 8192
YS = 12800
EFS = 21248
AGG = 55040
AGG_STRIDE = 272
CST = AGG + 160 * AGG_STRIDE
K2_LDS = CST + 6 * 1024


def gen_k2(a, cfg):
    name = 'main_kernel'
    scaled = cfg.get('scaled', False)
    NPF1 = cfg.get('npf1', 0)
    NPF2 = cfg.get('npf2', 0)
    a(f'.globl {name}\n.p2align 8\n.type {name},@function\n{name}:')
    sX, sWS, sOUT = 8, 12, 16
    sW, sB, sKEY, sNW, sRND, sMAXR = 4, 5, 6, 7, 20, 21
    sSEG0, sN, sCNT, sXO, sREM = 22, 23, 24, 25, 26
    sT0, sT1, sT2 = 27, 28, 29
    sMLO, sMHI = 30, 32
    sCL = 34
    sSAVE = 36
    sV0, sV1 = 38, 40
    sE = 48
    sNODE = 68
    sDBG = 64
    sBMF = 65
    vLane, vL16, vL15 = 1, 2, 3
    vTmp = 4
    vEntA, vYA, vEfA = 12, 13, 14
    vAL_A, vAH_A = 15, 16
    vENTc, vENTn = 17, 18
    vDummy = 19
    vPat, vNodePat = 50, 51
    vWc, vWn = 20, 22
    vYraw = 24
    vYf = 26
    vWf = 30
    vHS = 34
    vT = 38
    vR = 42
    vAL, vAH = 52, 56
    vACC = 64
    D = cfg.get('D', 4)
    vXR = 104
    def xrs(k):
        return vXR + 4*k if k < 4 else 232 + 4*(k - 4)
    vTP = 120
    vH0, vH1 = 136, 152
    vBR = 168
    vCG = 184
    vBM = 200
    NV = 232 if D <= 4 else 248
    vRecA, vRecB = 200, 212
    vP = 136

    def bm_loads():
        a.I(f's_and_b32 s{sT0}, s{sW}, 3')
        a.I(f's_lshl_b32 s{sT0}, s{sT0}, 13')
        a.I(f's_add_u32 s{sT0}, s{sT0}, {BMIX_OFF:#x}')
        a.I(f's_add_u32 s{sT1}, s{sT0}, 4096')
        for t in range(2):
            for ks in range(4):
                a.I(f'buffer_load_dwordx4 {vr(vBM+16*t+4*ks,4)}, v{vL16}, s[{sWS}:{sWS+3}], s{sT0 if t == 0 else sT1} offen offset:{1024*ks}')

    a.I('s_cmp_ge_u32 s2, 256')
    a.I('s_cbranch_scc1 K2_END')
    a.I('s_load_dwordx2 s[42:43], s[0:1], 80')
    a.I('s_load_dwordx2 s[44:45], s[0:1], 0')
    a.I('s_load_dwordx2 s[46:47], s[0:1], 64')
    vChunk, vTab, vInc, vCst = vP, vP+1, vP+3, vP+4
    a.I(f'v_lshrrev_b32 v{vTmp}, 6, v0')
    a.I(f'v_and_b32 v{vLane}, 63, v0')
    a.I(f'v_readfirstlane_b32 s{sW}, v{vTmp}')
    a.I(f'v_lshlrev_b32 v{vL16}, 4, v{vLane}')
    a.I(f'v_and_b32 v{vL15}, 15, v{vLane}')
    a.I(f's_mov_b32 s{sB}, s2')
    a.I(f's_and_b32 s{sKEY}, s2, 7')
    a.I(f's_lshl_b32 s{sKEY}, s{sKEY}, 5')
    a.I(f's_lshr_b32 s{sT0}, s2, 3')
    a.I(f's_or_b32 s{sKEY}, s{sKEY}, s{sT0}')
    a.I(f'v_and_b32 v{vChunk}, 31, v{vLane}')
    a.I(f's_lshl_b32 s{sT0}, s{sW}, 5')
    a.I(f'v_add_u32 v{vChunk}, s{sT0}, v{vChunk}')
    a.I(f'v_lshlrev_b32 v{vTmp}, 10, v{vChunk}')
    a.I(f's_lshl_b32 s{sT0}, s{sKEY}, 2')
    a.I(f's_add_u32 s{sT0}, s{sT0}, {TAB_OFF:#x}')
    a.I(f's_lshl_b32 s{sT1}, s{sW}, 10')
    a.I(f's_add_u32 s{sT1}, s{sT1}, {BRAD_OFF:#x}')
    a.I(f's_cmp_lt_u32 s{sW}, 5')
    a.I(f's_cselect_b32 s{sT1}, s{sT1}, 0x7ff00000')
    a.I('s_waitcnt lgkmcnt(0)')
    if cfg.get('wsbase', 0):
        a.I(f's_add_u32 s42, s42, {cfg["wsbase"] << 20:#x}')
        a.I('s_addc_u32 s43, s43, 0')
    srd(a, sWS, 42, WS_SIZE if not cfg.get('stamps') else STAMP_OFF + 0x10000)
    a.I(f'buffer_load_dword v{vTab}, v{vTmp}, s[{sWS}:{sWS+3}], s{sT0} offen')
    a.I(f'buffer_load_dwordx4 {vr(vCst,4)}, v{vL16}, s[{sWS}:{sWS+3}], s{sT1} offen')
    if cfg.get('rwp', 0):
        a.I(f's_lshr_b32 s{sT0}, s{sB}, 3')
        a.I(f's_lshl_b32 s{sT0}, s{sT0}, 3')
        a.I(f's_add_u32 s{sT0}, s{sT0}, s{sW}')
        a.I(f's_mul_i32 s{sT0}, s{sT0}, 30000')
        a.I(f's_and_b32 s{sT1}, s{sB}, 7')
        a.I(f's_mul_i32 s{sT1}, s{sT1}, 3750')
        a.I(f's_add_u32 s{sT0}, s{sT0}, s{sT1}')
        a.I(f's_sub_i32 s{sT0}, s{sT0}, {cfg.get("rwpoff", 700)}')
        a.I(f's_max_i32 s{sT0}, s{sT0}, 0')
        a.I(f'v_lshlrev_b32 v{vTmp}, 7, v{vLane}')
        a.I(f'v_cmp_gt_u32 vcc, {cfg.get("rwplines", 42)}, v{vLane}')
        a.I(f'v_mov_b32 v{vTmp+1}, 0x7ff00000')
        a.I(f'v_cndmask_b32 v{vTmp}, v{vTmp+1}, v{vTmp}, vcc')
        a.I(f'buffer_load_dword v{vDummy}, v{vTmp}, s[{sWS}:{sWS+3}], s{sT0} offen')
    srd(a, sX, 44, X_BYTES)
    srd(a, sOUT, 46, X_BYTES)
    if cfg.get('stamps'):
        cfg['stamp_srd'] = sWS
        a.I(f's_lshl_b32 s{sDBG}, s2, 7')
        a.I(f's_add_u32 s{sDBG}, s{sDBG}, {STAMP_OFF + 0x8000:#x}')
    lstamp(a, cfg, 0, sW)
    a.I(f'v_mov_b32 v{vTmp+1}, 0')
    a.I(f'v_lshlrev_b32 v{vTmp+2}, 2, v0')
    a.I(f'v_and_b32 v{vTmp+3}, 0x400, v{vTmp+2}')
    a.I(f'v_add_u32 v{vTmp+2}, v{vTmp+2}, v{vTmp+3}')
    a.I(f'ds_write_b32 v{vTmp+2}, v{vTmp+1}')
    a.I(f'v_mov_b32 v{vPat}, 63')
    cnt = [0]*8
    for r, w in enumerate(PATTERN):
        a.I(f'v_writelane_b32 v{vPat}, {w | (cnt[w] << 3)}, {r}')
        cnt[w] += 1
    for i in range(40):
        a.I(f'v_mov_b32 v{vACC+i}, 0')
    a.I(f's_mov_b32 s{sMLO}, 0x0f0f0f0f')
    a.I(f's_mov_b32 s{sMLO+1}, 0x0f0f0f0f')
    a.I(f's_mov_b32 s{sMHI}, 0xf0f0f0f0')
    a.I(f's_mov_b32 s{sMHI+1}, 0xf0f0f0f0')
    a.I(f's_mov_b32 s{sCL}, {f2u(-LOG2E):#x}')
    a.I(f's_mov_b32 s{sCL+1}, {f2u(-LOG2E):#x}')
    a.I(f's_mov_b32 s{sRND}, 0')
    a.I(f's_mov_b32 s{sBMF}, 0')
    a.I('s_waitcnt lgkmcnt(0)')
    a.I('s_barrier')
    a.I('s_waitcnt vmcnt(%d)' % (1 if cfg.get('rwp', 0) else 0))
    lstamp(a, cfg, 1, sW)
    vCntP, vExcP, vRbP = vTmp+1, vTmp+2, vTmp+3
    a.I(f'v_lshrrev_b32 v{vInc}, 16, v{vTab}')
    a.I(f'v_lshl_add_u32 v{vTmp}, v{vLane}, 4, s{sW}' if False else f'v_mov_b32 v{vTmp+4}, {CHUNK}')
    a.I(f'v_and_b32 v{vRbP}, 0xffff, v{vTab}')
    a.I(f'v_mov_b32 v{vCntP}, v{vInc}')
    a.I(f'v_mad_u32_u24 v{vRbP}, v{vChunk}, v{vTmp+4}, v{vRbP}')
    a.I(f's_min_u32 s{sT1}, s{sW}, 5')
    a.I(f's_lshl_b32 s{sT1}, s{sT1}, 10')
    a.I(f's_add_u32 s{sT1}, s{sT1}, {CST}')
    a.I(f'v_add_u32 v{vTmp}, s{sT1}, v{vL16}')
    a.I(f'ds_write_b128 v{vTmp}, {vr(vCst,4)}')
    scan_dpp(a, vInc, False)
    a.I('s_nop 0')
    a.I(f'v_sub_u32 v{vExcP}, v{vInc}, v{vCntP}')
    a.I(f'v_readlane_b32 s{sNW}, v{vInc}, 31')
    a.I(f'v_mov_b32 v{vTmp+4}, {MAXR}')
    a.I('s_nop 2')
    a.I(f's_add_u32 s{sT0}, s{sNW}, 127')
    a.I(f's_lshr_b32 s{sT0}, s{sT0}, 7')
    a.I(f'v_mov_b32 v{vTmp}, s{sT0}')
    a.I(f'ds_max_u32 v{vTmp+4}, v{vTmp}')
    a.L('K2_ROUND')
    vK, vHi, vAd, vVal = vP, vP+1, vP+2, vP+3
    a.I(f's_lshl_b32 s{sT0}, s{sRND}, 7')
    a.I(f's_lshl_b32 s{sT1}, s{sW}, 9')
    a.I(f'v_sub_u32 v{vK}, s{sT0}, v{vExcP}')
    a.I(f's_add_u32 s{sT1}, s{sT1}, {WL}')
    a.I(f'v_add_u32 v{vHi}, 128, v{vK}')
    a.I(f'v_max_i32 v{vAd}, 0, v{vK}')
    a.I(f'v_lshrrev_b32 v{vTmp}, 5, v{vLane}')
    a.I(f'v_min_i32 v{vHi}, v{vHi}, v{vCntP}')
    a.I(f'v_add_u32 v{vAd}, v{vAd}, v{vTmp}')
    a.I(f'v_add_u32 v{vVal}, v{vRbP}, v{vAd}')
    a.I(f'v_sub_u32 v{vHi}, v{vHi}, v{vAd}')
    a.I(f'v_sub_u32 v{vAd}, v{vAd}, v{vK}')
    a.I(f'v_lshl_add_u32 v{vAd}, v{vAd}, 2, s{sT1}')
    a.L('K2_EXP')
    a.I(f'v_cmp_lt_i32 vcc, 0, v{vHi}')
    a.I('s_and_b64 exec, exec, vcc')
    a.I('s_cbranch_scc0 K2_EXPD')
    a.I(f'ds_write_b32 v{vAd}, v{vVal}')
    a.I(f'v_add_u32 v{vHi}, -2, v{vHi}')
    a.I(f'v_add_u32 v{vVal}, 2, v{vVal}')
    a.I(f'v_add_u32 v{vAd}, 8, v{vAd}')
    a.I('s_branch K2_EXP')
    a.L('K2_EXPD')
    a.I('s_mov_b64 exec, -1')
    a.I(f'v_lshl_add_u32 v{vTmp}, v{vLane}, 2, s{sT1}')
    a.I(f's_sub_i32 s{sT2}, s{sNW}, s{sT0}')
    a.I(f'ds_read_b32 v{vP}, v{vTmp}')
    a.I(f'ds_read_b32 v{vP+1}, v{vTmp} offset:256')
    a.I(f'v_cmp_gt_i32 s[{sV0}:{sV0+1}], s{sT2}, v{vLane}')
    a.I(f'v_add_u32 v{vTmp}, 64, v{vLane}')
    a.I(f'v_cmp_gt_i32 s[{sV1}:{sV1+1}], s{sT2}, v{vTmp}')
    a.I(f'v_mov_b32 v{vTmp}, 0x7ffffff0')
    a.I('s_waitcnt lgkmcnt(0)')
    a.I(f'v_mul_u32_u24 v{vP}, 48, v{vP}')
    a.I(f'v_mul_u32_u24 v{vP+1}, 48, v{vP+1}')
    a.I(f'v_cndmask_b32 v{vP}, v{vTmp}, v{vP}, s[{sV0}:{sV0+1}]')
    a.I(f'v_cndmask_b32 v{vP+1}, v{vTmp}, v{vP+1}, s[{sV1}:{sV1+1}]')
    lstamp(a, cfg, 2, sW)
    for rec, vo in ((vRecA, vP), (vRecB, vP+1)):
        a.I(f'buffer_load_dwordx4 {vr(rec,4)}, v{vo}, s[{sWS}:{sWS+3}], 0 offen')
    vOne = vP+2
    a.I(f'v_mov_b32 v{vOne}, 1')
    a.I(f'v_lshlrev_b32 v{vP+10}, 2, v{vLane}')
    a.I('s_waitcnt vmcnt(0)')
    lstamp(a, cfg, 3, sW)
    vBin = (vP+4, vP+5); vEnt = (vP+6, vP+7); vRank = (vP+8, vP+9); vDl = (vP+22, vP+23)
    for i, rec in enumerate((vRecA, vRecB)):
        a.I(f'v_bfe_u32 v{vDl[i]}, v{rec+2}, 14, 6')
        a.I(f'v_lshlrev_b32 v{vDl[i]}, 2, v{vDl[i]}')
    def ef_loads():
        for rec, vo in ((vRecA, vP), (vRecB, vP+1)):
            for q in (1, 2):
                a.I(f'buffer_load_dwordx4 {vr(rec+4*q,4)}, v{vo}, s[{sWS}:{sWS+3}], 0 offen offset:{16*q}')
    a.I(f's_cmp_eq_u32 s{sRND}, 0')
    a.I('s_cbranch_scc1 K2_R0')
    ef_loads()
    a.I('s_branch K2_OWNED')
    a.L('K2_R0')
    for i, m in enumerate((sV0, sV1)):
        a.I(f's_mov_b64 exec, s[{m}:{m+1}]')
        a.I(f's_cbranch_execz K2_D{i}')
        a.I(f'ds_add_u32 v{vDl[i]}, v{vOne} offset:{DEG}')
        a.L(f'K2_D{i}')
    a.I('s_mov_b64 exec, -1')
    a.I(f'v_sub_u32 v{vP+12}, 63, v{vLane}')
    a.I(f's_mul_i32 s{sT0}, s{sW}, 5')
    a.I(f'v_mov_b32 v{vP+13}, 0')
    a.I('s_waitcnt lgkmcnt(0)')
    a.I('s_barrier')
    lstamp(a, cfg, 4, sW)
    ef_loads()
    if NPF2 > 0:
        a.I(f's_lshr_b32 s{sT1}, s{sB}, 3')
        a.I(f's_add_u32 s{sT2}, s{sW}, {NPF1}')
        a.I(f's_lshl_b32 s{sT2}, s{sT2}, 5')
        a.I(f's_add_u32 s{sT1}, s{sT1}, s{sT2}')
        a.I(f's_lshl_b32 s{sT1}, s{sT1}, 13')
        a.I(f's_cmp_lt_u32 s{sW}, {NPF2}')
        a.I(f's_cselect_b32 s{sT1}, s{sT1}, 0x7ff00000')
        a.I(f'v_lshlrev_b32 v{vTmp}, 7, v{vLane}')
        a.I(f'v_add_u32 v{vTmp}, s{sT1}, v{vTmp}')
        a.I(f'buffer_load_dword v{vDummy}, v{vTmp}, s[{sX}:{sX+3}], 0 offen')
    a.I(f'ds_read_b32 v{vP+11}, v{vP+10} offset:{DEG}')
    for i, rec in enumerate((vRecA, vRecB)):
        a.I(f'v_and_b32 v{vBin[i]}, 0x3fff, v{rec+2}')
    a.I('s_waitcnt lgkmcnt(0)')
    a.I(f'v_lshl_add_u32 v{vP+11}, v{vP+11}, 6, v{vP+12}')
    a.I('s_nop 0')
    for i in range(5):
        a.I(f'v_readlane_b32 s{sNODE+i}, v{vP+11}, s{sT0}')
        a.I(f's_add_u32 s{sT0}, s{sT0}, 1')
    a.I('s_nop 0')
    for i in range(5):
        a.I(f'v_cmp_gt_u32 vcc, s{sNODE+i}, v{vP+11}')
        a.I('s_nop 1')
        a.I(f'v_addc_co_u32 v{vP+13}, vcc, 0, v{vP+13}, vcc')
    a.I(f'ds_add_u32 v{vP+10}, v{vP+13} offset:{RNK}')
    a.I('s_waitcnt lgkmcnt(0)')
    a.I('s_barrier')
    a.I(f'ds_read_b32 v{vP+11}, v{vP+10} offset:{RNK}')
    a.I('s_waitcnt lgkmcnt(0)')
    a.I(f'v_lshlrev_b32 v{vP+11}, 2, v{vP+11}')
    a.I(f'ds_bpermute_b32 v{vNodePat}, v{vP+11}, v{vPat}')
    a.I('s_waitcnt lgkmcnt(0)')
    a.L('K2_OWNED')
    for i in range(2):
        a.I(f'ds_bpermute_b32 v{vP+24+i}, v{vDl[i]}, v{vNodePat}')
    for i, rec in enumerate((vRecA, vRecB)):
        a.I(f'v_and_b32 v{vBin[i]}, 0x3fff, v{rec+2}')
        a.I(f'v_mul_u32_u24 v{vP+10+i}, 838, v{vBin[i]}')
        a.I(f'v_lshlrev_b32 v{vEnt[i]}, 10, v{vBin[i]}')
        a.I(f'v_lshrrev_b32 v{vP+10+i}, 18, v{vP+10+i}')
    a.I('s_waitcnt lgkmcnt(0)')
    for i in range(2):
        a.I(f'v_and_b32 v{vTmp}, 7, v{vP+24+i}')
        a.I(f'v_lshl_add_u32 v{vP+10+i}, v{vTmp}, 5, v{vP+10+i}')
        a.I(f'v_lshlrev_b32 v{vBin[i]}, 2, v{vP+10+i}')
        a.I(f'v_and_b32 v{vTmp}, 0x38, v{vP+24+i}')
        a.I(f'v_or_b32 v{vEnt[i]}, v{vEnt[i]}, v{vTmp}')
    for i, m in enumerate((sV0, sV1)):
        a.I(f's_mov_b64 exec, s[{m}:{m+1}]')
        a.I(f's_cbranch_execz K2_H{i}')
        a.I(f'ds_add_rtn_u32 v{vRank[i]}, v{vBin[i]}, v{vOne} offset:{HIST}')
        a.L(f'K2_H{i}')
    a.I('s_mov_b64 exec, -1')
    for sl in range(5):
        a.I(f's_add_u32 s{sT0}, s{sW}, {sl << 3}')
        a.I(f'v_cmp_eq_u32 vcc, s{sT0}, v{vNodePat}')
        a.I(f's_ff1_i32_b64 s{sNODE+sl}, vcc')
        a.I(f's_mul_i32 s{sNODE+sl}, s{sNODE+sl}, {4*AGG_STRIDE}')
    a.I(f'v_mov_b32 v{vTmp}, {MAXR}')
    a.I('s_waitcnt lgkmcnt(0)')
    a.I('s_barrier')
    lstamp(a, cfg, 5, sW)
    vC, vS, vTot = vP+12, vP+16, vP+20
    a.I(f'ds_read_b32 v{vTmp+5}, v{vTmp}')
    hist_prefix(a, vC, vS, vTot, vL16, HIST, BASE)
    a.I(f'v_readfirstlane_b32 s{sMAXR}, v{vTmp+5}')
    a.I(f's_lshl_b32 s{sT0}, s{sW}, 3')
    a.I(f'v_readlane_b32 s{sSEG0}, v{vS}, s{sT0}')
    a.I(f's_add_u32 s{sT0}, s{sT0}, 8')
    a.I(f's_min_u32 s{sT0}, s{sT0}, 63')
    a.I(f'v_readlane_b32 s{sT1}, v{vS}, s{sT0}')
    a.I(f'v_readlane_b32 s{sT2}, v{vTot}, 63')
    a.I('s_waitcnt lgkmcnt(0)')
    a.I(f'ds_read_b32 v{vP+10}, v{vBin[0]} offset:{BASE}')
    a.I(f'ds_read_b32 v{vP+11}, v{vBin[1]} offset:{BASE}')
    a.I(f's_cmp_eq_u32 s{sW}, 7')
    a.I(f's_cselect_b32 s{sT1}, s{sT2}, s{sT1}')
    a.I(f's_sub_u32 s{sN}, s{sT1}, s{sSEG0}')
    a.I('s_waitcnt lgkmcnt(0)')
    for i in range(2):
        a.I(f'v_add_u32 v{vRank[i]}, v{vRank[i]}, v{vP+10+i}')
        a.I(f'v_lshlrev_b32 v{vP+10+i}, 2, v{vRank[i]}')
    for i, m in enumerate((sV0, sV1)):
        a.I(f's_mov_b64 exec, s[{m}:{m+1}]')
        a.I(f's_cbranch_execz K2_S{i}')
        a.I(f'ds_write_b32 v{vP+10+i}, v{vEnt[i]} offset:{ENT}')
        a.L(f'K2_S{i}')
    a.I('s_mov_b64 exec, -1')
    a.I(f'v_add_u32 v{vEntA}, s{sSEG0}, v{vL15}')
    a.I(f'v_lshlrev_b32 v{vEntA}, 2, v{vEntA}')
    a.I(f'v_cmp_gt_i32 vcc, s{sN}, v{vL15}')
    a.I('s_waitcnt lgkmcnt(0)')
    a.I('s_barrier')
    lstamp(a, cfg, 6, sW)
    a.I(f'ds_read_b32 v{vENTc}, v{vEntA} offset:{ENT}')
    a.I(f'v_mov_b32 v{vTmp}, 0')
    a.I(f'v_lshlrev_b32 v{vTmp+4}, 2, v0')
    a.I(f's_cmp_lt_u32 s{sW}, 4')
    a.I('s_cbranch_scc0 K2_Z2')
    a.I(f'ds_write_b32 v{vTmp+4}, v{vTmp} offset:{HIST}')
    a.L('K2_Z2')
    a.I('s_waitcnt lgkmcnt(0)')
    a.I(f'v_cndmask_b32 v{vENTc}, 0, v{vENTc}, vcc')
    a.I('s_nop 0')
    for j in range(D + 1):
        a.I(f'v_readlane_b32 s{sE+j}, v{vENTc}, {j}')
    a.I('s_nop 3')
    for j in range(D):
        a.I(f's_and_b32 s{sXO}, s{sE+j}, 0xfffffc00')
        a.I(f'buffer_load_dwordx4 {vr(xrs(j),4)}, v{vL16}, s[{sX}:{sX+3}], s{sXO} offen' + cfg.get('xld', ''))
    a.I(f's_and_b32 s{sXO}, s{sE+D}, 0xfffffc00')
    a.I(f's_waitcnt vmcnt({D})')
    for i, (m, rec) in enumerate(((sV0, vRecA), (sV1, vRecB))):
        a.I(f's_mov_b64 exec, s[{m}:{m+1}]')
        a.I(f's_cbranch_execz K2_T{i}')
        a.I(f'v_lshlrev_b32 v{vTmp+4}, 3, v{vRank[i]}')
        a.I(f'ds_write_b64 v{vTmp+4}, {vr(rec,2)} offset:{YS}')
        a.I(f'v_lshlrev_b32 v{vTmp+5}, 5, v{vRank[i]}')
        a.I(f'ds_write_b128 v{vTmp+5}, {vr(rec+4,4)} offset:{EFS}')
        a.I(f'ds_write_b128 v{vTmp+5}, {vr(rec+8,4)} offset:{EFS+16}')
        a.L(f'K2_T{i}')
    a.I('s_mov_b64 exec, -1')
    a.I(f'v_add_u32 v{vTmp}, {CST}, v{vL16}')
    for q in range(4):
        a.I(f'ds_read_b128 {vr(vBR+4*q,4)}, v{vTmp} offset:{1024*q}')
    a.I(f'v_and_b32 v{vTmp+4}, 3, v{vLane}')
    a.I(f'v_lshlrev_b32 v{vTmp+4}, 6, v{vTmp+4}')
    a.I(f'v_add_u32 v{vTmp+4}, {CST+4096}, v{vTmp+4}')
    for q in range(4):
        a.I(f'ds_read_b128 {vr(vCG+4*q,4)}, v{vTmp+4} offset:{16*q}')

    def w_compute(dst):
        ops = []
        ops.append(f'v_lshlrev_b32 v{vYf}, 16, v{vYraw}')
        ops.append(f'v_and_b32 v{vYf+1}, 0xffff0000, v{vYraw}')
        ops.append(f'v_lshlrev_b32 v{vYf+2}, 16, v{vYraw+1}')
        ops.append(f'v_and_b32 v{vYf+3}, 0xffff0000, v{vYraw+1}')
        for f in range(4):
            yp = vYf + (f & 2)
            s = f & 1
            for h in range(2):
                cg = vCG + 4*f + 2*h
                if f == 0:
                    ops.append(f'v_pk_mul_f32 {vr(vWf+2*h,2)}, {vr(cg,2)}, {vr(yp,2)} op_sel:[0,{s}] op_sel_hi:[1,{s}]')
                else:
                    ops.append(f'v_pk_fma_f32 {vr(vWf+2*h,2)}, {vr(cg,2)}, {vr(yp,2)}, {vr(vWf+2*h,2)} op_sel:[0,{s},0] op_sel_hi:[1,{s},1]')
        ops.append(f'v_cvt_pk_bf16_f32 v{dst}, v{vWf}, v{vWf+1}')
        ops.append(f'v_cvt_pk_bf16_f32 v{dst+1}, v{vWf+2}, v{vWf+3}')
        return ops

    def h_mfma():
        ops = []
        for p, H in ((0, vH0), (1, vH1)):
            ops.append(f'v_mfma_f32_32x32x16_bf16 {vr(H,16)}, {vr(vAL,4)}, {vr(vBR+8*p,4)}, 0')
            ops.append(f'v_mfma_f32_32x32x16_bf16 {vr(H,16)}, {vr(vAH,4)}, {vr(vBR+8*p+4,4)}, {vr(H,16)}')
        return ops

    def hpair(q):
        if q == 7:
            return vHS, vHS + 2
        qq = q % 8
        return vH0 + 2*qq, vH1 + 2*qq

    def z_ops(q):
        h0, h1 = hpair(q)
        if scaled:
            return []
        return [f'v_pk_mul_f32 {vr(vT,2)}, {vr(h0,2)}, s[{sCL}:{sCL+1}]',
                f'v_pk_mul_f32 {vr(vT+2,2)}, {vr(h1,2)}, s[{sCL}:{sCL+1}]']

    def exp_ops(q):
        h0, h1 = hpair(q)
        if scaled:
            return [f'v_exp_f32 v{vT}, v{h0}', f'v_exp_f32 v{vT+1}, v{h0+1}',
                    f'v_exp_f32 v{vT+2}, v{h1}', f'v_exp_f32 v{vT+3}, v{h1+1}']
        return [f'v_exp_f32 v{vT+i}, v{vT+i}' for i in range(4)]

    add_ops = [f'v_pk_add_f32 {vr(vT,2)}, {vr(vT,2)}, 1.0 op_sel_hi:[1,0]',
               f'v_pk_add_f32 {vr(vT+2,2)}, {vr(vT+2,2)}, 1.0 op_sel_hi:[1,0]']
    rcp_ops = [f'v_rcp_f32 v{vT+i}, v{vT+i}' for i in range(4)]

    def r_ops(q):
        h0, h1 = hpair(q)
        rb = vR + 4*(q % 2)
        return [f'v_pk_mul_f32 {vr(rb,2)}, {vr(h0,2)}, {vr(vT,2)}',
                f'v_pk_mul_f32 {vr(rb+2,2)}, {vr(h1,2)}, {vr(vT+2,2)}']

    a.I(f'v_lshrrev_b32 v{vTmp}, 2, v{vLane}')
    a.I(f'v_add_u32 v{vYA}, s{sSEG0}, v{vTmp}')
    a.I(f'v_lshlrev_b32 v{vYA}, 3, v{vYA}')
    a.I(f'v_bfe_u32 v{vTmp}, v{vLane}, 3, 2')
    a.I(f'v_and_b32 v{vTmp+4}, 3, v{vLane}')
    a.I(f'v_lshl_add_u32 v{vTmp}, v{vTmp}, 2, v{vTmp+4}')
    a.I(f'v_add_u32 v{vTmp}, s{sSEG0}, v{vTmp}')
    a.I(f'v_lshlrev_b32 v{vTmp}, 5, v{vTmp}')
    a.I(f'v_lshrrev_b32 v{vTmp+4}, 5, v{vLane}')
    a.I(f'v_lshl_add_u32 v{vEfA}, v{vTmp+4}, 4, v{vTmp}')
    a.I(f'v_add_u32 v{vEfA}, {EFS}, v{vEfA}')
    a.I(f'v_mov_b32 v{vTmp}, {ZERO16}')
    a.I(f'v_cndmask_b32 v{vAL_A}, v{vTmp}, v{vEfA}, s[{sMLO}:{sMLO+1}]')
    a.I(f'v_cndmask_b32 v{vAH_A}, v{vTmp}, v{vEfA}, s[{sMHI}:{sMHI+1}]')
    for i in range(8):
        a.I(f'v_mov_b32 v{vTP+8+i}, 0')
    for i in range(4):
        a.I(f'v_mov_b32 v{vR+4+i}, 0')
    a.I(f's_mov_b32 s{sE+15}, 0')
    a.I(f's_mov_b32 s{sCNT}, s{sN}')
    a.I(f's_sub_i32 s{sREM}, s{sN}, 16')
    a.I('s_waitcnt lgkmcnt(0)')
    a.I('s_barrier')
    lstamp(a, cfg, 7, sW)
    a.I(f'ds_read_b128 {vr(vAL,4)}, v{vAL_A}')
    a.I(f'ds_read_b128 {vr(vAH,4)}, v{vAH_A}')
    a.I(f'ds_read_b64 {vr(vYraw,2)}, v{vYA} offset:{YS}')
    a.I('s_waitcnt lgkmcnt(1)')
    for op in h_mfma():
        a.I(op)
    a.I('s_waitcnt lgkmcnt(0)')
    for op in w_compute(vWc):
        a.I(op)
    a.I('s_nop 7')
    for op in z_ops(0) + exp_ops(0):
        a.I(op)
    a.I('s_nop 0')
    for op in add_ops + rcp_ops:
        a.I(op)
    a.I('s_nop 0')
    for op in r_ops(0) + z_ops(1):
        a.I(op)

    if cfg.get('prio') == 'young':
        a.I(f's_cmp_ge_u32 s{sW}, 4')
        a.I('s_cbranch_scc0 K2_PR')
        a.I('s_setprio 1')
        a.L('K2_PR')
    a.L('K2_LOOP')
    wn_ops = w_compute(vWn)
    for j in range(16):
        a(f'    ; ---- slot {j}')
        if j == 0:
            a.I(f'ds_read_b32 v{vENTn}, v{vEntA} offset:{ENT+64}')
            a.I(f'ds_read_b64 {vr(vYraw,2)}, v{vYA} offset:{YS+128}')
        nocomp = cfg.get('nocomp'); noload = cfg.get('noload'); drop = str(cfg.get('drop', '')).split('+')
        if not noload:
            a.I(f's_waitcnt vmcnt({D-1})')
        xr = xrs(j % D)
        tp = vTP + 8*(j % 2)
        if not nocomp and 'mfma' not in drop:
            a.I(f'v_mfma_f32_4x4x4_16b_bf16 {vr(tp,4)}, {vr(vWc,2)}, {vr(xr,2)}, 0 cbsz:4 abid:{j}')
            a.I(f'v_mfma_f32_4x4x4_16b_bf16 {vr(tp+4,4)}, {vr(vWc,2)}, {vr(xr+2,2)}, 0 cbsz:4 abid:{j}')
        if not noload:
            a.I(f'buffer_load_dwordx4 {vr(xr,4)}, v{vL16}, s[{sX}:{sX+3}], s{sXO} offen' + cfg.get('xld', ''))
        q = j // 2 + 1 if j % 2 == 0 else (j + 1) // 2
        if not nocomp and 'trans' not in drop:
            for op in (exp_ops(q) if j % 2 == 0 else rcp_ops):
                a.I(op)
        jn = j + D + 1
        src_ent = vENTc if jn < 16 else vENTn
        if 'rl' not in drop:
            a.I(f'v_readlane_b32 s{sE+jn%16}, v{src_ent}, {jn%16}')
        jm = (j - 1) % 16
        tpm = vTP + 8*((j - 1) % 2)
        rb = vR + 4*((((j - 1) // 2)) % 2)
        sel = (j - 1) & 1
        if not nocomp:
            if 'idx' not in drop:
                a.I(f's_set_gpr_idx_on s{sE+jm}, gpr_idx(SRC2,DST)')
            for p in range(2):
                for h in range(2):
                    acc = vACC + 4*p + 2*h
                    if 'fma' not in drop:
                        a.I(f'v_pk_fma_f32 {vr(acc,2)}, {vr(tpm+4*p+2*h,2)}, {vr(rb+2*p,2)}, {vr(acc,2)} op_sel:[0,{sel},0] op_sel_hi:[1,{sel},1]')
            if 'idx' not in drop:
                a.I('s_set_gpr_idx_off')
        else:
            a.I('s_nop 3')
        a.I(f's_sub_u32 s{sCNT}, s{sCNT}, 1')
        a.I('s_cbranch_scc1 K2_EXIT')
        a.I(f's_and_b32 s{sXO}, s{sE+jn%16}, 0xfffffc00')
        if nocomp or 'pk' in drop:
            pass
        elif j % 2 == 0:
            for op in add_ops:
                a.I(op)
        else:
            for op in r_ops(q) + z_ops(q + 1):
                a.I(op)
        if j == 1:
            a.I(f'v_add_u32 v{vEfA}, 512, v{vEfA}')
            a.I(f'v_mov_b32 v{vTmp}, {ZERO16}')
            a.I(f'v_cndmask_b32 v{vAL_A}, v{vTmp}, v{vEfA}, s[{sMLO}:{sMLO+1}]')
            a.I(f'v_cndmask_b32 v{vAH_A}, v{vTmp}, v{vEfA}, s[{sMHI}:{sMHI+1}]')
            a.I(f'ds_read_b128 {vr(vAL,4)}, v{vAL_A}')
            a.I(f'ds_read_b128 {vr(vAH,4)}, v{vAH_A}')
        if j == 3:
            a.I('s_waitcnt lgkmcnt(0)')
            a.I(f'v_cmp_gt_i32 vcc, s{sREM}, v{vL15}')
            for op in wn_ops[0:4]:
                a.I(op)
            a.I(f'v_cndmask_b32 v{vENTn}, 0, v{vENTn}, vcc')
        if j == 4 and 'w' not in drop:
            for op in wn_ops[4:8]:
                a.I(op)
        if j == 5 and 'w' not in drop:
            for op in wn_ops[8:14]:
                a.I(op)
        if j == 9:
            a.I(f'v_pk_mov_b32 {vr(vHS,2)}, {vr(vH0+14,2)}, {vr(vH0+14,2)} op_sel:[0,1]')
            a.I(f'v_pk_mov_b32 {vr(vHS+2,2)}, {vr(vH1+14,2)}, {vr(vH1+14,2)} op_sel:[0,1]')
        if j == 11 and 'h' not in drop:
            for op in h_mfma():
                a.I(op)
        if j == 15:
            a.I(f'v_mov_b32 v{vWc}, v{vWn}')
            a.I(f'v_mov_b32 v{vWc+1}, v{vWn+1}')
            a.I(f'v_mov_b32 v{vENTc}, v{vENTn}')
            a.I(f'v_add_u32 v{vEntA}, 64, v{vEntA}')
            a.I(f'v_add_u32 v{vYA}, 128, v{vYA}')
            a.I(f's_sub_i32 s{sREM}, s{sREM}, 16')
            a.I(f's_cmp_eq_u32 s{sBMF}, 0')
            a.I('s_cbranch_scc0 K2_LOOP')
            a.I(f's_add_u32 s{sT0}, s{sRND}, 1')
            a.I(f's_cmp_lt_u32 s{sT0}, s{sMAXR}')
            a.I('s_cbranch_scc1 K2_LOOP')
            a.I(f's_mov_b32 s{sBMF}, 1')
            bm_loads()
            a.I('s_branch K2_LOOP')
    a.L('K2_EXIT')
    a.I('s_waitcnt vmcnt(0) lgkmcnt(0)')
    a.I(f's_add_u32 s{sRND}, s{sRND}, 1')
    a.I(f's_cmp_lt_u32 s{sRND}, s{sMAXR}')
    a.I('s_cbranch_scc0 K2_TAIL')
    a.I('s_barrier')
    a.I('s_branch K2_ROUND')

    a.L('K2_TAIL')
    lstamp(a, cfg, 8, sW)
    a.I(f's_cmp_eq_u32 s{sBMF}, 0')
    a.I('s_cbranch_scc0 K2_BMOK')
    bm_loads()
    a.L('K2_BMOK')
    a.I(f'v_lshlrev_b32 v{vTmp}, 2, v{vLane}')
    a.I(f'v_add_u32 v{vTmp}, {AGG}, v{vTmp}')
    for s in range(5):
        a.I(f'v_add_u32 v{vTmp+4}, s{sNODE+s}, v{vTmp}')
        for o in range(4):
            t = vXR + s * 4 + o
            a.I(f'v_cvt_pk_bf16_f32 v{t}, v{vACC+8*s+o}, v{vACC+8*s+4+o}')
            a.I(f'ds_write_b32 v{vTmp+4}, v{t} offset:{o * AGG_STRIDE}')
    a.I('s_waitcnt lgkmcnt(0)')
    a.I('s_barrier')
    lstamp(a, cfg, 9, sW)
    a.I(f'v_mul_u32_u24 v{vTmp}, {AGG_STRIDE}, v{vL15}')
    a.I(f'v_lshrrev_b32 v{vTmp+4}, 4, v{vLane}')
    a.I(f'v_lshl_add_u32 v{vTmp}, v{vTmp+4}, 4, v{vTmp}')
    a.I(f's_lshr_b32 s{sT0}, s{sW}, 2')
    a.I(f's_mul_i32 s{sT1}, s{sT0}, {5*16*AGG_STRIDE}')
    a.I(f's_add_u32 s{sT1}, s{sT1}, {AGG}')
    a.I(f'v_add_u32 v{vTmp}, s{sT1}, v{vTmp}')
    a.I(f's_mul_i32 s{sT1}, s{sT0}, 20')
    a.I(f'v_add_u32 v{vTmp+4}, s{sT1}, v{vTmp+4}')
    a.I(f'v_lshlrev_b32 v{vTmp+4}, 18, v{vTmp+4}')
    a.I(f's_lshl_b32 s{sT1}, s{sB}, 10')
    a.I(f's_and_b32 s{sT2}, s{sW}, 3')
    a.I(f's_lshl_b32 s{sT2}, s{sT2}, 8')
    a.I(f's_add_u32 s{sT1}, s{sT1}, s{sT2}')
    a.I(f'v_lshl_add_u32 v{vTmp+5}, v{vL15}, 4, s{sT1}')
    a.I(f'v_add_u32 v{vTmp+4}, v{vTmp+4}, v{vTmp+5}')
    vA = (vH0, vH0 + 16 - 16 + 16)
    vA = (vH0, vH1)
    vD = (vTP, vTP + 8)
    vO = (vXR, vXR + 4, vXR + 8, vXR + 12)
    def a_reads(tt):
        for ks in range(4):
            a.I(f'ds_read_b128 {vr(vA[tt%2]+4*ks,4)}, v{vTmp} offset:{tt*16*AGG_STRIDE + 64*ks}')
    a_reads(0)
    a.I('s_waitcnt vmcnt(0)')
    for tt in range(5):
        if tt + 1 < 5:
            a_reads(tt + 1)
            a.I('s_waitcnt lgkmcnt(4)')
        else:
            a.I('s_waitcnt lgkmcnt(0)')
        D = vD[tt % 2]
        for ks in range(4):
            for t in range(2):
                c = '0' if ks == 0 else vr(D+4*t, 4)
                a.I(f'v_mfma_f32_16x16x32_bf16 {vr(D+4*t,4)}, {vr(vA[tt%2]+4*ks,4)}, {vr(vBM+16*t+4*ks,4)}, {c}')
        if tt > 0:
            Dp = vD[(tt - 1) % 2]; O = vO[(tt - 1) % 4]
            a.I(f'v_cvt_pk_bf16_f32 v{O}, v{Dp}, v{Dp+1}')
            a.I(f'v_cvt_pk_bf16_f32 v{O+1}, v{Dp+2}, v{Dp+3}')
            a.I(f'v_cvt_pk_bf16_f32 v{O+2}, v{Dp+4}, v{Dp+5}')
            a.I(f'v_cvt_pk_bf16_f32 v{O+3}, v{Dp+6}, v{Dp+7}')
            a.I(f'buffer_store_dwordx4 {vr(O,4)}, v{vTmp+4}, s[{sOUT}:{sOUT+3}], 0 offen' + cfg.get('ost', ''))
            if cfg.get('k2extra'):
                a.I(f's_mov_b32 s{sWS+2}, 0x4000000')
                a.I(f's_mov_b32 s{sT2}, 0x2000000')
                a.I(f'buffer_store_dwordx4 {vr(O,4)}, v{vTmp+4}, s[{sWS}:{sWS+3}], s{sT2} offen' + cfg.get('ost', ''))
            a.I(f'v_add_u32 v{vTmp+4}, {4 << 18:#x}, v{vTmp+4}')
    Dp = vD[4 % 2]; O = vO[0]
    a.I('s_nop 7')
    a.I(f'v_cvt_pk_bf16_f32 v{O}, v{Dp}, v{Dp+1}')
    a.I(f'v_cvt_pk_bf16_f32 v{O+1}, v{Dp+2}, v{Dp+3}')
    a.I(f'v_cvt_pk_bf16_f32 v{O+2}, v{Dp+4}, v{Dp+5}')
    a.I(f'v_cvt_pk_bf16_f32 v{O+3}, v{Dp+6}, v{Dp+7}')
    a.I(f'buffer_store_dwordx4 {vr(O,4)}, v{vTmp+4}, s[{sOUT}:{sOUT+3}], 0 offen' + cfg.get('ost', ''))
    if cfg.get('stamps'):
        a.I('s_waitcnt vmcnt(0)')
        lstamp(a, cfg, 10, sW)
        a.I(f's_lshl_b32 s{sT0}, s{sW}, 2')
        a.I(f's_add_u32 s{sT0}, s{sT0}, s{sDBG}')
        a.I(f'v_mov_b32 v{vTmp+1}, s{sT0}')
        a.I(f'v_mov_b32 v{vTmp}, s{80+2*8}')
        a.I(f'buffer_store_dword v{vTmp}, v{vTmp+1}, s[{sWS}:{sWS+3}], 0 offen offset:64')
        a.I(f'v_mov_b32 v{vTmp+4}, s{sN}')
        a.I(f'buffer_store_dword v{vTmp+4}, v{vTmp+1}, s[{sWS}:{sWS+3}], 0 offen offset:96')
        a.I('s_waitcnt vmcnt(0)')
        a.I(f's_cmp_eq_u32 s{sW}, 0')
        a.I('s_cbranch_scc0 K2_END')
        a.I(f'v_mov_b32 v{vTmp+1}, s{sDBG}')
        for i in range(11):
            a.I(f'v_mov_b32 v{vTmp}, s{80+2*i}')
            a.I(f'buffer_store_dword v{vTmp}, v{vTmp+1}, s[{sWS}:{sWS+3}], 0 offen offset:{4*i}')
            a.I('s_waitcnt vmcnt(0)')
    a.L('K2_END')
    a.I('s_endpgm')
    return name, NV, (102 if cfg.get('stamps') else 76)


def vOneConst(a, v, val):
    a.I(f'v_mov_b32 v{v}, {val}')
    return v


def build(cfg):
    a = Asm()
    seq = cfg.get('seq', 'BM')
    for ch in seq:
        if ch == 'B':
            a('; @launch kernel=bin_kernel grid=(256,1,1) block=(640,1,1) lds=32768')
        elif ch == 'M':
            a(f'; @launch kernel=main_kernel grid=(256,1,1) block=(512,1,1) lds={K2_LDS}')
        elif ch == 'n':
            a('; @launch kernel=nop_kernel grid=(1,1,1) block=(64,1,1) lds=0')
        elif ch == 'o':
            a('; @launch kernel=nopb_kernel grid=(1,1,1) block=(64,1,1) lds=0')
        elif ch == 'N':
            a('; @launch kernel=nop_kernel grid=(256,1,1) block=(512,1,1) lds=0')
    a('.amdgcn_target "amdgcn-amd-amdhsa--gfx950"')
    a('.text')
    k1 = gen_k1(a, cfg)
    k2 = gen_k2(a, cfg)
    ks = [k1, k2]
    if 'n' in seq or 'N' in seq:
        a('.globl nop_kernel\n.p2align 8\n.type nop_kernel,@function\nnop_kernel:\n    s_endpgm')
        ks.append(('nop_kernel', 8, 16))
    if 'o' in seq:
        a('.globl nopb_kernel\n.p2align 8\n.type nopb_kernel,@function\nnopb_kernel:\n    s_endpgm')
        ks.append(('nopb_kernel', 8, 16))
    a('.section .rodata,"a"')
    for k in ks:
        a('.p2align 6')
        kd(a, *k)
    return a.text()


if __name__ == '__main__':
    cfg = {}
    out = sys.argv[1] if len(sys.argv) > 1 else 'gather_scatter__tensor_product_equiv_tfn__graph.s'
    for kv in sys.argv[2:]:
        k, v = kv.split('=', 1)
        try:
            v = int(v)
        except ValueError:
            v = v.replace('_', ' ')
        cfg[k] = v
    open(out, 'w').write(build(cfg))
    print('wrote', out)
```

```python
import re
REG = re.compile(r'^(-?\|?)([sva])(\d+|\[(\d+):(\d+)\])\|?$')
def regs(tok):
    tok = tok.strip()
    if tok == 'vcc': return {('s', 106), ('s', 107)}
    if tok == 'exec': return {('s', 126), ('s', 127)}
    if tok == 'm0': return {('s', 124)}
    m = REG.match(tok)
    if not m: return set()
    f = m.group(2)
    if m.group(4) is not None: lo, hi = int(m.group(4)), int(m.group(5))
    else: lo = hi = int(m.group(3))
    return {(f, i) for i in range(lo, hi + 1)}
TRANS = ('v_exp_f32', 'v_log_f32', 'v_rcp_f32', 'v_rsq_f32', 'v_sqrt_f32', 'v_sin_f32', 'v_cos_f32')
def parse(line):
    s = line.split(';')[0].strip()
    if not s or s.endswith(':') or s.startswith('.'): return None
    p = s.split(None, 1); op = p[0]
    ops = []
    if len(p) > 1:
        body = p[1]
        ops = [o.strip() for o in re.split(r',(?![^\[]*\])', body)]
        last = ops[-1].split()
        if last: ops[-1] = last[0]
    return op, ops
def info(op, ops):
    w, r = set(), set()
    kind = 'other'
    if op.startswith('v_mfma'):
        kind = 'mfma'; w = regs(ops[0]); r = set().union(*[regs(o) for o in ops[1:]])
    elif op.startswith('v_cmp'):
        kind = 'valu'; w = regs(ops[0]); r = set().union(*[regs(o) for o in ops[1:]])
    elif op.startswith('v_readlane') or op.startswith('v_readfirstlane'):
        kind = 'valu'; w = regs(ops[0]); r = set().union(*[regs(o) for o in ops[1:]])
    elif op.startswith('v_'):
        kind = 'valu'; w = regs(ops[0]); rest = ops[1:]
        if op.startswith(('v_add_co', 'v_addc_co', 'v_sub_co', 'v_subb_co')):
            w |= regs(ops[1]); rest = ops[2:]
        r = set().union(*[regs(o) for o in rest]) if rest else set()
        if op.startswith(('v_fmac', 'v_writelane')): r |= regs(ops[0])
    elif op.startswith(('buffer_', 'global_')):
        kind = 'vmem'; r = set().union(*[regs(o) for o in ops]) if ops else set()
    elif op.startswith('ds_'):
        kind = 'ds'; r = set().union(*[regs(o) for o in ops]) if ops else set()
    elif op.startswith('s_'):
        kind = 'salu'
        if ops and not op.startswith(('s_cmp', 's_cbranch', 's_branch', 's_waitcnt', 's_nop', 's_barrier', 's_set', 's_endpgm', 's_sleep')):
            w = regs(ops[0]); r = set().union(*[regs(o) for o in ops[1:]]) if len(ops) > 1 else set()
        else:
            r = set().union(*[regs(o) for o in ops]) if ops else set()
    return dict(kind=kind, w=w, r=r, op=op, ops=ops)
def passes(op):
    if '4x4x4' in op: return 2
    if '16x16' in op: return 4
    return 8
def need(prev, cur):
    n = 0
    pw = prev['w']; k0, k1 = prev['kind'], cur['kind']
    sw = {x for x in pw if x[0] == 's'}; vw = {x for x in pw if x[0] == 'v'}
    if k0 == 'valu':
        if k1 in ('valu',) and sw & cur['r']:
            if cur['op'].startswith(('v_readlane', 'v_writelane')) and len(cur['ops']) > 2 and regs(cur['ops'][2]) & sw: n = max(n, 4)
            else: n = max(n, 2)
        if k1 == 'vmem' and sw & cur['r']: n = max(n, 5)
        if cur['op'].startswith(('v_readlane', 'v_readfirstlane')) and vw & regs(cur['ops'][1]): n = max(n, 1)
        if '_dpp' in cur['op'] and vw & cur['r']: n = max(n, 2)
        if cur['op'].startswith('v_permlane') and vw & (cur['r'] | cur['w']): n = max(n, 2)
        if prev['op'].startswith(TRANS) and k1 == 'valu' and not cur['op'].startswith(TRANS) and vw & cur['r']: n = max(n, 1)
        if k1 == 'mfma' and vw & cur['r']: n = max(n, 2)
    if k0 == 'mfma':
        p = passes(prev['op']); t = {2: 5, 4: 8, 8: 12}[p]
        if k1 in ('valu', 'vmem', 'ds') and vw & (cur['r'] | cur['w']): n = max(n, t)
        if k1 == 'mfma':
            ab = regs(cur['ops'][1]) | regs(cur['ops'][2]); c = regs(cur['ops'][3])
            if vw & ab: n = max(n, t)
            elif vw & c and not (vw == c and passes(cur['op']) == p): n = max(n, {2: 4, 4: 6, 8: 10}[p])
            elif vw & c and p == 2: n = max(n, 2)
    if k0 == 'vmem' and prev['op'].startswith('buffer_store_dwordx') and prev['op'][-1] in '34' and k1 == 'valu':
        if regs(prev['ops'][0]) & cur['w']: n = max(n, 2)
    return n
def fix(text, verbose=False):
    out = []; hist = []
    nins = 0
    for line in text.split('\n'):
        p = parse(line)
        if p is None:
            out.append(line); continue
        cur = info(*p)
        if cur['op'] == 's_nop':
            st = int(cur['ops'][0], 0) + 1
            hist = [(h, d + st) for h, d in hist if d + st < 16]
            out.append(line); continue
        req = 0
        for h, d in hist:
            k = need(h, cur)
            if k > d: req = max(req, k - d)
        if req:
            nins += 1
            if verbose: print('hazard: inserting s_nop', req - 1, 'before', line.strip())
            out.append(f'    s_nop {req-1}')
            hist = [(h, d + req) for h, d in hist if d + req < 16]
        out.append(line)
        hist = [(h, d + 1) for h, d in hist if d + 1 < 16] + [(cur, 0)]
        if cur['op'] in ('s_endpgm', 's_branch'): hist = []
    return '\n'.join(out), nins
```

```python
import sys, struct

N_NODES = 10000
N_EDGES = 160000
CHUNK = 625
RECA_OFF = 0
RECF_OFF = 0x280000
TAB_OFF = 0x800000
BRAD_OFF = 0x840000
CGW_OFF = 0x841000
BMIX_OFF = 0x842000
WS_SIZE = 0x850000
X_BYTES = N_NODES * 1024

def f2u(x):
    return struct.unpack('<I', struct.pack('<f', x))[0]
LOG2E = 1.4426950408889634
LN2 = 0.6931471805599453


class Asm:
    def __init__(self):
        self.lines = []
    def __call__(self, s=''):
        for ln in s.split('\n'):
            self.lines.append(ln)
    def I(self, s):
        self.lines.append('    ' + s)
    def L(self, name):
        self.lines.append(name + ':')
    def text(self):
        return '\n'.join(self.lines) + '\n'


def vr(base, n=1):
    return f'v{base}' if n == 1 else f'v[{base}:{base+n-1}]'
def sr(base, n=1):
    return f's{base}' if n == 1 else f's[{base}:{base+n-1}]'


def srd(a, dst, ptr, size):
    a.I(f's_mov_b32 s{dst}, s{ptr}')
    a.I(f's_and_b32 s{dst+1}, s{ptr+1}, 0xffff')
    a.I(f's_mov_b32 s{dst+2}, {size:#x}')
    a.I(f's_mov_b32 s{dst+3}, 0x20000')


def scan_dpp(a, v, full64):
    for sh in (1, 2, 4, 8):
        a.I('s_nop 1')
        a.I(f'v_add_u32_dpp v{v}, v{v}, v{v} row_shr:{sh} row_mask:0xf bank_mask:0xf')
    a.I('s_nop 1')
    a.I(f'v_add_u32_dpp v{v}, v{v}, v{v} row_bcast:15 row_mask:0xa bank_mask:0xf')
    if full64:
        a.I('s_nop 1')
        a.I(f'v_add_u32_dpp v{v}, v{v}, v{v} row_bcast:31 row_mask:0xc bank_mask:0xf')


def hist_prefix(a, vC, vS, vTot, vLane16, hist_off, base_off):
    a.I(f'ds_read_b128 {vr(vC,4)}, v{vLane16} offset:{hist_off}')
    a.I('s_waitcnt lgkmcnt(0)')
    a.I(f'v_add_u32 v{vS+2}, v{vC}, v{vC+1}')
    a.I(f'v_add_u32 v{vS+3}, v{vS+2}, v{vC+2}')
    a.I(f'v_add_u32 v{vTot}, v{vS+3}, v{vC+3}')
    a.I(f'v_mov_b32 v{vS}, v{vTot}')
    scan_dpp(a, vTot, True)
    a.I('s_nop 0')
    a.I(f'v_sub_u32 v{vS}, v{vTot}, v{vS}')
    a.I(f'v_add_u32 v{vS+1}, v{vS}, v{vC}')
    a.I(f'v_add_u32 v{vS+2}, v{vS}, v{vS+2}')
    a.I(f'v_add_u32 v{vS+3}, v{vS}, v{vS+3}')
    a.I(f'ds_write_b128 v{vLane16}, {vr(vS,4)} offset:{base_off}')


def stamp(a, cfg, idx, sdbg, tmp_s, tmp_v):
    if not cfg.get('stamps'):
        return
    a.I(f's_memrealtime s[{tmp_s}:{tmp_s+1}]')
    a.I('s_waitcnt lgkmcnt(0)')
    a.I(f'v_mov_b32 v{tmp_v}, s{tmp_s}')
    a.I(f'v_mov_b32 v{tmp_v+1}, s{sdbg}')
    a.I(f'buffer_store_dword v{tmp_v}, v{tmp_v+1}, s[{cfg["stamp_srd"]}:{cfg["stamp_srd"]+3}], 0 offen offset:{idx*4}')


def lstamp(a, cfg, i, sW):
    if not cfg.get('stamps'):
        return
    a.I(f's_memrealtime s[{80+2*i}:{81+2*i}]')
    a.I('s_waitcnt lgkmcnt(0)')


STAMP_OFF = 0x900000


def gen_k1(a, cfg):
    name = 'bin_kernel'
    NPF = cfg.get('npf1', 0)
    scaled = cfg.get('scaled', False)
    a(f'.globl {name}\n.p2align 8\n.type {name},@function\n{name}:')
    sDST, sSRC, sY, sEF, sWS, sX, sPREP = 8, 12, 16, 20, 24, 28, 32
    a.I('s_cmp_ge_u32 s2, 256')
    a.I('s_cbranch_scc1 K1_END')
    a.I('s_load_dwordx4 s[44:47], s[0:1], 0')
    a.I('s_load_dwordx4 s[48:51], s[0:1], 16')
    a.I('s_load_dwordx4 s[52:55], s[0:1], 32')
    a.I('s_load_dwordx4 s[56:59], s[0:1], 48')
    a.I('s_load_dwordx2 s[60:61], s[0:1], 80')
    if cfg.get('dbgprint'):
        a.I('s_load_dwordx2 s[72:73], s[0:1], 72')
        a.I('s_memrealtime s[74:75]')
    vT, vLane, vT4, vE, vOff = 0, 1, 2, 3, 4
    vDst, vSrc = 5, 6
    vRec = 8
    vY = 9
    vEF = 12
    vKey, vRank, vOne, vTmp = 20, 21, 22, 23
    vC, vS, vTot, vL16 = 24, 28, 32, 33
    vPrep, vPrepAddr, vPf = 34, 35, 36
    vT2 = 37
    a.I(f'v_and_b32 v{vLane}, 63, v0')
    a.I(f'v_lshlrev_b32 v{vT4}, 2, v0')
    a.I(f'v_lshrrev_b32 v{vTmp}, 6, v0')
    a.I(f'v_mov_b32 v{vOne}, 1')
    a.I(f'v_readfirstlane_b32 s4, v{vTmp}')
    a.I(f'v_mov_b32 v{vTmp}, 0')
    a.I(f'v_lshlrev_b32 v{vL16}, 4, v{vLane}')
    a.I('v_cmp_gt_u32 vcc, 256, v0')
    a.I('s_and_saveexec_b64 s[6:7], vcc')
    a.I('s_cbranch_execz K1_Z')
    a.I(f'ds_write_b32 v{vT4}, v{vTmp}')
    a.L('K1_Z')
    a.I('s_mov_b64 exec, s[6:7]')
    a.I(f's_mul_i32 s5, s2, {CHUNK}')
    a.I(f'v_add_u32 v{vE}, s5, v0')
    a.I('s_waitcnt lgkmcnt(0)')
    srd(a, sDST, 48, N_EDGES * 4)
    srd(a, sSRC, 46, N_EDGES * 4)
    srd(a, sY, 50, N_EDGES * 8)
    srd(a, sEF, 52, N_EDGES * 32)
    if cfg.get('wsbase', 0):
        a.I(f's_add_u32 s60, s60, {cfg["wsbase"] << 20:#x}')
        a.I('s_addc_u32 s61, s61, 0')
    srd(a, sWS, 60, WS_SIZE if not cfg.get('stamps') else STAMP_OFF + 0x10000)
    srd(a, sX, 44, X_BYTES)
    if cfg.get('stamps'):
        cfg['stamp_srd'] = sWS
        a.I(f's_lshl_b32 s62, s2, 6')
        a.I(f's_add_u32 s62, s62, {STAMP_OFF:#x}')
        a.I('s_cmp_eq_u32 s4, 0')
        a.I('s_cbranch_scc0 K1_ST0')
        stamp(a, cfg, 0, 62, 64, 38)
        a.L('K1_ST0')
    a.I(f'v_mov_b32 v{vPrepAddr}, 0x7ffffff0')
    a.I('s_cmp_eq_u32 s4, 9')
    a.I('s_cbranch_scc1 K1_PA')
    a.I('s_cmp_eq_u32 s4, 8')
    a.I('s_cbranch_scc0 K1_PDONE')
    a.I('s_cmp_lt_u32 s2, 32')
    a.I('s_cbranch_scc1 K1_PB')
    a.I('s_cmp_eq_u32 s2, 32')
    a.I('s_cbranch_scc0 K1_PDONE')
    srd(a, sPREP, 56, 128)
    a.I(f'v_and_b32 v{vTmp}, 3, v{vLane}')
    a.I(f'v_lshlrev_b32 v{vTmp}, 4, v{vTmp}')
    a.I(f'v_and_b32 v{vT2}, 12, v{vLane}')
    a.I(f'v_add_u32 v{vTmp}, v{vTmp}, v{vT2}')
    a.I(f'v_lshrrev_b32 v{vT2}, 4, v{vLane}')
    a.I(f'v_add_lshl_u32 v{vTmp}, v{vTmp}, v{vT2}, 1')
    a.I(f'buffer_load_ushort v{vPrep}, v{vTmp}, s[{sPREP}:{sPREP+3}], 0 offen')
    a.I(f'v_lshlrev_b32 v{vPrepAddr}, 2, v{vLane}')
    a.I(f'v_add_u32 v{vPrepAddr}, {CGW_OFF:#x}, v{vPrepAddr}')
    a.I('s_branch K1_PDONE')
    a.L('K1_PB')
    srd(a, sPREP, 54, 16 * 128 * 2)
    a.I('s_lshl_b32 s5, s2, 6')
    a.I(f'v_add_u32 v{vPrepAddr}, s5, v{vLane}')
    a.I(f'v_lshrrev_b32 v{vTmp}, 3, v{vPrepAddr}')
    a.I(f'v_bfe_u32 v{vT2}, v{vTmp}, 5, 1')
    a.I(f'v_lshlrev_b32 v{vT2}, 3, v{vT2}')
    a.I(f'v_and_b32 v{vPf}, 7, v{vPrepAddr}')
    a.I(f'v_add_u32 v{vT2}, v{vT2}, v{vPf}')
    a.I(f'v_lshlrev_b32 v{vT2}, 7, v{vT2}')
    a.I(f'v_and_b32 v{vPf}, 31, v{vTmp}')
    a.I(f'v_lshl_add_u32 v{vT2}, v{vPf}, 1, v{vT2}')
    a.I(f'v_bfe_u32 v{vPf}, v{vTmp}, 6, 1')
    a.I(f'v_lshl_add_u32 v{vT2}, v{vPf}, 6, v{vT2}')
    a.I(f'v_bfe_u32 v{vPf}, v{vTmp}, 7, 1')
    a.I(f'v_add_lshl_u32 v{vT2}, v{vT2}, v{vPf}, 1')
    a.I(f'buffer_load_ushort v{vPrep}, v{vT2}, s[{sPREP}:{sPREP+3}], 0 offen')
    a.I(f'v_lshlrev_b32 v{vPrepAddr}, 1, v{vPrepAddr}')
    a.I(f'v_add_u32 v{vPrepAddr}, {BRAD_OFF:#x}, v{vPrepAddr}')
    a.I('s_branch K1_PDONE')
    a.L('K1_PA')
    srd(a, sPREP, 58, 128 * 128 * 2)
    a.I('s_lshl_b32 s5, s2, 6')
    a.I(f'v_add_u32 v{vPrepAddr}, s5, v{vLane}')
    a.I(f'v_lshrrev_b32 v{vTmp}, 3, v{vPrepAddr}')
    a.I(f'v_bfe_u32 v{vT2}, v{vTmp}, 6, 2')
    a.I(f'v_lshlrev_b32 v{vT2}, 5, v{vT2}')
    a.I(f'v_bfe_u32 v{vPf}, v{vTmp}, 4, 2')
    a.I(f'v_lshl_add_u32 v{vT2}, v{vPf}, 3, v{vT2}')
    a.I(f'v_and_b32 v{vPf}, 7, v{vPrepAddr}')
    a.I(f'v_add_u32 v{vT2}, v{vT2}, v{vPf}')
    a.I(f'v_lshlrev_b32 v{vT2}, 7, v{vT2}')
    a.I(f'v_and_b32 v{vPf}, 15, v{vTmp}')
    a.I(f'v_lshl_add_u32 v{vT2}, v{vPf}, 1, v{vT2}')
    a.I(f'v_lshrrev_b32 v{vPf}, 9, v{vTmp}')
    a.I(f'v_lshl_add_u32 v{vT2}, v{vPf}, 5, v{vT2}')
    a.I(f'v_bfe_u32 v{vPf}, v{vTmp}, 8, 1')
    a.I(f'v_add_lshl_u32 v{vT2}, v{vT2}, v{vPf}, 1')
    a.I(f'buffer_load_ushort v{vPrep}, v{vT2}, s[{sPREP}:{sPREP+3}], 0 offen')
    a.I(f'v_lshlrev_b32 v{vPrepAddr}, 1, v{vPrepAddr}')
    a.I(f'v_add_u32 v{vPrepAddr}, {BMIX_OFF:#x}, v{vPrepAddr}')
    a.L('K1_PDONE')
    ld = cfg.get('k1ld', '')
    a.I(f'v_lshlrev_b32 v{vOff}, 2, v{vE}')
    a.I(f'buffer_load_dword v{vDst}, v{vOff}, s[{sDST}:{sDST+3}], 0 offen' + ld)
    a.I(f'buffer_load_dword v{vSrc}, v{vOff}, s[{sSRC}:{sSRC+3}], 0 offen' + ld)
    a.I(f'v_lshlrev_b32 v{vOff}, 3, v{vE}')
    a.I(f'v_lshlrev_b32 v{vT2}, 5, v{vE}')
    a.I('s_waitcnt lgkmcnt(0)')
    a.I('s_barrier')
    a.I(f'buffer_load_dwordx2 {vr(vRec,2)}, v{vOff}, s[{sY}:{sY+3}], 0 offen' + ld)
    a.I(f'buffer_load_dwordx4 {vr(vEF,4)}, v{vT2}, s[{sEF}:{sEF+3}], 0 offen' + ld)
    a.I(f'buffer_load_dwordx4 {vr(vEF+4,4)}, v{vT2}, s[{sEF}:{sEF+3}], 0 offen offset:16' + ld)
    npf = 0
    if NPF > 0:
        a.I('s_lshr_b32 s5, s2, 3')
        a.I('s_lshl_b32 s63, s4, 5')
        a.I('s_add_u32 s5, s5, s63')
        a.I('s_lshl_b32 s5, s5, 13')
        a.I(f's_cmp_lt_u32 s4, {NPF}')
        a.I(f's_cselect_b32 s5, s5, 0x7ff00000')
        a.I(f'v_lshlrev_b32 v{vPf}, 7, v{vLane}')
        a.I(f'v_add_u32 v{vPf}, s5, v{vPf}')
        a.I(f'buffer_load_dword v{vPf}, v{vPf}, s[{sX}:{sX+3}], 0 offen')
        npf = 1
    a.I(f'v_cmp_gt_u32 vcc, {CHUNK}, v0')
    a.I('s_and_saveexec_b64 s[6:7], vcc')
    a.I(f's_waitcnt vmcnt({4+npf})')
    if cfg.get('dbgprint'):
        a.I('s_memrealtime s[76:77]')
    if cfg.get('stamps'):
        a.I('s_cmp_eq_u32 s4, 0')
        a.I('s_cbranch_scc0 K1_ST2')
        a.I('s_memrealtime s[66:67]')
        a.L('K1_ST2')
    a.I(f'v_and_b32 v{vKey}, 7, v{vDst}')
    a.I(f'v_bfe_u32 v{vTmp}, v{vDst}, 3, 5')
    a.I(f'v_lshl_or_b32 v{vKey}, v{vKey}, 5, v{vTmp}')
    a.I(f'v_lshlrev_b32 v{vKey}, 2, v{vKey}')
    a.I(f'ds_add_rtn_u32 v{vRank}, v{vKey}, v{vOne}')
    a.I('s_mov_b64 exec, s[6:7]')
    a.I('s_waitcnt lgkmcnt(0)')
    a.I('s_barrier')
    hist_prefix(a, vC, vS, vTot, vL16, 0, 1024)
    for i in range(4):
        a.I(f'v_lshl_or_b32 v{vC+i}, v{vC+i}, 16, v{vS+i}')
    a.I('s_cmp_lt_u32 s4, 4')
    a.I('s_cbranch_scc0 K1_NTAB')
    a.I(f'v_lshl_add_u32 v{vT2}, v{vLane}, 2, s4')
    a.I(f'v_lshrrev_b32 v{vTmp}, 5, v{vT2}')
    a.I(f'v_and_b32 v{vT2}, 31, v{vT2}')
    a.I(f'v_lshlrev_b32 v{vTmp}, 15, v{vTmp}')
    a.I(f'v_lshl_add_u32 v{vTmp}, v{vT2}, 7, v{vTmp}')
    a.I('s_and_b32 s5, s2, 7')
    a.I('s_lshl_b32 s5, s5, 12')
    a.I('s_lshr_b32 s63, s2, 3')
    a.I('s_lshl_b32 s63, s63, 2')
    a.I('s_add_u32 s5, s5, s63')
    a.I(f's_add_u32 s5, s5, {TAB_OFF:#x}')
    a.I(f'v_mov_b32 v{vT2}, v{vC}')
    for i in range(1, 4):
        a.I(f's_cmp_eq_u32 s4, {i}')
        a.I(f's_cbranch_scc0 K1_TW{i}')
        a.I(f'v_mov_b32 v{vT2}, v{vC+i}')
        a.L(f'K1_TW{i}')
    a.I(f'buffer_store_dword v{vT2}, v{vTmp}, s[{sWS}:{sWS+3}], s5 offen')
    a.L('K1_NTAB')
    a.I(f'v_cmp_gt_u32 vcc, {CHUNK}, v0')
    a.I('s_waitcnt lgkmcnt(0)')
    a.I('s_and_saveexec_b64 s[6:7], vcc')
    a.I(f'ds_read_b32 v{vTmp}, v{vKey} offset:1024')
    a.I(f's_mul_i32 s5, s2, {CHUNK}')
    a.I(f'v_lshrrev_b32 v{vT2}, 8, v{vDst}')
    a.I(f's_waitcnt vmcnt({npf})' if False else 's_nop 0')
    a.I('s_cmp_lt_u32 s4, 4')
    a.I('s_cbranch_scc1 K1_W1')
    a.I(f's_waitcnt vmcnt({npf})')
    a.I('s_branch K1_W2')
    a.L('K1_W1')
    a.I(f's_waitcnt vmcnt({npf+1})')
    a.L('K1_W2')
    if cfg.get('dbgprint'):
        a.I('s_memrealtime s[78:79]')
    if cfg.get('stamps'):
        a.I('s_cmp_eq_u32 s4, 0')
        a.I('s_cbranch_scc0 K1_ST3')
        a.I('s_memrealtime s[68:69]')
        a.L('K1_ST3')
    a.I(f'v_lshl_or_b32 v{vRec+2}, v{vT2}, 14, v{vSrc}')
    a.I(f'v_mov_b32 v{vRec+3}, v{vE}')
    a.I('s_waitcnt lgkmcnt(0)')
    a.I(f'v_add_u32 v{vTmp}, v{vTmp}, v{vRank}')
    st = cfg.get('k1st', '')
    STG = 2048
    a.I(f'v_lshlrev_b32 v{vT2}, 4, v{vTmp}')
    a.I(f'v_lshlrev_b32 v{vTmp}, 5, v{vTmp}')
    a.I(f'ds_write_b128 v{vT2}, {vr(vRec,4)} offset:{STG}')
    a.I(f'ds_write_b128 v{vTmp}, {vr(vEF,4)} offset:{STG+CHUNK*16}')
    a.I(f'ds_write_b128 v{vTmp}, {vr(vEF+4,4)} offset:{STG+CHUNK*16+16}')
    a.I('s_mov_b64 exec, s[6:7]')
    a.I(f'v_lshlrev_b32 v{vTmp}, 4, v0')
    a.I(f's_mul_i32 s5, s2, {CHUNK*16}')
    a.I(f's_add_u32 s5, s5, {RECA_OFF:#x}')
    a.I(f's_mul_i32 s63, s2, {CHUNK*32}')
    a.I(f's_add_u32 s63, s63, {RECF_OFF - CHUNK*16:#x}')
    a.I(f'v_mov_b32 v{vT2}, s63')
    a.I(f'v_mov_b32 v{vKey}, s5')
    a.I(f'v_cmp_gt_u32 vcc, {CHUNK}, v0')
    a.I(f'v_cndmask_b32 v{vKey}, v{vT2}, v{vKey}, vcc')
    a.I(f'v_add_u32 v{vKey}, v{vKey}, v{vTmp}')
    a.I(f'v_add_u32 v{vT2}, v{vT2}, v{vTmp}')
    a.I(f'v_add_u32 v{vOff}, {1280*16}, v{vT2}')
    a.I(f'v_add_u32 v{vT2}, {640*16}, v{vT2}')
    a.I(f'v_cmp_gt_u32 vcc, {CHUNK*3-1280}, v0')
    a.I(f'v_mov_b32 v{vRank}, 0x7ff00000')
    a.I(f'v_cndmask_b32 v{vOff}, v{vRank}, v{vOff}, vcc')
    a.I('s_waitcnt lgkmcnt(0)')
    a.I('s_barrier')
    a.I(f'ds_read_b128 {vr(vRec,4)}, v{vTmp} offset:{STG}')
    a.I(f'ds_read_b128 {vr(vEF,4)}, v{vTmp} offset:{STG+640*16}')
    a.I(f'ds_read_b128 {vr(vEF+4,4)}, v{vTmp} offset:{STG+1280*16}')
    a.I('s_waitcnt lgkmcnt(2)')
    if not cfg.get('k1nost'):
        a.I(f'buffer_store_dwordx4 {vr(vRec,4)}, v{vKey}, s[{sWS}:{sWS+3}], 0 offen' + st)
    a.I('s_waitcnt lgkmcnt(1)')
    if not cfg.get('k1nost'):
        a.I(f'buffer_store_dwordx4 {vr(vEF,4)}, v{vT2}, s[{sWS}:{sWS+3}], 0 offen' + st)
    a.I('s_waitcnt lgkmcnt(0)')
    if not cfg.get('k1nost'):
        a.I(f'buffer_store_dwordx4 {vr(vEF+4,4)}, v{vOff}, s[{sWS}:{sWS+3}], 0 offen' + st)
    a.I('s_cmp_eq_u32 s4, 0')
    a.I('s_cbranch_scc0 K1_NT')
    if cfg.get('stamps'):
        stamp(a, cfg, 1, 62, 64, 38)
        a.I('v_mov_b32 v38, s66')
        a.I(f'buffer_store_dword v38, v39, s[{sWS}:{sWS+3}], 0 offen offset:8')
        a.I('v_mov_b32 v40, s68')
        a.I(f'buffer_store_dword v40, v39, s[{sWS}:{sWS+3}], 0 offen offset:12')
    a.L('K1_NT')
    if cfg.get('stamps'):
        a.I('s_memrealtime s[70:71]')
        a.I('s_lshl_b32 s5, s4, 2')
        a.I('s_add_u32 s5, s5, s62')
        a.I('s_waitcnt lgkmcnt(0)')
        a.I('v_mov_b32 v41, s70')
        a.I('v_mov_b32 v42, s5')
        a.I(f'buffer_store_dword v41, v42, s[{sWS}:{sWS+3}], 0 offen offset:16')
        if cfg.get('k1wait'):
            a.I('s_waitcnt vmcnt(0)')
            a.I('s_memrealtime s[70:71]')
            a.I('s_waitcnt lgkmcnt(0)')
            a.I('v_mov_b32 v41, s70')
            a.I(f'buffer_store_dword v41, v42, s[{sWS}:{sWS+3}], 0 offen offset:16')
    if cfg.get('dbgprint'):
        a.I('s_memrealtime s[80:81]')
        a.I('s_waitcnt lgkmcnt(0)')
        a.I('s_and_b32 s5, s2, 63')
        a.I('s_cmp_eq_u32 s5, 0')
        a.I('s_cbranch_scc0 K1_DBGSKIP')
        a.I('s_cmp_eq_u32 s4, 9')
        a.I('s_cbranch_scc0 K1_DBGSKIP')
        a.I('s_mov_b32 s84, s72')
        a.I('s_and_b32 s85, s73, 0xffff')
        a.I('s_mov_b32 s86, 256')
        a.I('s_mov_b32 s87, 0x20000')
        a.I('s_lshr_b32 s5, s2, 6')
        a.I('s_lshl_b32 s5, s5, 4')
        a.I('v_mov_b32 v42, s5')
        for i, r in enumerate((76, 78, 80)):
            a.I(f's_sub_u32 s5, s{r}, s74')
            a.I('v_mov_b32 v41, s5')
            a.I(f'buffer_store_dword v41, v42, s[84:87], 0 offen offset:{4*i}')
        a.L('K1_DBGSKIP')
    a.I('s_cmp_eq_u32 s4, 9')
    a.I('s_cbranch_scc1 K1_PS16')
    a.I('s_cmp_eq_u32 s4, 8')
    a.I('s_cbranch_scc0 K1_END')
    a.I('s_cmp_lt_u32 s2, 32')
    a.I('s_cbranch_scc1 K1_PSR')
    a.I('s_cmp_eq_u32 s2, 32')
    a.I('s_cbranch_scc0 K1_END')
    a.I(f'v_lshlrev_b32 v{vPrep}, 16, v{vPrep}')
    if scaled:
        a.I(f'v_mul_f32 v{vPrep}, {f2u(-LN2):#x}, v{vPrep}')
    a.I(f'buffer_store_dword v{vPrep}, v{vPrepAddr}, s[{sWS}:{sWS+3}], 0 offen')
    a.I('s_branch K1_END')
    a.L('K1_PSR')
    if scaled:
        a.I(f'v_lshlrev_b32 v{vPrep}, 16, v{vPrep}')
        a.I(f'v_mul_f32 v{vPrep}, {f2u(-LOG2E):#x}, v{vPrep}')
        a.I(f'v_cvt_pk_bf16_f32 v{vPrep}, v{vPrep}, v{vPrep}')
    a.L('K1_PS16')
    a.I(f'buffer_store_short v{vPrep}, v{vPrepAddr}, s[{sWS}:{sWS+3}], 0 offen')
    a.L('K1_END')
    a.I('s_endpgm')
    return name, 44, (96 if cfg.get('dbgprint') else 72)


def kd(a, name, nv, ns):
    a(f""".amdhsa_kernel {name}
  .amdhsa_next_free_vgpr {nv}
  .amdhsa_next_free_sgpr {ns}
  .amdhsa_accum_offset {(nv + 3) // 4 * 4}
  .amdhsa_group_segment_fixed_size 0
  .amdhsa_kernarg_size 88
  .amdhsa_user_sgpr_count 2
  .amdhsa_user_sgpr_kernarg_segment_ptr 1
  .amdhsa_system_sgpr_workgroup_id_x 1
  .amdhsa_float_denorm_mode_32 3
.end_amdhsa_kernel""")


HIST = 0
BASE = 1024
MAXR = 2048
ZERO16 = 2064
DEG = 2304
RNK = 2560
PROG = 2816
PATTERN = [0,1,2,3,4,5,6,0,7,6,5,4,0,3,7,2,7,4,5,6,1,3,2,1,4,5,3,0,7,6,2,1,7,1,2,6,3,5,4,0]
WL = 4096
CAP = 1024
ENT = 8192
YS = 12800
EFS = 21248
AGG = 55040
AGG_STRIDE = 272
CST = AGG + 160 * AGG_STRIDE
K2_LDS = CST + 6 * 1024


def gen_k2(a, cfg):
    name = 'main_kernel'
    scaled = cfg.get('scaled', False)
    NPF1 = cfg.get('npf1', 0)
    NPF2 = cfg.get('npf2', 0)
    a(f'.globl {name}\n.p2align 8\n.type {name},@function\n{name}:')
    sX, sWS, sOUT = 8, 12, 16
    sW, sB, sKEY, sNW, sRND, sMAXR = 4, 5, 6, 7, 20, 21
    sSEG0, sN, sCNT, sXO, sREM = 22, 23, 24, 25, 26
    sT0, sT1, sT2 = 27, 28, 29
    sMLO, sMHI = 30, 32
    sCL = 34
    sSAVE = 36
    sV0, sV1 = 38, 40
    sE = 48
    sNODE = 68
    sDBG = 64
    sVF = (42, 44, 46, 36)
    sBMF = 65
    vLane, vL16, vL15 = 1, 2, 3
    vTmp = 4
    vEntA, vYA, vEfA = 12, 13, 14
    vAL_A, vAH_A = 15, 16
    vENTc, vENTn = 17, 18
    vDummy = 19
    vProgA, vProgB, vProgP = 60, 61, 62
    vPat, vNodePat = 50, 51
    vWc, vWn = 20, 22
    vYraw = 24
    vYf = 26
    vWf = 30
    vHS = 34
    vT = 38
    vR = 42
    vAL, vAH = 52, 56
    vACC = 64
    D = cfg.get('D', 4)
    vXR = 104
    def xrs(k):
        return vXR + 4*k if k < 4 else 232 + 4*(k - 4)
    vTP = 120
    vH0, vH1 = 136, 152
    vBR = 168
    vCG = 184
    vBM = 200
    NV = 232 if D <= 4 else 248
    vRecA, vRecB = 200, 204
    vF = 208
    vFo = 224
    vP = 136

    def bm_loads():
        a.I(f's_and_b32 s{sT0}, s{sW}, 3')
        a.I(f's_lshl_b32 s{sT0}, s{sT0}, 13')
        a.I(f's_add_u32 s{sT0}, s{sT0}, {BMIX_OFF:#x}')
        a.I(f's_add_u32 s{sT1}, s{sT0}, 4096')
        for t in range(2):
            for ks in range(4):
                a.I(f'buffer_load_dwordx4 {vr(vBM+16*t+4*ks,4)}, v{vL16}, s[{sWS}:{sWS+3}], s{sT0 if t == 0 else sT1} offen offset:{1024*ks}')

    a.I('s_cmp_ge_u32 s2, 256')
    a.I('s_cbranch_scc1 K2_END')
    a.I('s_load_dwordx2 s[42:43], s[0:1], 80')
    a.I('s_load_dwordx2 s[44:45], s[0:1], 0')
    a.I('s_load_dwordx2 s[46:47], s[0:1], 64')
    vChunk, vTab, vInc, vCst = vP, vP+1, vP+3, vP+4
    a.I(f'v_lshrrev_b32 v{vTmp}, 6, v0')
    a.I(f'v_and_b32 v{vLane}, 63, v0')
    a.I(f'v_readfirstlane_b32 s{sW}, v{vTmp}')
    a.I(f'v_lshlrev_b32 v{vL16}, 4, v{vLane}')
    a.I(f'v_and_b32 v{vL15}, 15, v{vLane}')
    a.I(f's_mov_b32 s{sB}, s2')
    a.I(f's_and_b32 s{sKEY}, s2, 7')
    a.I(f's_lshl_b32 s{sKEY}, s{sKEY}, 5')
    a.I(f's_lshr_b32 s{sT0}, s2, 3')
    a.I(f's_or_b32 s{sKEY}, s{sKEY}, s{sT0}')
    a.I(f'v_and_b32 v{vChunk}, 31, v{vLane}')
    a.I(f's_lshl_b32 s{sT0}, s{sW}, 5')
    a.I(f'v_add_u32 v{vChunk}, s{sT0}, v{vChunk}')
    a.I(f'v_and_b32 v{vTmp}, 7, v{vChunk}')
    a.I(f'v_lshlrev_b32 v{vTmp}, 12, v{vTmp}')
    a.I(f'v_lshrrev_b32 v{vTmp+1}, 3, v{vChunk}')
    a.I(f'v_lshl_add_u32 v{vTmp}, v{vTmp+1}, 2, v{vTmp}')
    a.I(f's_and_b32 s{sT0}, s2, 7')
    a.I(f's_lshl_b32 s{sT0}, s{sT0}, 15')
    a.I(f's_lshr_b32 s{sT1}, s2, 3')
    a.I(f's_lshl_b32 s{sT1}, s{sT1}, 7')
    a.I(f's_add_u32 s{sT0}, s{sT0}, s{sT1}')
    a.I(f's_add_u32 s{sT0}, s{sT0}, {TAB_OFF:#x}')
    a.I(f's_lshl_b32 s{sT1}, s{sW}, 10')
    a.I(f's_add_u32 s{sT1}, s{sT1}, {BRAD_OFF:#x}')
    a.I(f's_cmp_lt_u32 s{sW}, 5')
    a.I(f's_cselect_b32 s{sT1}, s{sT1}, 0x7ff00000')
    a.I('s_waitcnt lgkmcnt(0)')
    if cfg.get('wsbase', 0):
        a.I(f's_add_u32 s42, s42, {cfg["wsbase"] << 20:#x}')
        a.I('s_addc_u32 s43, s43, 0')
    srd(a, sWS, 42, 0x6000000 if cfg.get('dumph') else (WS_SIZE if not cfg.get('stamps') else STAMP_OFF + 0x10000))
    a.I(f'buffer_load_dword v{vTab}, v{vTmp}, s[{sWS}:{sWS+3}], s{sT0} offen')
    a.I(f'buffer_load_dwordx4 {vr(vCst,4)}, v{vL16}, s[{sWS}:{sWS+3}], s{sT1} offen')
    if cfg.get('rwp', 0):
        a.I(f's_lshr_b32 s{sT0}, s{sB}, 3')
        a.I(f's_lshl_b32 s{sT0}, s{sT0}, 3')
        a.I(f's_add_u32 s{sT0}, s{sT0}, s{sW}')
        a.I(f's_mul_i32 s{sT0}, s{sT0}, 30000')
        a.I(f's_and_b32 s{sT1}, s{sB}, 7')
        a.I(f's_mul_i32 s{sT1}, s{sT1}, 3750')
        a.I(f's_add_u32 s{sT0}, s{sT0}, s{sT1}')
        a.I(f's_sub_i32 s{sT0}, s{sT0}, {cfg.get("rwpoff", 700)}')
        a.I(f's_max_i32 s{sT0}, s{sT0}, 0')
        a.I(f'v_lshlrev_b32 v{vTmp}, 7, v{vLane}')
        a.I(f'v_cmp_gt_u32 vcc, {cfg.get("rwplines", 42)}, v{vLane}')
        a.I(f'v_mov_b32 v{vTmp+1}, 0x7ff00000')
        a.I(f'v_cndmask_b32 v{vTmp}, v{vTmp+1}, v{vTmp}, vcc')
        a.I(f'buffer_load_dword v{vDummy}, v{vTmp}, s[{sWS}:{sWS+3}], s{sT0} offen')
    srd(a, sX, 44, X_BYTES)
    srd(a, sOUT, 46, X_BYTES)
    if cfg.get('stamps'):
        cfg['stamp_srd'] = sWS
        a.I(f's_lshl_b32 s{sDBG}, s2, 7')
        a.I(f's_add_u32 s{sDBG}, s{sDBG}, {STAMP_OFF + 0x8000:#x}')
    lstamp(a, cfg, 0, sW)
    a.I(f'v_mov_b32 v{vTmp+1}, 0')
    a.I(f'v_lshlrev_b32 v{vTmp+2}, 2, v0')
    a.I(f'v_and_b32 v{vTmp+3}, 0x400, v{vTmp+2}')
    a.I(f'v_add_u32 v{vTmp+2}, v{vTmp+2}, v{vTmp+3}')
    a.I(f'ds_write_b32 v{vTmp+2}, v{vTmp+1}')
    a.I(f'v_mov_b32 v{vPat}, 63')
    cnt = [0]*8
    for r, w in enumerate(PATTERN):
        a.I(f'v_writelane_b32 v{vPat}, {w | (cnt[w] << 3)}, {r}')
        cnt[w] += 1
    for i in range(40):
        a.I(f'v_mov_b32 v{vACC+i}, 0')
    a.I(f's_mov_b32 s{sMLO}, 0x0f0f0f0f')
    a.I(f's_mov_b32 s{sMLO+1}, 0x0f0f0f0f')
    a.I(f's_mov_b32 s{sMHI}, 0xf0f0f0f0')
    a.I(f's_mov_b32 s{sMHI+1}, 0xf0f0f0f0')
    a.I(f's_mov_b32 s{sCL}, {f2u(-LOG2E):#x}')
    a.I(f's_mov_b32 s{sCL+1}, {f2u(-LOG2E):#x}')
    a.I(f's_mov_b32 s{sRND}, 0')
    a.I(f's_mov_b32 s{sBMF}, 0')
    a.I('s_waitcnt lgkmcnt(0)')
    a.I('s_barrier')
    a.I('s_waitcnt vmcnt(%d)' % (1 if cfg.get('rwp', 0) else 0))
    lstamp(a, cfg, 1, sW)
    vCntP, vExcP, vRbP = vTmp+1, vTmp+2, vTmp+3
    a.I(f'v_lshrrev_b32 v{vInc}, 16, v{vTab}')
    a.I(f'v_lshl_add_u32 v{vTmp}, v{vLane}, 4, s{sW}' if False else f'v_mov_b32 v{vTmp+4}, {CHUNK}')
    a.I(f'v_and_b32 v{vRbP}, 0xffff, v{vTab}')
    a.I(f'v_mov_b32 v{vCntP}, v{vInc}')
    a.I(f'v_mad_u32_u24 v{vRbP}, v{vChunk}, v{vTmp+4}, v{vRbP}')
    a.I(f's_min_u32 s{sT1}, s{sW}, 5')
    a.I(f's_lshl_b32 s{sT1}, s{sT1}, 10')
    a.I(f's_add_u32 s{sT1}, s{sT1}, {CST}')
    a.I(f'v_add_u32 v{vTmp}, s{sT1}, v{vL16}')
    a.I(f'ds_write_b128 v{vTmp}, {vr(vCst,4)}')
    scan_dpp(a, vInc, False)
    a.I('s_nop 0')
    a.I(f'v_sub_u32 v{vExcP}, v{vInc}, v{vCntP}')
    a.I(f'v_readlane_b32 s{sNW}, v{vInc}, 31')
    a.I(f'v_mov_b32 v{vTmp+4}, {MAXR}')
    a.I('s_nop 2')
    a.I(f's_add_u32 s{sT0}, s{sNW}, 127')
    a.I(f's_lshr_b32 s{sT0}, s{sT0}, 7')
    a.I(f'v_mov_b32 v{vTmp}, s{sT0}')
    a.I(f'ds_max_u32 v{vTmp+4}, v{vTmp}')
    a.L('K2_ROUND')
    vK, vHi, vAd, vVal = vP, vP+1, vP+2, vP+3
    a.I(f's_lshl_b32 s{sT0}, s{sRND}, 7')
    a.I(f's_lshl_b32 s{sT1}, s{sW}, 9')
    a.I(f'v_sub_u32 v{vK}, s{sT0}, v{vExcP}')
    a.I(f's_add_u32 s{sT1}, s{sT1}, {WL}')
    a.I(f'v_add_u32 v{vHi}, 128, v{vK}')
    a.I(f'v_max_i32 v{vAd}, 0, v{vK}')
    a.I(f'v_lshrrev_b32 v{vTmp}, 5, v{vLane}')
    a.I(f'v_min_i32 v{vHi}, v{vHi}, v{vCntP}')
    a.I(f'v_add_u32 v{vAd}, v{vAd}, v{vTmp}')
    a.I(f'v_add_u32 v{vVal}, v{vRbP}, v{vAd}')
    a.I(f'v_sub_u32 v{vHi}, v{vHi}, v{vAd}')
    a.I(f'v_sub_u32 v{vAd}, v{vAd}, v{vK}')
    a.I(f'v_lshl_add_u32 v{vAd}, v{vAd}, 2, s{sT1}')
    a.L('K2_EXP')
    a.I(f'v_cmp_lt_i32 vcc, 0, v{vHi}')
    a.I('s_and_b64 exec, exec, vcc')
    a.I('s_cbranch_scc0 K2_EXPD')
    a.I(f'ds_write_b32 v{vAd}, v{vVal}')
    a.I(f'v_add_u32 v{vHi}, -2, v{vHi}')
    a.I(f'v_add_u32 v{vVal}, 2, v{vVal}')
    a.I(f'v_add_u32 v{vAd}, 8, v{vAd}')
    a.I('s_branch K2_EXP')
    a.L('K2_EXPD')
    a.I('s_mov_b64 exec, -1')
    a.I(f'v_lshl_add_u32 v{vTmp}, v{vLane}, 2, s{sT1}')
    a.I(f's_sub_i32 s{sT2}, s{sNW}, s{sT0}')
    a.I(f'ds_read_b32 v{vP}, v{vTmp}')
    a.I(f'ds_read_b32 v{vP+1}, v{vTmp} offset:256')
    a.I(f'v_cmp_gt_i32 s[{sV0}:{sV0+1}], s{sT2}, v{vLane}')
    a.I(f'v_add_u32 v{vTmp}, 64, v{vLane}')
    a.I(f'v_cmp_gt_i32 s[{sV1}:{sV1+1}], s{sT2}, v{vTmp}')
    a.I(f'v_mov_b32 v{vTmp}, 0x7ffffff0')
    a.I('s_waitcnt lgkmcnt(0)')
    a.I(f'v_lshlrev_b32 v{vP}, 4, v{vP}')
    a.I(f'v_lshlrev_b32 v{vP+1}, 4, v{vP+1}')
    a.I(f'v_cndmask_b32 v{vP}, v{vTmp}, v{vP}, s[{sV0}:{sV0+1}]')
    a.I(f'v_cndmask_b32 v{vP+1}, v{vTmp}, v{vP+1}, s[{sV1}:{sV1+1}]')
    lstamp(a, cfg, 2, sW)
    for rec, vo in ((vRecA, vP), (vRecB, vP+1)):
        a.I(f'buffer_load_dwordx4 {vr(rec,4)}, v{vo}, s[{sWS}:{sWS+3}], 0 offen')
    a.I(f'v_lshrrev_b32 v{vTmp+4}, 1, v{vLane}')
    a.I(f'v_lshl_add_u32 v{vTmp}, v{vTmp+4}, 2, s{sT1}')
    for i in range(4):
        a.I(f'ds_read_b32 v{vFo+i}, v{vTmp} offset:{128*i}')
    a.I(f'v_and_b32 v{vTmp+5}, 1, v{vLane}')
    a.I(f'v_lshlrev_b32 v{vTmp+5}, 4, v{vTmp+5}')
    a.I(f'v_add_u32 v{vTmp+5}, {RECF_OFF:#x}, v{vTmp+5}')
    for i in range(4):
        a.I(f'v_add_u32 v{vTmp}, {32*i}, v{vTmp+4}')
        a.I(f'v_cmp_gt_i32 s[{sVF[i]}:{sVF[i]+1}], s{sT2}, v{vTmp}')
    a.I(f'v_mov_b32 v{vTmp}, 0x7ffffff0')
    a.I('s_waitcnt lgkmcnt(0)')
    for i in range(4):
        a.I(f'v_lshl_add_u32 v{vFo+i}, v{vFo+i}, 5, v{vTmp+5}')
        a.I(f'v_cndmask_b32 v{vFo+i}, v{vTmp}, v{vFo+i}, s[{sVF[i]}:{sVF[i]+1}]')
    vOne = vP+2
    a.I(f'v_mov_b32 v{vOne}, 1')
    a.I(f'v_lshlrev_b32 v{vP+10}, 2, v{vLane}')
    a.I('s_waitcnt vmcnt(0)')
    lstamp(a, cfg, 3, sW)
    vBin = (vP+4, vP+5); vEnt = (vP+6, vP+7); vRank = (vP+8, vP+9); vDl = (vP+22, vP+23)
    for i, rec in enumerate((vRecA, vRecB)):
        a.I(f'v_bfe_u32 v{vDl[i]}, v{rec+2}, 14, 6')
        a.I(f'v_lshlrev_b32 v{vDl[i]}, 2, v{vDl[i]}')
    def ef_loads():
        for i in range(4):
            a.I(f'buffer_load_dwordx4 {vr(vF+4*i,4)}, v{vFo+i}, s[{sWS}:{sWS+3}], 0 offen')
    a.I(f's_cmp_eq_u32 s{sRND}, 0')
    a.I('s_cbranch_scc1 K2_R0')
    ef_loads()
    a.I('s_branch K2_OWNED')
    a.L('K2_R0')
    for i, m in enumerate((sV0, sV1)):
        a.I(f's_mov_b64 exec, s[{m}:{m+1}]')
        a.I(f's_cbranch_execz K2_D{i}')
        a.I(f'ds_add_u32 v{vDl[i]}, v{vOne} offset:{DEG}')
        a.L(f'K2_D{i}')
    a.I('s_mov_b64 exec, -1')
    a.I(f'v_sub_u32 v{vP+12}, 63, v{vLane}')
    a.I(f's_mul_i32 s{sT0}, s{sW}, 5')
    a.I(f'v_mov_b32 v{vP+13}, 0')
    a.I('s_waitcnt lgkmcnt(0)')
    a.I('s_barrier')
    lstamp(a, cfg, 4, sW)
    ef_loads()
    if NPF2 > 0:
        a.I(f's_lshr_b32 s{sT1}, s{sB}, 3')
        a.I(f's_add_u32 s{sT2}, s{sW}, {NPF1}')
        a.I(f's_lshl_b32 s{sT2}, s{sT2}, 5')
        a.I(f's_add_u32 s{sT1}, s{sT1}, s{sT2}')
        a.I(f's_lshl_b32 s{sT1}, s{sT1}, 13')
        a.I(f's_cmp_lt_u32 s{sW}, {NPF2}')
        a.I(f's_cselect_b32 s{sT1}, s{sT1}, 0x7ff00000')
        a.I(f'v_lshlrev_b32 v{vTmp}, 7, v{vLane}')
        a.I(f'v_add_u32 v{vTmp}, s{sT1}, v{vTmp}')
        a.I(f'buffer_load_dword v{vDummy}, v{vTmp}, s[{sX}:{sX+3}], 0 offen')
    a.I(f'ds_read_b32 v{vP+11}, v{vP+10} offset:{DEG}')
    for i, rec in enumerate((vRecA, vRecB)):
        a.I(f'v_and_b32 v{vBin[i]}, 0x3fff, v{rec+2}')
    a.I('s_waitcnt lgkmcnt(0)')
    a.I(f'v_lshl_add_u32 v{vP+11}, v{vP+11}, 6, v{vP+12}')
    a.I('s_nop 0')
    for i in range(5):
        a.I(f'v_readlane_b32 s{sNODE+i}, v{vP+11}, s{sT0}')
        a.I(f's_add_u32 s{sT0}, s{sT0}, 1')
    a.I('s_nop 0')
    for i in range(5):
        a.I(f'v_cmp_gt_u32 vcc, s{sNODE+i}, v{vP+11}')
        a.I('s_nop 1')
        a.I(f'v_addc_co_u32 v{vP+13}, vcc, 0, v{vP+13}, vcc')
    a.I(f'ds_add_u32 v{vP+10}, v{vP+13} offset:{RNK}')
    a.I('s_waitcnt lgkmcnt(0)')
    a.I('s_barrier')
    a.I(f'ds_read_b32 v{vP+11}, v{vP+10} offset:{RNK}')
    a.I('s_waitcnt lgkmcnt(0)')
    a.I(f'v_lshlrev_b32 v{vP+11}, 2, v{vP+11}')
    a.I(f'ds_bpermute_b32 v{vNodePat}, v{vP+11}, v{vPat}')
    a.I('s_waitcnt lgkmcnt(0)')
    a.L('K2_OWNED')
    for i in range(2):
        a.I(f'ds_bpermute_b32 v{vP+24+i}, v{vDl[i]}, v{vNodePat}')
    for i, rec in enumerate((vRecA, vRecB)):
        a.I(f'v_and_b32 v{vBin[i]}, 0x3fff, v{rec+2}')
        a.I(f'v_mul_u32_u24 v{vP+10+i}, 838, v{vBin[i]}')
        a.I(f'v_lshlrev_b32 v{vEnt[i]}, 10, v{vBin[i]}')
        a.I(f'v_lshrrev_b32 v{vP+10+i}, 18, v{vP+10+i}')
    a.I('s_waitcnt lgkmcnt(0)')
    for i in range(2):
        a.I(f'v_and_b32 v{vTmp}, 7, v{vP+24+i}')
        a.I(f'v_lshl_add_u32 v{vP+10+i}, v{vTmp}, 5, v{vP+10+i}')
        a.I(f'v_lshlrev_b32 v{vBin[i]}, 2, v{vP+10+i}')
        a.I(f'v_and_b32 v{vTmp}, 0x38, v{vP+24+i}')
        a.I(f'v_or_b32 v{vEnt[i]}, v{vEnt[i]}, v{vTmp}')
    for i, m in enumerate((sV0, sV1)):
        a.I(f's_mov_b64 exec, s[{m}:{m+1}]')
        a.I(f's_cbranch_execz K2_H{i}')
        a.I(f'ds_add_rtn_u32 v{vRank[i]}, v{vBin[i]}, v{vOne} offset:{HIST}')
        a.L(f'K2_H{i}')
    a.I('s_mov_b64 exec, -1')
    for sl in range(5):
        a.I(f's_add_u32 s{sT0}, s{sW}, {sl << 3}')
        a.I(f'v_cmp_eq_u32 vcc, s{sT0}, v{vNodePat}')
        a.I(f's_ff1_i32_b64 s{sNODE+sl}, vcc')
        a.I(f's_mul_i32 s{sNODE+sl}, s{sNODE+sl}, {4*AGG_STRIDE}')
    a.I(f'v_mov_b32 v{vTmp}, {MAXR}')
    a.I('s_waitcnt lgkmcnt(0)')
    a.I('s_barrier')
    lstamp(a, cfg, 5, sW)
    vC, vS, vTot = vP+12, vP+16, vP+20
    a.I(f'ds_read_b32 v{vTmp+5}, v{vTmp}')
    hist_prefix(a, vC, vS, vTot, vL16, HIST, BASE)
    a.I(f'v_readfirstlane_b32 s{sMAXR}, v{vTmp+5}')
    a.I(f's_lshl_b32 s{sT0}, s{sW}, 3')
    a.I(f'v_readlane_b32 s{sSEG0}, v{vS}, s{sT0}')
    a.I(f's_add_u32 s{sT0}, s{sT0}, 8')
    a.I(f's_min_u32 s{sT0}, s{sT0}, 63')
    a.I(f'v_readlane_b32 s{sT1}, v{vS}, s{sT0}')
    a.I(f'v_readlane_b32 s{sT2}, v{vTot}, 63')
    a.I('s_waitcnt lgkmcnt(0)')
    a.I(f'ds_read_b32 v{vP+10}, v{vBin[0]} offset:{BASE}')
    a.I(f'ds_read_b32 v{vP+11}, v{vBin[1]} offset:{BASE}')
    a.I(f's_cmp_eq_u32 s{sW}, 7')
    a.I(f's_cselect_b32 s{sT1}, s{sT2}, s{sT1}')
    a.I(f's_sub_u32 s{sN}, s{sT1}, s{sSEG0}')
    a.I('s_waitcnt lgkmcnt(0)')
    for i in range(2):
        a.I(f'v_add_u32 v{vRank[i]}, v{vRank[i]}, v{vP+10+i}')
        a.I(f'v_lshlrev_b32 v{vP+10+i}, 2, v{vRank[i]}')
    for i, m in enumerate((sV0, sV1)):
        a.I(f's_mov_b64 exec, s[{m}:{m+1}]')
        a.I(f's_cbranch_execz K2_S{i}')
        a.I(f'ds_write_b32 v{vP+10+i}, v{vEnt[i]} offset:{ENT}')
        if cfg.get('dumph'):
            a.I(f's_lshl_b32 s{sT0}, s{sB}, 12')
            a.I(f's_add_u32 s{sT0}, s{sT0}, 0x1000000')
            a.I(f'buffer_store_dword v{(vRecA, vRecB)[i]+3}, v{vP+10+i}, s[{sWS}:{sWS+3}], s{sT0} offen')
            a.I(f's_add_u32 s{sT0}, s{sT0}, 0x100000')
            a.I(f'buffer_store_dword v{vEnt[i]}, v{vP+10+i}, s[{sWS}:{sWS+3}], s{sT0} offen')
        a.L(f'K2_S{i}')
    a.I('s_mov_b64 exec, -1')
    a.I(f'v_lshrrev_b32 v{vTmp+4}, 1, v{vLane}')
    a.I(f'v_lshlrev_b32 v{vTmp+4}, 2, v{vTmp+4}')
    a.I(f'v_add_u32 v{vTmp+5}, 128, v{vTmp+4}')
    a.I(f'ds_bpermute_b32 v{vP+24}, v{vTmp+4}, v{vRank[0]}')
    a.I(f'ds_bpermute_b32 v{vP+25}, v{vTmp+5}, v{vRank[0]}')
    a.I(f'ds_bpermute_b32 v{vP+26}, v{vTmp+4}, v{vRank[1]}')
    a.I(f'ds_bpermute_b32 v{vP+27}, v{vTmp+5}, v{vRank[1]}')
    a.I(f'v_add_u32 v{vEntA}, s{sSEG0}, v{vL15}')
    a.I(f'v_lshlrev_b32 v{vEntA}, 2, v{vEntA}')
    a.I(f'v_cmp_gt_i32 vcc, s{sN}, v{vL15}')
    a.I('s_waitcnt lgkmcnt(0)')
    a.I('s_barrier')
    lstamp(a, cfg, 6, sW)
    a.I(f'ds_read_b32 v{vENTc}, v{vEntA} offset:{ENT}')
    a.I(f'v_mov_b32 v{vTmp}, 0')
    a.I(f'v_lshlrev_b32 v{vTmp+4}, 2, v0')
    a.I(f's_cmp_lt_u32 s{sW}, 4')
    a.I('s_cbranch_scc0 K2_Z2')
    a.I(f'ds_write_b32 v{vTmp+4}, v{vTmp} offset:{HIST}')
    a.L('K2_Z2')
    a.I('s_waitcnt lgkmcnt(0)')
    a.I(f'v_cndmask_b32 v{vENTc}, 0, v{vENTc}, vcc')
    a.I('s_nop 0')
    for j in range(D + 1):
        a.I(f'v_readlane_b32 s{sE+j}, v{vENTc}, {j}')
    a.I('s_nop 3')
    for j in range(D):
        a.I(f's_and_b32 s{sXO}, s{sE+j}, 0xfffffc00')
        a.I(f'buffer_load_dwordx4 {vr(xrs(j),4)}, v{vL16}, s[{sX}:{sX+3}], s{sXO} offen' + cfg.get('xld', ''))
    a.I(f's_and_b32 s{sXO}, s{sE+D}, 0xfffffc00')
    a.I(f'v_and_b32 v{vTmp+5}, 1, v{vLane}')
    a.I(f'v_lshlrev_b32 v{vTmp+5}, 4, v{vTmp+5}')
    for i in range(4):
        a.I(f'v_lshl_add_u32 v{vFo+i}, v{vP+24+i}, 5, v{vTmp+5}')
    a.I(f's_waitcnt vmcnt({D})')
    for i, (m, rec) in enumerate(((sV0, vRecA), (sV1, vRecB))):
        a.I(f's_mov_b64 exec, s[{m}:{m+1}]')
        a.I(f's_cbranch_execz K2_T{i}')
        a.I(f'v_lshlrev_b32 v{vTmp+4}, 3, v{vRank[i]}')
        a.I(f'ds_write_b64 v{vTmp+4}, {vr(rec,2)} offset:{YS}')
        a.L(f'K2_T{i}')
    for i in range(4):
        a.I(f's_mov_b64 exec, s[{sVF[i]}:{sVF[i]+1}]')
        a.I(f's_cbranch_execz K2_U{i}')
        a.I(f'ds_write_b128 v{vFo+i}, {vr(vF+4*i,4)} offset:{EFS}')
        a.L(f'K2_U{i}')
    a.I('s_mov_b64 exec, -1')
    a.I(f'v_add_u32 v{vTmp}, {CST}, v{vL16}')
    for q in range(4):
        a.I(f'ds_read_b128 {vr(vBR+4*q,4)}, v{vTmp} offset:{1024*q}')
    a.I(f'v_and_b32 v{vTmp+4}, 3, v{vLane}')
    a.I(f'v_lshlrev_b32 v{vTmp+4}, 6, v{vTmp+4}')
    a.I(f'v_add_u32 v{vTmp+4}, {CST+4096}, v{vTmp+4}')
    for q in range(4):
        a.I(f'ds_read_b128 {vr(vCG+4*q,4)}, v{vTmp+4} offset:{16*q}')

    def w_compute(dst):
        ops = []
        ops.append(f'v_lshlrev_b32 v{vYf}, 16, v{vYraw}')
        ops.append(f'v_and_b32 v{vYf+1}, 0xffff0000, v{vYraw}')
        ops.append(f'v_lshlrev_b32 v{vYf+2}, 16, v{vYraw+1}')
        ops.append(f'v_and_b32 v{vYf+3}, 0xffff0000, v{vYraw+1}')
        for f in range(4):
            yp = vYf + (f & 2)
            s = f & 1
            for h in range(2):
                cg = vCG + 4*f + 2*h
                if f == 0:
                    ops.append(f'v_pk_mul_f32 {vr(vWf+2*h,2)}, {vr(yp,2)}, {vr(cg,2)} op_sel:[{s},0] op_sel_hi:[{s},1]')
                else:
                    ops.append(f'v_pk_fma_f32 {vr(vWf+2*h,2)}, {vr(yp,2)}, {vr(cg,2)}, {vr(vWf+2*h,2)} op_sel:[{s},0,0] op_sel_hi:[{s},1,1]')
        ops.append(f'v_cvt_pk_bf16_f32 v{dst}, v{vWf}, v{vWf+1}')
        ops.append(f'v_cvt_pk_bf16_f32 v{dst+1}, v{vWf+2}, v{vWf+3}')
        return ops

    def h_mfma():
        ops = []
        for p, H in ((0, vH0), (1, vH1)):
            ops.append(f'v_mfma_f32_32x32x16_bf16 {vr(H,16)}, {vr(vAL,4)}, {vr(vBR+8*p,4)}, 0')
            ops.append(f'v_mfma_f32_32x32x16_bf16 {vr(H,16)}, {vr(vAH,4)}, {vr(vBR+8*p+4,4)}, {vr(H,16)}')
        return ops

    def hpair(q):
        if q == 7:
            return vHS, vHS + 2
        qq = q % 8
        return vH0 + 2*qq, vH1 + 2*qq

    def z_ops(q):
        h0, h1 = hpair(q)
        if scaled:
            return []
        vZ = 8 if cfg.get('zsep') else vT
        return [f'v_pk_mul_f32 {vr(vZ,2)}, {vr(h0,2)}, s[{sCL}:{sCL+1}]',
                f'v_pk_mul_f32 {vr(vZ+2,2)}, {vr(h1,2)}, s[{sCL}:{sCL+1}]']

    def exp_ops(q):
        h0, h1 = hpair(q)
        if scaled:
            return [f'v_exp_f32 v{vT}, v{h0}', f'v_exp_f32 v{vT+1}, v{h0+1}',
                    f'v_exp_f32 v{vT+2}, v{h1}', f'v_exp_f32 v{vT+3}, v{h1+1}']
        vZ = 8 if cfg.get('zsep') else vT
        return [f'v_exp_f32 v{vT+i}, v{vZ+i}' for i in range(4)]

    add_ops = [f'v_pk_add_f32 {vr(vT,2)}, {vr(vT,2)}, 1.0 op_sel_hi:[1,0]',
               f'v_pk_add_f32 {vr(vT+2,2)}, {vr(vT+2,2)}, 1.0 op_sel_hi:[1,0]']
    rcp_ops = [f'v_rcp_f32 v{vT+i}, v{vT+i}' for i in range(4)]

    def r_ops(q):
        h0, h1 = hpair(q)
        rb = vR + 4*(q % 2)
        return [f'v_pk_mul_f32 {vr(rb,2)}, {vr(h0,2)}, {vr(vT,2)}',
                f'v_pk_mul_f32 {vr(rb+2,2)}, {vr(h1,2)}, {vr(vT+2,2)}']

    a.I(f'v_lshrrev_b32 v{vTmp}, 2, v{vLane}')
    a.I(f'v_add_u32 v{vYA}, s{sSEG0}, v{vTmp}')
    a.I(f'v_lshlrev_b32 v{vYA}, 3, v{vYA}')
    a.I(f'v_bfe_u32 v{vTmp}, v{vLane}, 3, 2')
    a.I(f'v_and_b32 v{vTmp+4}, 3, v{vLane}')
    a.I(f'v_lshl_add_u32 v{vTmp}, v{vTmp}, 2, v{vTmp+4}')
    a.I(f'v_add_u32 v{vTmp}, s{sSEG0}, v{vTmp}')
    a.I(f'v_lshlrev_b32 v{vTmp}, 5, v{vTmp}')
    a.I(f'v_lshrrev_b32 v{vTmp+4}, 5, v{vLane}')
    a.I(f'v_lshl_add_u32 v{vEfA}, v{vTmp+4}, 4, v{vTmp}')
    a.I(f'v_add_u32 v{vEfA}, {EFS}, v{vEfA}')
    a.I(f'v_mov_b32 v{vTmp}, {ZERO16}')
    a.I(f'v_cndmask_b32 v{vAL_A}, v{vTmp}, v{vEfA}, s[{sMLO}:{sMLO+1}]')
    a.I(f'v_cndmask_b32 v{vAH_A}, v{vTmp}, v{vEfA}, s[{sMHI}:{sMHI+1}]')
    for i in range(8):
        a.I(f'v_mov_b32 v{vTP+8+i}, 0')
    for i in range(4):
        a.I(f'v_mov_b32 v{vR+4+i}, 0')
    a.I(f's_mov_b32 s{sE+15}, 0')
    a.I(f's_mov_b32 s{sCNT}, s{sN}')
    a.I(f's_sub_i32 s{sREM}, s{sN}, 16')
    a.I('s_waitcnt lgkmcnt(0)')
    if cfg.get('dumph'):
        a.I(f's_lshl_b32 s{sT0}, s{sB}, 3')
        a.I(f's_add_u32 s{sT0}, s{sT0}, s{sW}')
        a.I(f's_lshl_b32 s{sT0}, s{sT0}, 2')
        a.I(f's_add_u32 s{sT0}, s{sT0}, 0x1200000')
        a.I(f'v_mov_b32 v{vTmp}, s{sSEG0}')
        a.I(f'v_mov_b32 v{vTmp+4}, 0')
        a.I(f'buffer_store_dword v{vTmp}, v{vTmp+4}, s[{sWS}:{sWS+3}], s{sT0} offen')
    a.I('s_barrier')
    lstamp(a, cfg, 7, sW)
    a.I(f'ds_read_b128 {vr(vAL,4)}, v{vAL_A}')
    a.I(f'ds_read_b128 {vr(vAH,4)}, v{vAH_A}')
    a.I(f'ds_read_b64 {vr(vYraw,2)}, v{vYA} offset:{YS}')
    a.I('s_waitcnt lgkmcnt(1)')
    if cfg.get('dly') == 1:
        a.I('s_nop 15'); a.I('s_nop 15')
    for op in h_mfma():
        a.I(op)
    a.I('s_waitcnt lgkmcnt(0)')
    for op in w_compute(vWc):
        a.I(op)
    a.I('s_nop 7')
    pn = str(cfg.get('pnop', '0000'))
    pn = [int(c) for c in pn.zfill(4)]
    if cfg.get('hnop'):
        a.I('s_nop 15'); a.I('s_nop 15')
    for op in z_ops(0):
        a.I(op)
    if pn[0]: a.I(f's_nop {pn[0]}')
    for op in exp_ops(0):
        a.I(op)
    a.I(f's_nop {pn[1]}')
    for op in add_ops:
        a.I(op)
    if pn[2]: a.I(f's_nop {pn[2]}')
    for op in rcp_ops:
        a.I(op)
    a.I(f's_nop {pn[3]}')
    for op in r_ops(0) + z_ops(1):
        a.I(op)

    if cfg.get('padj'):
        a.I('s_branch K2_PADJ')
    for _ in range(cfg.get('pad', 0)):
        a.I('s_nop 0')
    if cfg.get('padj'):
        a.L('K2_PADJ')
    if cfg.get('dly') == 2:
        a.I('s_nop 15'); a.I('s_nop 15')
    if cfg.get('dly') == 3:
        a.I('s_waitcnt vmcnt(0)')
    if cfg.get('prio') == 'dyn':
        a.I(f's_lshl_b32 s{sT0}, s{sW}, 2')
        a.I(f's_add_u32 s{sT1}, s{sT0}, {PROG}')
        a.I(f'v_mov_b32 v{vProgA}, s{sT1}')
        a.I(f's_xor_b32 s{sT0}, s{sT0}, 16')
        a.I(f's_add_u32 s{sT1}, s{sT0}, {PROG}')
        a.I(f'v_mov_b32 v{vProgB}, s{sT1}')
    if cfg.get('prio') == 'young':
        a.I(f's_cmp_ge_u32 s{sW}, 4')
        a.I('s_cbranch_scc0 K2_PR')
        a.I('s_setprio 1')
        a.L('K2_PR')
    a.L('K2_LOOP')
    wn_ops = w_compute(vWn)
    for j in range(16):
        a(f'    ; ---- slot {j}')
        if j == 13 and cfg.get('dumph'):
            a.I(f's_cmp_eq_u32 s{sBMF}, 0')
            a.I('s_cbranch_scc0 K2_NODUMP')
            a.I(f's_lshl_b32 s{sT0}, s{sB}, 3')
            a.I(f's_add_u32 s{sT0}, s{sT0}, s{sW}')
            a.I(f's_lshl_b32 s{sT0}, s{sT0}, 14')
            a.I(f's_add_u32 s{sT0}, s{sT0}, 0x2000000')
            a.I(f'v_lshlrev_b32 v{vTmp}, 2, v{vLane}')
            dl = [vACC+i for i in range(40)] + [vR+i for i in range(8)] + [vTP+i for i in range(16)]
            for r, reg in enumerate(dl):
                if r and r % 16 == 0:
                    a.I(f's_add_u32 s{sT0}, s{sT0}, 4096')
                a.I(f'buffer_store_dword v{reg}, v{vTmp}, s[{sWS}:{sWS+3}], s{sT0} offen offset:{(r%16)*256}')
            a.L('K2_NODUMP')
        if j == 0:
            a.I(f'ds_read_b32 v{vENTn}, v{vEntA} offset:{ENT+64}')
            a.I(f'ds_read_b64 {vr(vYraw,2)}, v{vYA} offset:{YS+128}')
            if cfg.get('prio') == 'dyn':
                a.I(f'v_mov_b32 v{vTmp}, s{sCNT}')
                a.I(f'ds_write_b32 v{vProgA}, v{vTmp}')
                a.I(f'ds_read_b32 v{vProgP}, v{vProgB}')
        nocomp = cfg.get('nocomp'); noload = cfg.get('noload'); drop = str(cfg.get('drop', '')).split('+')
        if not noload:
            a.I(f's_waitcnt vmcnt({D-1 if cfg.get("dly") != 4 else D-2})')
        if cfg.get('dly') == 5:
            a.I('s_nop 1')
        xr = xrs(j % D)
        tp = vTP + 8*(j % 2)
        if not nocomp and 'mfma' not in drop:
            a.I(f'v_mfma_f32_4x4x4_16b_bf16 {vr(tp,4)}, {vr(vWc,2)}, {vr(xr,2)}, 0 cbsz:4 abid:{j}')
            a.I(f'v_mfma_f32_4x4x4_16b_bf16 {vr(tp+4,4)}, {vr(vWc,2)}, {vr(xr+2,2)}, 0 cbsz:4 abid:{j}')
        late = cfg.get('ldlate')
        if not noload and not late:
            a.I(f'buffer_load_dwordx4 {vr(xr,4)}, v{vL16}, s[{sX}:{sX+3}], s{sXO} offen' + cfg.get('xld', ''))
        q = j // 2 + 1 if j % 2 == 0 else (j + 1) // 2
        if not nocomp and 'trans' not in drop:
            for op in (exp_ops(q) if j % 2 == 0 else rcp_ops):
                a.I(op)
        if not noload and late:
            a.I(f'buffer_load_dwordx4 {vr(xr,4)}, v{vL16}, s[{sX}:{sX+3}], s{sXO} offen' + cfg.get('xld', ''))
        jn = j + D + 1
        src_ent = vENTc if jn < 16 else vENTn
        if 'rl' not in drop:
            a.I(f'v_readlane_b32 s{sE+jn%16}, v{src_ent}, {jn%16}')
        jm = (j - 1) % 16
        tpm = vTP + 8*((j - 1) % 2)
        rb = vR + 4*((((j - 1) // 2)) % 2)
        sel = (j - 1) & 1
        if not nocomp:
            if 'idx' not in drop:
                a.I(f's_set_gpr_idx_on s{sE+jm}, gpr_idx(SRC2,DST)')
                if cfg.get('fnop', 0) & 1: a.I('s_nop 0')
            for p in range(2):
                for h in range(2):
                    acc = vACC + 4*p + 2*h
                    if 'fma' not in drop:
                        if cfg.get('fswap', 1):
                            a.I(f'v_pk_fma_f32 {vr(acc,2)}, {vr(rb+2*p,2)}, {vr(tpm+4*p+2*h,2)}, {vr(acc,2)} op_sel:[{sel},0,0] op_sel_hi:[{sel},1,1]')
                        else:
                            a.I(f'v_pk_fma_f32 {vr(acc,2)}, {vr(tpm+4*p+2*h,2)}, {vr(rb+2*p,2)}, {vr(acc,2)} op_sel:[0,{sel},0] op_sel_hi:[1,{sel},1]')
            if 'idx' not in drop:
                if cfg.get('fnop', 0) & 2: a.I('s_nop 0')
                a.I('s_set_gpr_idx_off')
                if cfg.get('fnop', 0) & 4: a.I('s_nop 0')
        else:
            a.I('s_nop 3')
        for _ in range(cfg.get('extra', 0)):
            a.I(f'v_mov_b32 v63, v{vLane}')
        a.I(f's_sub_u32 s{sCNT}, s{sCNT}, 1')
        a.I('s_cbranch_scc1 K2_EXIT')
        a.I(f's_and_b32 s{sXO}, s{sE+jn%16}, 0xfffffc00')
        if nocomp or 'pk' in drop:
            pass
        elif j % 2 == 0:
            for op in add_ops:
                a.I(op)
        else:
            for op in r_ops(q) + z_ops(q + 1):
                a.I(op)
        if j == 1:
            a.I(f'v_add_u32 v{vEfA}, 512, v{vEfA}')
            a.I(f'v_mov_b32 v{vTmp}, {ZERO16}')
            a.I(f'v_cndmask_b32 v{vAL_A}, v{vTmp}, v{vEfA}, s[{sMLO}:{sMLO+1}]')
            a.I(f'v_cndmask_b32 v{vAH_A}, v{vTmp}, v{vEfA}, s[{sMHI}:{sMHI+1}]')
            a.I(f'ds_read_b128 {vr(vAL,4)}, v{vAL_A}')
            a.I(f'ds_read_b128 {vr(vAH,4)}, v{vAH_A}')
        if j == 3:
            a.I('s_waitcnt lgkmcnt(0)')
            a.I(f'v_cmp_gt_i32 vcc, s{sREM}, v{vL15}')
            for op in wn_ops[0:4]:
                a.I(op)
            a.I(f'v_cndmask_b32 v{vENTn}, 0, v{vENTn}, vcc')
            if cfg.get('prio') == 'dyn':
                a.I(f'v_readfirstlane_b32 s{sT0}, v{vProgP}')
                a.I(f's_add_u32 s{sT1}, s{sCNT}, 3')
                a.I(f's_cmp_gt_u32 s{sT1}, s{sT0}')
                a.I('s_cbranch_scc1 K2_PHI')
                a.I('s_setprio 0')
                a.I('s_branch K2_PDN')
                a.L('K2_PHI')
                a.I('s_setprio 1')
                a.L('K2_PDN')
        if j == 4 and 'w' not in drop:
            for op in wn_ops[4:8]:
                a.I(op)
        if j == 5 and 'w' not in drop:
            for op in wn_ops[8:14]:
                a.I(op)
        if j == 9:
            a.I(f'v_mov_b32 v{vHS}, v{vH0+14}')
            a.I(f'v_mov_b32 v{vHS+1}, v{vH0+15}')
            a.I(f'v_mov_b32 v{vHS+2}, v{vH1+14}')
            a.I(f'v_mov_b32 v{vHS+3}, v{vH1+15}')
        if j == 11 and 'h' not in drop:
            for op in h_mfma():
                a.I(op)
        if j == 15:
            a.I(f'v_mov_b32 v{vWc}, v{vWn}')
            a.I(f'v_mov_b32 v{vWc+1}, v{vWn+1}')
            a.I(f'v_mov_b32 v{vENTc}, v{vENTn}')
            a.I(f'v_add_u32 v{vEntA}, 64, v{vEntA}')
            a.I(f'v_add_u32 v{vYA}, 128, v{vYA}')
            a.I(f's_sub_i32 s{sREM}, s{sREM}, 16')
            a.I(f's_cmp_eq_u32 s{sBMF}, 0')
            a.I('s_cbranch_scc0 K2_LOOP')
            a.I(f's_add_u32 s{sT0}, s{sRND}, 1')
            a.I(f's_cmp_lt_u32 s{sT0}, s{sMAXR}')
            a.I('s_cbranch_scc1 K2_LOOP')
            a.I(f's_mov_b32 s{sBMF}, 1')
            bm_loads()
            a.I('s_branch K2_LOOP')
    a.L('K2_EXIT')
    if cfg.get('prio') == 'dyn':
        a.I(f'v_mov_b32 v{vTmp}, 0')
        a.I(f'ds_write_b32 v{vProgA}, v{vTmp}')
        a.I('s_setprio 0')
    a.I('s_waitcnt vmcnt(0) lgkmcnt(0)')
    a.I(f's_add_u32 s{sRND}, s{sRND}, 1')
    a.I(f's_cmp_lt_u32 s{sRND}, s{sMAXR}')
    a.I('s_cbranch_scc0 K2_TAIL')
    a.I('s_barrier')
    a.I('s_branch K2_ROUND')

    a.L('K2_TAIL')
    lstamp(a, cfg, 8, sW)
    a.I(f's_cmp_eq_u32 s{sBMF}, 0')
    a.I('s_cbranch_scc0 K2_BMOK')
    bm_loads()
    a.L('K2_BMOK')
    a.I(f'v_lshlrev_b32 v{vTmp}, 2, v{vLane}')
    a.I(f'v_add_u32 v{vTmp}, {AGG}, v{vTmp}')
    for s in range(5):
        a.I(f'v_add_u32 v{vTmp+4}, s{sNODE+s}, v{vTmp}')
        for o in range(4):
            t = vXR + s * 4 + o
            a.I(f'v_cvt_pk_bf16_f32 v{t}, v{vACC+8*s+o}, v{vACC+8*s+4+o}')
            a.I(f'ds_write_b32 v{vTmp+4}, v{t} offset:{o * AGG_STRIDE}')
    a.I('s_waitcnt lgkmcnt(0)')
    a.I('s_barrier')
    lstamp(a, cfg, 9, sW)
    a.I(f'v_mul_u32_u24 v{vTmp}, {AGG_STRIDE}, v{vL15}')
    a.I(f'v_lshrrev_b32 v{vTmp+4}, 4, v{vLane}')
    a.I(f'v_lshl_add_u32 v{vTmp}, v{vTmp+4}, 4, v{vTmp}')
    a.I(f's_lshr_b32 s{sT0}, s{sW}, 2')
    a.I(f's_mul_i32 s{sT1}, s{sT0}, {5*16*AGG_STRIDE}')
    a.I(f's_add_u32 s{sT1}, s{sT1}, {AGG}')
    a.I(f'v_add_u32 v{vTmp}, s{sT1}, v{vTmp}')
    a.I(f's_mul_i32 s{sT1}, s{sT0}, 20')
    a.I(f'v_add_u32 v{vTmp+4}, s{sT1}, v{vTmp+4}')
    a.I(f'v_lshlrev_b32 v{vTmp+4}, 18, v{vTmp+4}')
    a.I(f's_lshl_b32 s{sT1}, s{sB}, 10')
    a.I(f's_and_b32 s{sT2}, s{sW}, 3')
    a.I(f's_lshl_b32 s{sT2}, s{sT2}, 8')
    a.I(f's_add_u32 s{sT1}, s{sT1}, s{sT2}')
    a.I(f'v_lshl_add_u32 v{vTmp+5}, v{vL15}, 4, s{sT1}')
    a.I(f'v_add_u32 v{vTmp+4}, v{vTmp+4}, v{vTmp+5}')
    vA = (vH0, vH0 + 16 - 16 + 16)
    vA = (vH0, vH1)
    vD = (vTP, vTP + 8)
    vO = (vXR, vXR + 4, vXR + 8, vXR + 12)
    def a_reads(tt):
        for ks in range(4):
            a.I(f'ds_read_b128 {vr(vA[tt%2]+4*ks,4)}, v{vTmp} offset:{tt*16*AGG_STRIDE + 64*ks}')
    a_reads(0)
    a.I('s_waitcnt vmcnt(0)')
    for tt in range(5):
        if tt + 1 < 5:
            a_reads(tt + 1)
            a.I('s_waitcnt lgkmcnt(4)')
        else:
            a.I('s_waitcnt lgkmcnt(0)')
        D = vD[tt % 2]
        for ks in range(4):
            for t in range(2):
                c = '0' if ks == 0 else vr(D+4*t, 4)
                a.I(f'v_mfma_f32_16x16x32_bf16 {vr(D+4*t,4)}, {vr(vA[tt%2]+4*ks,4)}, {vr(vBM+16*t+4*ks,4)}, {c}')
        if tt > 0:
            Dp = vD[(tt - 1) % 2]; O = vO[(tt - 1) % 4]
            a.I(f'v_cvt_pk_bf16_f32 v{O}, v{Dp}, v{Dp+1}')
            a.I(f'v_cvt_pk_bf16_f32 v{O+1}, v{Dp+2}, v{Dp+3}')
            a.I(f'v_cvt_pk_bf16_f32 v{O+2}, v{Dp+4}, v{Dp+5}')
            a.I(f'v_cvt_pk_bf16_f32 v{O+3}, v{Dp+6}, v{Dp+7}')
            a.I(f'buffer_store_dwordx4 {vr(O,4)}, v{vTmp+4}, s[{sOUT}:{sOUT+3}], 0 offen' + cfg.get('ost', ''))
            if cfg.get('k2extra'):
                a.I(f's_mov_b32 s{sWS+2}, 0x4000000')
                a.I(f's_mov_b32 s{sT2}, 0x2000000')
                a.I(f'buffer_store_dwordx4 {vr(O,4)}, v{vTmp+4}, s[{sWS}:{sWS+3}], s{sT2} offen' + cfg.get('ost', ''))
            a.I(f'v_add_u32 v{vTmp+4}, {4 << 18:#x}, v{vTmp+4}')
    Dp = vD[4 % 2]; O = vO[0]
    a.I('s_nop 7')
    a.I(f'v_cvt_pk_bf16_f32 v{O}, v{Dp}, v{Dp+1}')
    a.I(f'v_cvt_pk_bf16_f32 v{O+1}, v{Dp+2}, v{Dp+3}')
    a.I(f'v_cvt_pk_bf16_f32 v{O+2}, v{Dp+4}, v{Dp+5}')
    a.I(f'v_cvt_pk_bf16_f32 v{O+3}, v{Dp+6}, v{Dp+7}')
    a.I(f'buffer_store_dwordx4 {vr(O,4)}, v{vTmp+4}, s[{sOUT}:{sOUT+3}], 0 offen' + cfg.get('ost', ''))
    if cfg.get('stamps'):
        a.I('s_waitcnt vmcnt(0)')
        lstamp(a, cfg, 10, sW)
        a.I(f's_lshl_b32 s{sT0}, s{sW}, 2')
        a.I(f's_add_u32 s{sT0}, s{sT0}, s{sDBG}')
        a.I(f'v_mov_b32 v{vTmp+1}, s{sT0}')
        a.I(f'v_mov_b32 v{vTmp}, s{80+2*8}')
        a.I(f'buffer_store_dword v{vTmp}, v{vTmp+1}, s[{sWS}:{sWS+3}], 0 offen offset:64')
        a.I(f'v_mov_b32 v{vTmp+4}, s{sN}')
        a.I(f'buffer_store_dword v{vTmp+4}, v{vTmp+1}, s[{sWS}:{sWS+3}], 0 offen offset:96')
        a.I('s_waitcnt vmcnt(0)')
        a.I(f's_cmp_eq_u32 s{sW}, 0')
        a.I('s_cbranch_scc0 K2_END')
        a.I(f'v_mov_b32 v{vTmp+1}, s{sDBG}')
        for i in range(11):
            a.I(f'v_mov_b32 v{vTmp}, s{80+2*i}')
            a.I(f'buffer_store_dword v{vTmp}, v{vTmp+1}, s[{sWS}:{sWS+3}], 0 offen offset:{4*i}')
            a.I('s_waitcnt vmcnt(0)')
        if cfg.get('dbgwg') is not None:
            a.I(f's_cmp_eq_u32 s{sB}, {cfg["dbgwg"]}')
            a.I('s_cbranch_scc0 K2_END')
            a.I('s_load_dwordx2 s[42:43], s[0:1], 72')
            a.I(f'v_mov_b32 v{vTmp+1}, {STAMP_OFF + 64*cfg["dbgwg"]:#x}')
            a.I(f'buffer_load_dwordx4 v[136:139], v{vTmp+1}, s[{sWS}:{sWS+3}], 0 offen')
            a.I('s_waitcnt vmcnt(0) lgkmcnt(0)')
            a.I('s_mov_b32 s44, s42')
            a.I('s_and_b32 s45, s43, 0xffff')
            a.I('s_mov_b32 s46, 256')
            a.I('s_mov_b32 s47, 0x20000')
            a.I(f'v_mov_b32 v{vTmp+1}, 0')
            for i in range(11):
                a.I(f'v_sub_u32 v{vTmp}, s{80+2*i}, v136')
                a.I(f'buffer_store_dword v{vTmp}, v{vTmp+1}, s[44:47], 0 offen offset:{4*i}')
                a.I('s_waitcnt vmcnt(0)')
            for i, r in enumerate((137, 138, 139)):
                a.I(f'v_sub_u32 v{vTmp}, v{r}, v136')
                a.I(f'buffer_store_dword v{vTmp}, v{vTmp+1}, s[44:47], 0 offen offset:{44+4*i}')
                a.I('s_waitcnt vmcnt(0)')
    a.L('K2_END')
    a.I('s_endpgm')
    return name, NV, (102 if cfg.get('stamps') else 76)


def vOneConst(a, v, val):
    a.I(f'v_mov_b32 v{v}, {val}')
    return v


def build(cfg):
    a = Asm()
    seq = cfg.get('seq', 'BM')
    for ch in seq:
        if ch == 'B':
            a('; @launch kernel=bin_kernel grid=(256,1,1) block=(640,1,1) lds=32768')
        elif ch == 'M':
            a(f'; @launch kernel=main_kernel grid=(256,1,1) block=(512,1,1) lds={K2_LDS}')
        elif ch == 'n':
            a('; @launch kernel=nop_kernel grid=(1,1,1) block=(64,1,1) lds=0')
        elif ch == 'o':
            a('; @launch kernel=nopb_kernel grid=(1,1,1) block=(64,1,1) lds=0')
        elif ch == 'N':
            a('; @launch kernel=nop_kernel grid=(256,1,1) block=(512,1,1) lds=0')
    a('.amdgcn_target "amdgcn-amd-amdhsa--gfx950"')
    a('.text')
    k1 = gen_k1(a, cfg)
    k2 = gen_k2(a, cfg)
    ks = [k1, k2]
    if 'n' in seq or 'N' in seq:
        a('.globl nop_kernel\n.p2align 8\n.type nop_kernel,@function\nnop_kernel:\n    s_endpgm')
        ks.append(('nop_kernel', 8, 16))
    if 'o' in seq:
        a('.globl nopb_kernel\n.p2align 8\n.type nopb_kernel,@function\nnopb_kernel:\n    s_endpgm')
        ks.append(('nopb_kernel', 8, 16))
    a('.section .rodata,"a"')
    for k in ks:
        a('.p2align 6')
        kd(a, *k)
    return a.text()


def gen_text(cfg):
    import hazard
    return hazard.fix(build(cfg))[0]


if __name__ == '__main__':
    cfg = {}
    out = sys.argv[1] if len(sys.argv) > 1 else 'gather_scatter__tensor_product_equiv_tfn__graph.s'
    for kv in sys.argv[2:]:
        k, v = kv.split('=', 1)
        try:
            v = int(v)
        except ValueError:
            v = v.replace('_', ' ')
        cfg[k] = v
    import hazard
    txt, n = hazard.fix(build(cfg), verbose=bool(cfg.get('hzv')))
    open(out, 'w').write(txt)
    if n: print('hazard pass inserted', n, 'nops')
    print('wrote', out)
```

```python
import sys, struct

N_NODES = 10000
N_EDGES = 160000
CHUNK = 625
RECA_OFF = 0
RECF_OFF = 0x280000
TAB_OFF = 0x800000
BRAD_OFF = 0x840000
CGW_OFF = 0x841000
BMIX_OFF = 0x842000
WS_SIZE = 0x850000
X_BYTES = N_NODES * 1024

def f2u(x):
    return struct.unpack('<I', struct.pack('<f', x))[0]
LOG2E = 1.4426950408889634
LN2 = 0.6931471805599453


class Asm:
    def __init__(self):
        self.lines = []
    def __call__(self, s=''):
        for ln in s.split('\n'):
            self.lines.append(ln)
    def I(self, s):
        self.lines.append('    ' + s)
    def L(self, name):
        self.lines.append(name + ':')
    def text(self):
        return '\n'.join(self.lines) + '\n'


def vr(base, n=1):
    return f'v{base}' if n == 1 else f'v[{base}:{base+n-1}]'
def sr(base, n=1):
    return f's{base}' if n == 1 else f's[{base}:{base+n-1}]'


def srd(a, dst, ptr, size):
    a.I(f's_mov_b32 s{dst}, s{ptr}')
    a.I(f's_and_b32 s{dst+1}, s{ptr+1}, 0xffff')
    a.I(f's_mov_b32 s{dst+2}, {size:#x}')
    a.I(f's_mov_b32 s{dst+3}, 0x20000')


def scan_dpp(a, v, full64):
    for sh in (1, 2, 4, 8):
        a.I('s_nop 1')
        a.I(f'v_add_u32_dpp v{v}, v{v}, v{v} row_shr:{sh} row_mask:0xf bank_mask:0xf')
    a.I('s_nop 1')
    a.I(f'v_add_u32_dpp v{v}, v{v}, v{v} row_bcast:15 row_mask:0xa bank_mask:0xf')
    if full64:
        a.I('s_nop 1')
        a.I(f'v_add_u32_dpp v{v}, v{v}, v{v} row_bcast:31 row_mask:0xc bank_mask:0xf')


def hist_prefix(a, vC, vS, vTot, vLane16, hist_off, base_off):
    a.I(f'ds_read_b128 {vr(vC,4)}, v{vLane16} offset:{hist_off}')
    a.I('s_waitcnt lgkmcnt(0)')
    a.I(f'v_add_u32 v{vS+2}, v{vC}, v{vC+1}')
    a.I(f'v_add_u32 v{vS+3}, v{vS+2}, v{vC+2}')
    a.I(f'v_add_u32 v{vTot}, v{vS+3}, v{vC+3}')
    a.I(f'v_mov_b32 v{vS}, v{vTot}')
    scan_dpp(a, vTot, True)
    a.I('s_nop 0')
    a.I(f'v_sub_u32 v{vS}, v{vTot}, v{vS}')
    a.I(f'v_add_u32 v{vS+1}, v{vS}, v{vC}')
    a.I(f'v_add_u32 v{vS+2}, v{vS}, v{vS+2}')
    a.I(f'v_add_u32 v{vS+3}, v{vS}, v{vS+3}')
    a.I(f'ds_write_b128 v{vLane16}, {vr(vS,4)} offset:{base_off}')


def stamp(a, cfg, idx, sdbg, tmp_s, tmp_v):
    if not cfg.get('stamps'):
        return
    a.I(f's_memrealtime s[{tmp_s}:{tmp_s+1}]')
    a.I('s_waitcnt lgkmcnt(0)')
    a.I(f'v_mov_b32 v{tmp_v}, s{tmp_s}')
    a.I(f'v_mov_b32 v{tmp_v+1}, s{sdbg}')
    a.I(f'buffer_store_dword v{tmp_v}, v{tmp_v+1}, s[{cfg["stamp_srd"]}:{cfg["stamp_srd"]+3}], 0 offen offset:{idx*4}')


def lstamp(a, cfg, i, sW):
    if not cfg.get('stamps'):
        return
    a.I(f's_memrealtime s[{80+2*i}:{81+2*i}]')
    a.I('s_waitcnt lgkmcnt(0)')


STAMP_OFF = 0x900000


def gen_k1(a, cfg):
    name = 'bin_kernel'
    NPF = cfg.get('npf1', 0)
    scaled = cfg.get('scaled', False)
    a(f'.globl {name}\n.p2align 8\n.type {name},@function\n{name}:')
    sDST, sSRC, sY, sEF, sWS, sX, sPREP = 8, 12, 16, 20, 24, 28, 32
    a.I('s_cmp_ge_u32 s2, 256')
    a.I('s_cbranch_scc1 K1_END')
    a.I('s_load_dwordx4 s[44:47], s[0:1], 0')
    a.I('s_load_dwordx4 s[48:51], s[0:1], 16')
    a.I('s_load_dwordx4 s[52:55], s[0:1], 32')
    a.I('s_load_dwordx4 s[56:59], s[0:1], 48')
    a.I('s_load_dwordx2 s[60:61], s[0:1], 80')
    if cfg.get('dbgprint'):
        a.I('s_load_dwordx2 s[72:73], s[0:1], 72')
        a.I('s_memrealtime s[74:75]')
    vT, vLane, vT4, vE, vOff = 0, 1, 2, 3, 4
    vDst, vSrc = 5, 6
    vRec = 8
    vY = 9
    vEF = 12
    vKey, vRank, vOne, vTmp = 20, 21, 22, 23
    vC, vS, vTot, vL16 = 24, 28, 32, 33
    vPrep, vPrepAddr, vPf = 34, 35, 36
    vT2 = 37
    a.I(f'v_and_b32 v{vLane}, 63, v0')
    a.I(f'v_lshlrev_b32 v{vT4}, 2, v0')
    a.I(f'v_lshrrev_b32 v{vTmp}, 6, v0')
    a.I(f'v_mov_b32 v{vOne}, 1')
    a.I(f'v_readfirstlane_b32 s4, v{vTmp}')
    a.I(f'v_mov_b32 v{vTmp}, 0')
    a.I(f'v_lshlrev_b32 v{vL16}, 4, v{vLane}')
    a.I('v_cmp_gt_u32 vcc, 256, v0')
    a.I('s_and_saveexec_b64 s[6:7], vcc')
    a.I('s_cbranch_execz K1_Z')
    a.I(f'ds_write_b32 v{vT4}, v{vTmp}')
    a.L('K1_Z')
    a.I('s_mov_b64 exec, s[6:7]')
    a.I(f's_mul_i32 s5, s2, {CHUNK}')
    a.I(f'v_add_u32 v{vE}, s5, v0')
    a.I('s_waitcnt lgkmcnt(0)')
    srd(a, sDST, 48, N_EDGES * 4)
    srd(a, sSRC, 46, N_EDGES * 4)
    srd(a, sY, 50, N_EDGES * 8)
    srd(a, sEF, 52, N_EDGES * 32)
    if cfg.get('wsbase', 0):
        a.I(f's_add_u32 s60, s60, {cfg["wsbase"] << 20:#x}')
        a.I('s_addc_u32 s61, s61, 0')
    srd(a, sWS, 60, WS_SIZE if not cfg.get('stamps') else STAMP_OFF + 0x10000)
    srd(a, sX, 44, X_BYTES)
    if cfg.get('stamps'):
        cfg['stamp_srd'] = sWS
        a.I(f's_lshl_b32 s62, s2, 6')
        a.I(f's_add_u32 s62, s62, {STAMP_OFF:#x}')
        a.I('s_cmp_eq_u32 s4, 0')
        a.I('s_cbranch_scc0 K1_ST0')
        stamp(a, cfg, 0, 62, 64, 38)
        a.L('K1_ST0')
    a.I(f'v_mov_b32 v{vPrepAddr}, 0x7ffffff0')
    a.I('s_cmp_eq_u32 s4, 9')
    a.I('s_cbranch_scc1 K1_PA')
    a.I('s_cmp_eq_u32 s4, 8')
    a.I('s_cbranch_scc0 K1_PDONE')
    a.I('s_cmp_lt_u32 s2, 32')
    a.I('s_cbranch_scc1 K1_PB')
    a.I('s_cmp_eq_u32 s2, 32')
    a.I('s_cbranch_scc0 K1_PDONE')
    srd(a, sPREP, 56, 128)
    a.I(f'v_and_b32 v{vTmp}, 3, v{vLane}')
    a.I(f'v_lshlrev_b32 v{vTmp}, 4, v{vTmp}')
    a.I(f'v_and_b32 v{vT2}, 12, v{vLane}')
    a.I(f'v_add_u32 v{vTmp}, v{vTmp}, v{vT2}')
    a.I(f'v_lshrrev_b32 v{vT2}, 4, v{vLane}')
    a.I(f'v_add_lshl_u32 v{vTmp}, v{vTmp}, v{vT2}, 1')
    a.I(f'buffer_load_ushort v{vPrep}, v{vTmp}, s[{sPREP}:{sPREP+3}], 0 offen')
    a.I(f'v_lshlrev_b32 v{vPrepAddr}, 2, v{vLane}')
    a.I(f'v_add_u32 v{vPrepAddr}, {CGW_OFF:#x}, v{vPrepAddr}')
    a.I('s_branch K1_PDONE')
    a.L('K1_PB')
    srd(a, sPREP, 54, 16 * 128 * 2)
    a.I('s_lshl_b32 s5, s2, 6')
    a.I(f'v_add_u32 v{vPrepAddr}, s5, v{vLane}')
    a.I(f'v_lshrrev_b32 v{vTmp}, 3, v{vPrepAddr}')
    a.I(f'v_bfe_u32 v{vT2}, v{vTmp}, 5, 1')
    a.I(f'v_lshlrev_b32 v{vT2}, 3, v{vT2}')
    a.I(f'v_and_b32 v{vPf}, 7, v{vPrepAddr}')
    a.I(f'v_add_u32 v{vT2}, v{vT2}, v{vPf}')
    a.I(f'v_lshlrev_b32 v{vT2}, 7, v{vT2}')
    a.I(f'v_and_b32 v{vPf}, 31, v{vTmp}')
    a.I(f'v_lshl_add_u32 v{vT2}, v{vPf}, 1, v{vT2}')
    a.I(f'v_bfe_u32 v{vPf}, v{vTmp}, 6, 1')
    a.I(f'v_lshl_add_u32 v{vT2}, v{vPf}, 6, v{vT2}')
    a.I(f'v_bfe_u32 v{vPf}, v{vTmp}, 7, 1')
    a.I(f'v_add_lshl_u32 v{vT2}, v{vT2}, v{vPf}, 1')
    a.I(f'buffer_load_ushort v{vPrep}, v{vT2}, s[{sPREP}:{sPREP+3}], 0 offen')
    a.I(f'v_lshlrev_b32 v{vPrepAddr}, 1, v{vPrepAddr}')
    a.I(f'v_add_u32 v{vPrepAddr}, {BRAD_OFF:#x}, v{vPrepAddr}')
    a.I('s_branch K1_PDONE')
    a.L('K1_PA')
    srd(a, sPREP, 58, 128 * 128 * 2)
    a.I('s_lshl_b32 s5, s2, 6')
    a.I(f'v_add_u32 v{vPrepAddr}, s5, v{vLane}')
    a.I(f'v_lshrrev_b32 v{vTmp}, 3, v{vPrepAddr}')
    a.I(f'v_bfe_u32 v{vT2}, v{vTmp}, 6, 2')
    a.I(f'v_lshlrev_b32 v{vT2}, 5, v{vT2}')
    a.I(f'v_bfe_u32 v{vPf}, v{vTmp}, 4, 2')
    a.I(f'v_lshl_add_u32 v{vT2}, v{vPf}, 3, v{vT2}')
    a.I(f'v_and_b32 v{vPf}, 7, v{vPrepAddr}')
    a.I(f'v_add_u32 v{vT2}, v{vT2}, v{vPf}')
    a.I(f'v_lshlrev_b32 v{vT2}, 7, v{vT2}')
    a.I(f'v_and_b32 v{vPf}, 15, v{vTmp}')
    a.I(f'v_lshl_add_u32 v{vT2}, v{vPf}, 1, v{vT2}')
    a.I(f'v_lshrrev_b32 v{vPf}, 9, v{vTmp}')
    a.I(f'v_lshl_add_u32 v{vT2}, v{vPf}, 5, v{vT2}')
    a.I(f'v_bfe_u32 v{vPf}, v{vTmp}, 8, 1')
    a.I(f'v_add_lshl_u32 v{vT2}, v{vT2}, v{vPf}, 1')
    a.I(f'buffer_load_ushort v{vPrep}, v{vT2}, s[{sPREP}:{sPREP+3}], 0 offen')
    a.I(f'v_lshlrev_b32 v{vPrepAddr}, 1, v{vPrepAddr}')
    a.I(f'v_add_u32 v{vPrepAddr}, {BMIX_OFF:#x}, v{vPrepAddr}')
    a.L('K1_PDONE')
    ld = cfg.get('k1ld', '')
    a.I(f'v_lshlrev_b32 v{vOff}, 2, v{vE}')
    a.I(f'buffer_load_dword v{vDst}, v{vOff}, s[{sDST}:{sDST+3}], 0 offen' + ld)
    a.I(f'buffer_load_dword v{vSrc}, v{vOff}, s[{sSRC}:{sSRC+3}], 0 offen' + ld)
    a.I(f'v_lshlrev_b32 v{vOff}, 3, v{vE}')
    a.I(f'v_lshlrev_b32 v{vT2}, 5, v{vE}')
    a.I('s_waitcnt lgkmcnt(0)')
    a.I('s_barrier')
    a.I(f'buffer_load_dwordx2 {vr(vRec,2)}, v{vOff}, s[{sY}:{sY+3}], 0 offen' + ld)
    a.I(f'buffer_load_dwordx4 {vr(vEF,4)}, v{vT2}, s[{sEF}:{sEF+3}], 0 offen' + ld)
    a.I(f'buffer_load_dwordx4 {vr(vEF+4,4)}, v{vT2}, s[{sEF}:{sEF+3}], 0 offen offset:16' + ld)
    npf = 0
    if NPF > 0:
        a.I('s_lshr_b32 s5, s2, 3')
        a.I('s_lshl_b32 s63, s4, 5')
        a.I('s_add_u32 s5, s5, s63')
        a.I('s_lshl_b32 s5, s5, 13')
        a.I(f's_cmp_lt_u32 s4, {NPF}')
        a.I(f's_cselect_b32 s5, s5, 0x7ff00000')
        a.I(f'v_lshlrev_b32 v{vPf}, 7, v{vLane}')
        a.I(f'v_add_u32 v{vPf}, s5, v{vPf}')
        a.I(f'buffer_load_dword v{vPf}, v{vPf}, s[{sX}:{sX+3}], 0 offen')
        npf = 1
    a.I(f'v_cmp_gt_u32 vcc, {CHUNK}, v0')
    a.I('s_and_saveexec_b64 s[6:7], vcc')
    a.I(f's_waitcnt vmcnt({4+npf})')
    if cfg.get('dbgprint'):
        a.I('s_memrealtime s[76:77]')
    if cfg.get('stamps'):
        a.I('s_cmp_eq_u32 s4, 0')
        a.I('s_cbranch_scc0 K1_ST2')
        a.I('s_memrealtime s[66:67]')
        a.L('K1_ST2')
    a.I(f'v_and_b32 v{vKey}, 7, v{vDst}')
    a.I(f'v_bfe_u32 v{vTmp}, v{vDst}, 3, 5')
    a.I(f'v_lshl_or_b32 v{vKey}, v{vKey}, 5, v{vTmp}')
    a.I(f'v_lshlrev_b32 v{vKey}, 2, v{vKey}')
    a.I(f'ds_add_rtn_u32 v{vRank}, v{vKey}, v{vOne}')
    a.I('s_mov_b64 exec, s[6:7]')
    a.I('s_waitcnt lgkmcnt(0)')
    a.I('s_barrier')
    hist_prefix(a, vC, vS, vTot, vL16, 0, 1024)
    for i in range(4):
        a.I(f'v_lshl_or_b32 v{vC+i}, v{vC+i}, 16, v{vS+i}')
    a.I('s_cmp_lt_u32 s4, 4')
    a.I('s_cbranch_scc0 K1_NTAB')
    a.I(f'v_lshl_add_u32 v{vT2}, v{vLane}, 2, s4')
    a.I(f'v_lshrrev_b32 v{vTmp}, 5, v{vT2}')
    a.I(f'v_and_b32 v{vT2}, 31, v{vT2}')
    a.I(f'v_lshlrev_b32 v{vTmp}, 15, v{vTmp}')
    a.I(f'v_lshl_add_u32 v{vTmp}, v{vT2}, 7, v{vTmp}')
    a.I('s_and_b32 s5, s2, 7')
    a.I('s_lshl_b32 s5, s5, 12')
    a.I('s_lshr_b32 s63, s2, 3')
    a.I('s_lshl_b32 s63, s63, 2')
    a.I('s_add_u32 s5, s5, s63')
    a.I(f's_add_u32 s5, s5, {TAB_OFF:#x}')
    a.I(f'v_mov_b32 v{vT2}, v{vC}')
    for i in range(1, 4):
        a.I(f's_cmp_eq_u32 s4, {i}')
        a.I(f's_cbranch_scc0 K1_TW{i}')
        a.I(f'v_mov_b32 v{vT2}, v{vC+i}')
        a.L(f'K1_TW{i}')
    a.I(f'buffer_store_dword v{vT2}, v{vTmp}, s[{sWS}:{sWS+3}], s5 offen')
    a.L('K1_NTAB')
    a.I(f'v_cmp_gt_u32 vcc, {CHUNK}, v0')
    a.I('s_waitcnt lgkmcnt(0)')
    a.I('s_and_saveexec_b64 s[6:7], vcc')
    a.I(f'ds_read_b32 v{vTmp}, v{vKey} offset:1024')
    a.I(f's_mul_i32 s5, s2, {CHUNK}')
    a.I(f'v_lshrrev_b32 v{vT2}, 8, v{vDst}')
    a.I(f's_waitcnt vmcnt({npf})' if False else 's_nop 0')
    a.I('s_cmp_lt_u32 s4, 4')
    a.I('s_cbranch_scc1 K1_W1')
    a.I(f's_waitcnt vmcnt({npf})')
    a.I('s_branch K1_W2')
    a.L('K1_W1')
    a.I(f's_waitcnt vmcnt({npf+1})')
    a.L('K1_W2')
    if cfg.get('dbgprint'):
        a.I('s_memrealtime s[78:79]')
    if cfg.get('stamps'):
        a.I('s_cmp_eq_u32 s4, 0')
        a.I('s_cbranch_scc0 K1_ST3')
        a.I('s_memrealtime s[68:69]')
        a.L('K1_ST3')
    a.I(f'v_lshl_or_b32 v{vRec+2}, v{vT2}, 14, v{vSrc}')
    a.I(f'v_mov_b32 v{vRec+3}, v{vE}')
    a.I('s_waitcnt lgkmcnt(0)')
    a.I(f'v_add_u32 v{vTmp}, v{vTmp}, v{vRank}')
    st = cfg.get('k1st', '')
    STG = 2048
    a.I(f'v_lshlrev_b32 v{vT2}, 4, v{vTmp}')
    a.I(f'v_lshlrev_b32 v{vTmp}, 5, v{vTmp}')
    a.I(f'ds_write_b128 v{vT2}, {vr(vRec,4)} offset:{STG}')
    a.I(f'ds_write_b128 v{vTmp}, {vr(vEF,4)} offset:{STG+CHUNK*16}')
    a.I(f'ds_write_b128 v{vTmp}, {vr(vEF+4,4)} offset:{STG+CHUNK*16+16}')
    a.I('s_mov_b64 exec, s[6:7]')
    a.I(f'v_lshlrev_b32 v{vTmp}, 4, v0')
    a.I(f's_mul_i32 s5, s2, {CHUNK*16}')
    a.I(f's_add_u32 s5, s5, {RECA_OFF:#x}')
    a.I(f's_mul_i32 s63, s2, {CHUNK*32}')
    a.I(f's_add_u32 s63, s63, {RECF_OFF - CHUNK*16:#x}')
    a.I(f'v_mov_b32 v{vT2}, s63')
    a.I(f'v_mov_b32 v{vKey}, s5')
    a.I(f'v_cmp_gt_u32 vcc, {CHUNK}, v0')
    a.I(f'v_cndmask_b32 v{vKey}, v{vT2}, v{vKey}, vcc')
    a.I(f'v_add_u32 v{vKey}, v{vKey}, v{vTmp}')
    a.I(f'v_add_u32 v{vT2}, v{vT2}, v{vTmp}')
    a.I(f'v_add_u32 v{vOff}, {1280*16}, v{vT2}')
    a.I(f'v_add_u32 v{vT2}, {640*16}, v{vT2}')
    a.I(f'v_cmp_gt_u32 vcc, {CHUNK*3-1280}, v0')
    a.I(f'v_mov_b32 v{vRank}, 0x7ff00000')
    a.I(f'v_cndmask_b32 v{vOff}, v{vRank}, v{vOff}, vcc')
    a.I('s_waitcnt lgkmcnt(0)')
    a.I('s_barrier')
    a.I(f'ds_read_b128 {vr(vRec,4)}, v{vTmp} offset:{STG}')
    a.I(f'ds_read_b128 {vr(vEF,4)}, v{vTmp} offset:{STG+640*16}')
    a.I(f'ds_read_b128 {vr(vEF+4,4)}, v{vTmp} offset:{STG+1280*16}')
    a.I('s_waitcnt lgkmcnt(2)')
    if not cfg.get('k1nost'):
        a.I(f'buffer_store_dwordx4 {vr(vRec,4)}, v{vKey}, s[{sWS}:{sWS+3}], 0 offen' + st)
    a.I('s_waitcnt lgkmcnt(1)')
    if not cfg.get('k1nost'):
        a.I(f'buffer_store_dwordx4 {vr(vEF,4)}, v{vT2}, s[{sWS}:{sWS+3}], 0 offen' + st)
    a.I('s_waitcnt lgkmcnt(0)')
    if not cfg.get('k1nost'):
        a.I(f'buffer_store_dwordx4 {vr(vEF+4,4)}, v{vOff}, s[{sWS}:{sWS+3}], 0 offen' + st)
    a.I('s_cmp_eq_u32 s4, 0')
    a.I('s_cbranch_scc0 K1_NT')
    if cfg.get('stamps'):
        stamp(a, cfg, 1, 62, 64, 38)
        a.I('v_mov_b32 v38, s66')
        a.I(f'buffer_store_dword v38, v39, s[{sWS}:{sWS+3}], 0 offen offset:8')
        a.I('v_mov_b32 v40, s68')
        a.I(f'buffer_store_dword v40, v39, s[{sWS}:{sWS+3}], 0 offen offset:12')
    a.L('K1_NT')
    if cfg.get('stamps'):
        a.I('s_memrealtime s[70:71]')
        a.I('s_lshl_b32 s5, s4, 2')
        a.I('s_add_u32 s5, s5, s62')
        a.I('s_waitcnt lgkmcnt(0)')
        a.I('v_mov_b32 v41, s70')
        a.I('v_mov_b32 v42, s5')
        a.I(f'buffer_store_dword v41, v42, s[{sWS}:{sWS+3}], 0 offen offset:16')
        if cfg.get('k1wait'):
            a.I('s_waitcnt vmcnt(0)')
            a.I('s_memrealtime s[70:71]')
            a.I('s_waitcnt lgkmcnt(0)')
            a.I('v_mov_b32 v41, s70')
            a.I(f'buffer_store_dword v41, v42, s[{sWS}:{sWS+3}], 0 offen offset:16')
    if cfg.get('dbgprint'):
        a.I('s_memrealtime s[80:81]')
        a.I('s_waitcnt lgkmcnt(0)')
        a.I('s_and_b32 s5, s2, 63')
        a.I('s_cmp_eq_u32 s5, 0')
        a.I('s_cbranch_scc0 K1_DBGSKIP')
        a.I('s_cmp_eq_u32 s4, 9')
        a.I('s_cbranch_scc0 K1_DBGSKIP')
        a.I('s_mov_b32 s84, s72')
        a.I('s_and_b32 s85, s73, 0xffff')
        a.I('s_mov_b32 s86, 256')
        a.I('s_mov_b32 s87, 0x20000')
        a.I('s_lshr_b32 s5, s2, 6')
        a.I('s_lshl_b32 s5, s5, 4')
        a.I('v_mov_b32 v42, s5')
        for i, r in enumerate((76, 78, 80)):
            a.I(f's_sub_u32 s5, s{r}, s74')
            a.I('v_mov_b32 v41, s5')
            a.I(f'buffer_store_dword v41, v42, s[84:87], 0 offen offset:{4*i}')
        a.L('K1_DBGSKIP')
    a.I('s_cmp_eq_u32 s4, 9')
    a.I('s_cbranch_scc1 K1_PS16')
    a.I('s_cmp_eq_u32 s4, 8')
    a.I('s_cbranch_scc0 K1_END')
    a.I('s_cmp_lt_u32 s2, 32')
    a.I('s_cbranch_scc1 K1_PSR')
    a.I('s_cmp_eq_u32 s2, 32')
    a.I('s_cbranch_scc0 K1_END')
    a.I(f'v_lshlrev_b32 v{vPrep}, 16, v{vPrep}')
    if scaled:
        a.I(f'v_mul_f32 v{vPrep}, {f2u(-LN2):#x}, v{vPrep}')
    a.I(f'buffer_store_dword v{vPrep}, v{vPrepAddr}, s[{sWS}:{sWS+3}], 0 offen')
    a.I('s_branch K1_END')
    a.L('K1_PSR')
    if scaled:
        a.I(f'v_lshlrev_b32 v{vPrep}, 16, v{vPrep}')
        a.I(f'v_mul_f32 v{vPrep}, {f2u(-LOG2E):#x}, v{vPrep}')
        a.I(f'v_cvt_pk_bf16_f32 v{vPrep}, v{vPrep}, v{vPrep}')
    a.L('K1_PS16')
    a.I(f'buffer_store_short v{vPrep}, v{vPrepAddr}, s[{sWS}:{sWS+3}], 0 offen')
    a.L('K1_END')
    a.I('s_endpgm')
    return name, 44, (96 if cfg.get('dbgprint') else 72)


def kd(a, name, nv, ns):
    a(f""".amdhsa_kernel {name}
  .amdhsa_next_free_vgpr {nv}
  .amdhsa_next_free_sgpr {ns}
  .amdhsa_accum_offset {(nv + 3) // 4 * 4}
  .amdhsa_group_segment_fixed_size 0
  .amdhsa_kernarg_size 88
  .amdhsa_user_sgpr_count 2
  .amdhsa_user_sgpr_kernarg_segment_ptr 1
  .amdhsa_system_sgpr_workgroup_id_x 1
  .amdhsa_float_denorm_mode_32 3
.end_amdhsa_kernel""")


HIST = 0
BASE = 1024
MAXR = 2048
ZERO16 = 2064
DEG = 2304
RNK = 2560
PROG = 2816
PATTERN = [0,1,2,3,4,5,6,0,7,6,5,4,0,3,7,2,7,4,5,6,1,3,2,1,4,5,3,0,7,6,2,1,7,1,2,6,3,5,4,0]
WL = 4096
CAP = 1024
ENT = 8192
YS = 12800
EFS = 21248
AGG = 55040
AGG_STRIDE = 272
CST = AGG + 160 * AGG_STRIDE
K2_LDS = CST + 6 * 1024


def gen_k2(a, cfg):
    name = 'main_kernel'
    scaled = cfg.get('scaled', False)
    NPF1 = cfg.get('npf1', 0)
    NPF2 = cfg.get('npf2', 0)
    a(f'.globl {name}\n.p2align 8\n.type {name},@function\n{name}:')
    sX, sWS, sOUT = 8, 12, 16
    sW, sB, sKEY, sNW, sRND, sMAXR = 4, 5, 6, 7, 20, 21
    sSEG0, sN, sCNT, sXO, sREM = 22, 23, 24, 25, 26
    sT0, sT1, sT2 = 27, 28, 29
    sMLO, sMHI = 30, 32
    sCL = 34
    sSAVE = 36
    sV0, sV1 = 38, 40
    sE = 48
    sNODE = 68
    sDBG = 64
    sVF = (42, 44, 46, 36)
    sBMF = 65
    vLane, vL16, vL15 = 1, 2, 3
    vTmp = 4
    vEntA, vYA, vEfA = 12, 13, 14
    vAL_A, vAH_A = 15, 16
    vENTc, vENTn = 17, 18
    vDummy = 19
    vProgA, vProgB, vProgP = 60, 61, 62
    vPat, vNodePat = 50, 51
    vWc, vWn = 20, 22
    vYraw = 24
    vYf = 26
    vWf = 30
    vHS = 34
    vT = 38
    vR = 42
    vAL, vAH = 52, 56
    vACC = 64
    D = cfg.get('D', 4)
    vXR = 104
    def xrs(k):
        return vXR + 4*k if k < 4 else 232 + 4*(k - 4)
    vTP = 120
    vH0, vH1 = 136, 152
    vBR = 168
    vCG = 184
    vBM = 200
    NV = 232 if D <= 4 else 248
    vRecA, vRecB = 200, 204
    vF = 208
    vFo = 224
    vP = 136

    def bm_loads():
        a.I(f's_and_b32 s{sT0}, s{sW}, 3')
        a.I(f's_lshl_b32 s{sT0}, s{sT0}, 13')
        a.I(f's_add_u32 s{sT0}, s{sT0}, {BMIX_OFF:#x}')
        a.I(f's_add_u32 s{sT1}, s{sT0}, 4096')
        for t in range(2):
            for ks in range(4):
                a.I(f'buffer_load_dwordx4 {vr(vBM+16*t+4*ks,4)}, v{vL16}, s[{sWS}:{sWS+3}], s{sT0 if t == 0 else sT1} offen offset:{1024*ks}')

    a.I('s_cmp_ge_u32 s2, 256')
    a.I('s_cbranch_scc1 K2_END')
    a.I('s_load_dwordx2 s[42:43], s[0:1], 80')
    a.I('s_load_dwordx2 s[44:45], s[0:1], 0')
    a.I('s_load_dwordx2 s[46:47], s[0:1], 64')
    vChunk, vTab, vInc, vCst = vP, vP+1, vP+3, vP+4
    a.I(f'v_lshrrev_b32 v{vTmp}, 6, v0')
    a.I(f'v_and_b32 v{vLane}, 63, v0')
    a.I(f'v_readfirstlane_b32 s{sW}, v{vTmp}')
    a.I(f'v_lshlrev_b32 v{vL16}, 4, v{vLane}')
    a.I(f'v_and_b32 v{vL15}, 15, v{vLane}')
    a.I(f's_mov_b32 s{sB}, s2')
    a.I(f's_and_b32 s{sKEY}, s2, 7')
    a.I(f's_lshl_b32 s{sKEY}, s{sKEY}, 5')
    a.I(f's_lshr_b32 s{sT0}, s2, 3')
    a.I(f's_or_b32 s{sKEY}, s{sKEY}, s{sT0}')
    a.I(f'v_and_b32 v{vChunk}, 31, v{vLane}')
    a.I(f's_lshl_b32 s{sT0}, s{sW}, 5')
    a.I(f'v_add_u32 v{vChunk}, s{sT0}, v{vChunk}')
    a.I(f'v_and_b32 v{vTmp}, 7, v{vChunk}')
    a.I(f'v_lshlrev_b32 v{vTmp}, 12, v{vTmp}')
    a.I(f'v_lshrrev_b32 v{vTmp+1}, 3, v{vChunk}')
    a.I(f'v_lshl_add_u32 v{vTmp}, v{vTmp+1}, 2, v{vTmp}')
    a.I(f's_and_b32 s{sT0}, s2, 7')
    a.I(f's_lshl_b32 s{sT0}, s{sT0}, 15')
    a.I(f's_lshr_b32 s{sT1}, s2, 3')
    a.I(f's_lshl_b32 s{sT1}, s{sT1}, 7')
    a.I(f's_add_u32 s{sT0}, s{sT0}, s{sT1}')
    a.I(f's_add_u32 s{sT0}, s{sT0}, {TAB_OFF:#x}')
    a.I(f's_lshl_b32 s{sT1}, s{sW}, 10')
    a.I(f's_add_u32 s{sT1}, s{sT1}, {BRAD_OFF:#x}')
    a.I(f's_cmp_lt_u32 s{sW}, 5')
    a.I(f's_cselect_b32 s{sT1}, s{sT1}, 0x7ff00000')
    a.I('s_waitcnt lgkmcnt(0)')
    if cfg.get('wsbase', 0):
        a.I(f's_add_u32 s42, s42, {cfg["wsbase"] << 20:#x}')
        a.I('s_addc_u32 s43, s43, 0')
    srd(a, sWS, 42, 0x6000000 if cfg.get('dumph') else (WS_SIZE if not cfg.get('stamps') else STAMP_OFF + 0x10000))
    a.I(f'buffer_load_dword v{vTab}, v{vTmp}, s[{sWS}:{sWS+3}], s{sT0} offen')
    a.I(f'buffer_load_dwordx4 {vr(vCst,4)}, v{vL16}, s[{sWS}:{sWS+3}], s{sT1} offen')
    if cfg.get('rwp', 0):
        a.I(f's_lshr_b32 s{sT0}, s{sB}, 3')
        a.I(f's_lshl_b32 s{sT0}, s{sT0}, 3')
        a.I(f's_add_u32 s{sT0}, s{sT0}, s{sW}')
        a.I(f's_mul_i32 s{sT0}, s{sT0}, 30000')
        a.I(f's_and_b32 s{sT1}, s{sB}, 7')
        a.I(f's_mul_i32 s{sT1}, s{sT1}, 3750')
        a.I(f's_add_u32 s{sT0}, s{sT0}, s{sT1}')
        a.I(f's_sub_i32 s{sT0}, s{sT0}, {cfg.get("rwpoff", 700)}')
        a.I(f's_max_i32 s{sT0}, s{sT0}, 0')
        a.I(f'v_lshlrev_b32 v{vTmp}, 7, v{vLane}')
        a.I(f'v_cmp_gt_u32 vcc, {cfg.get("rwplines", 42)}, v{vLane}')
        a.I(f'v_mov_b32 v{vTmp+1}, 0x7ff00000')
        a.I(f'v_cndmask_b32 v{vTmp}, v{vTmp+1}, v{vTmp}, vcc')
        a.I(f'buffer_load_dword v{vDummy}, v{vTmp}, s[{sWS}:{sWS+3}], s{sT0} offen')
    srd(a, sX, 44, X_BYTES)
    srd(a, sOUT, 46, X_BYTES)
    if cfg.get('stamps'):
        cfg['stamp_srd'] = sWS
        a.I(f's_lshl_b32 s{sDBG}, s2, 7')
        a.I(f's_add_u32 s{sDBG}, s{sDBG}, {STAMP_OFF + 0x8000:#x}')
    lstamp(a, cfg, 0, sW)
    a.I(f'v_mov_b32 v{vTmp+1}, 0')
    a.I(f'v_lshlrev_b32 v{vTmp+2}, 2, v0')
    a.I(f'v_and_b32 v{vTmp+3}, 0x400, v{vTmp+2}')
    a.I(f'v_add_u32 v{vTmp+2}, v{vTmp+2}, v{vTmp+3}')
    a.I(f'ds_write_b32 v{vTmp+2}, v{vTmp+1}')
    a.I(f'v_mov_b32 v{vPat}, 63')
    cnt = [0]*8
    for r, w in enumerate(PATTERN):
        a.I(f'v_writelane_b32 v{vPat}, {w | (cnt[w] << 3)}, {r}')
        cnt[w] += 1
    for i in range(40):
        a.I(f'v_mov_b32 v{vACC+i}, 0')
    a.I(f's_mov_b32 s{sMLO}, 0x0f0f0f0f')
    a.I(f's_mov_b32 s{sMLO+1}, 0x0f0f0f0f')
    a.I(f's_mov_b32 s{sMHI}, 0xf0f0f0f0')
    a.I(f's_mov_b32 s{sMHI+1}, 0xf0f0f0f0')
    a.I(f's_mov_b32 s{sCL}, {f2u(-LOG2E):#x}')
    a.I(f's_mov_b32 s{sCL+1}, {f2u(-LOG2E):#x}')
    a.I(f's_mov_b32 s{sRND}, 0')
    a.I(f's_mov_b32 s{sBMF}, 0')
    a.I('s_waitcnt lgkmcnt(0)')
    a.I('s_barrier')
    a.I('s_waitcnt vmcnt(%d)' % (1 if cfg.get('rwp', 0) else 0))
    lstamp(a, cfg, 1, sW)
    vCntP, vExcP, vRbP = vTmp+1, vTmp+2, vTmp+3
    a.I(f'v_lshrrev_b32 v{vInc}, 16, v{vTab}')
    a.I(f'v_lshl_add_u32 v{vTmp}, v{vLane}, 4, s{sW}' if False else f'v_mov_b32 v{vTmp+4}, {CHUNK}')
    a.I(f'v_and_b32 v{vRbP}, 0xffff, v{vTab}')
    a.I(f'v_mov_b32 v{vCntP}, v{vInc}')
    a.I(f'v_mad_u32_u24 v{vRbP}, v{vChunk}, v{vTmp+4}, v{vRbP}')
    a.I(f's_min_u32 s{sT1}, s{sW}, 5')
    a.I(f's_lshl_b32 s{sT1}, s{sT1}, 10')
    a.I(f's_add_u32 s{sT1}, s{sT1}, {CST}')
    a.I(f'v_add_u32 v{vTmp}, s{sT1}, v{vL16}')
    a.I(f'ds_write_b128 v{vTmp}, {vr(vCst,4)}')
    scan_dpp(a, vInc, False)
    a.I('s_nop 0')
    a.I(f'v_sub_u32 v{vExcP}, v{vInc}, v{vCntP}')
    a.I(f'v_readlane_b32 s{sNW}, v{vInc}, 31')
    a.I(f'v_mov_b32 v{vTmp+4}, {MAXR}')
    a.I('s_nop 2')
    a.I(f's_add_u32 s{sT0}, s{sNW}, 127')
    a.I(f's_lshr_b32 s{sT0}, s{sT0}, 7')
    a.I(f'v_mov_b32 v{vTmp}, s{sT0}')
    a.I(f'ds_max_u32 v{vTmp+4}, v{vTmp}')
    a.L('K2_ROUND')
    vK, vHi, vAd, vVal = vP, vP+1, vP+2, vP+3
    a.I(f's_lshl_b32 s{sT0}, s{sRND}, 7')
    a.I(f's_lshl_b32 s{sT1}, s{sW}, 9')
    a.I(f'v_sub_u32 v{vK}, s{sT0}, v{vExcP}')
    a.I(f's_add_u32 s{sT1}, s{sT1}, {WL}')
    a.I(f'v_add_u32 v{vHi}, 128, v{vK}')
    a.I(f'v_max_i32 v{vAd}, 0, v{vK}')
    a.I(f'v_lshrrev_b32 v{vTmp}, 5, v{vLane}')
    a.I(f'v_min_i32 v{vHi}, v{vHi}, v{vCntP}')
    a.I(f'v_add_u32 v{vAd}, v{vAd}, v{vTmp}')
    a.I(f'v_add_u32 v{vVal}, v{vRbP}, v{vAd}')
    a.I(f'v_sub_u32 v{vHi}, v{vHi}, v{vAd}')
    a.I(f'v_sub_u32 v{vAd}, v{vAd}, v{vK}')
    a.I(f'v_lshl_add_u32 v{vAd}, v{vAd}, 2, s{sT1}')
    a.L('K2_EXP')
    a.I(f'v_cmp_lt_i32 vcc, 0, v{vHi}')
    a.I('s_and_b64 exec, exec, vcc')
    a.I('s_cbranch_scc0 K2_EXPD')
    a.I(f'ds_write_b32 v{vAd}, v{vVal}')
    a.I(f'v_add_u32 v{vHi}, -2, v{vHi}')
    a.I(f'v_add_u32 v{vVal}, 2, v{vVal}')
    a.I(f'v_add_u32 v{vAd}, 8, v{vAd}')
    a.I('s_branch K2_EXP')
    a.L('K2_EXPD')
    a.I('s_mov_b64 exec, -1')
    a.I(f'v_lshl_add_u32 v{vTmp}, v{vLane}, 2, s{sT1}')
    a.I(f's_sub_i32 s{sT2}, s{sNW}, s{sT0}')
    a.I(f'ds_read_b32 v{vP}, v{vTmp}')
    a.I(f'ds_read_b32 v{vP+1}, v{vTmp} offset:256')
    a.I(f'v_cmp_gt_i32 s[{sV0}:{sV0+1}], s{sT2}, v{vLane}')
    a.I(f'v_add_u32 v{vTmp}, 64, v{vLane}')
    a.I(f'v_cmp_gt_i32 s[{sV1}:{sV1+1}], s{sT2}, v{vTmp}')
    a.I(f'v_mov_b32 v{vTmp}, 0x7ffffff0')
    a.I('s_waitcnt lgkmcnt(0)')
    a.I(f'v_lshlrev_b32 v{vP}, 4, v{vP}')
    a.I(f'v_lshlrev_b32 v{vP+1}, 4, v{vP+1}')
    a.I(f'v_cndmask_b32 v{vP}, v{vTmp}, v{vP}, s[{sV0}:{sV0+1}]')
    a.I(f'v_cndmask_b32 v{vP+1}, v{vTmp}, v{vP+1}, s[{sV1}:{sV1+1}]')
    lstamp(a, cfg, 2, sW)
    for rec, vo in ((vRecA, vP), (vRecB, vP+1)):
        a.I(f'buffer_load_dwordx4 {vr(rec,4)}, v{vo}, s[{sWS}:{sWS+3}], 0 offen')
    a.I(f'v_lshrrev_b32 v{vTmp+4}, 1, v{vLane}')
    a.I(f'v_lshl_add_u32 v{vTmp}, v{vTmp+4}, 2, s{sT1}')
    for i in range(4):
        a.I(f'ds_read_b32 v{vFo+i}, v{vTmp} offset:{128*i}')
    a.I(f'v_and_b32 v{vTmp+5}, 1, v{vLane}')
    a.I(f'v_lshlrev_b32 v{vTmp+5}, 4, v{vTmp+5}')
    a.I(f'v_add_u32 v{vTmp+5}, {RECF_OFF:#x}, v{vTmp+5}')
    for i in range(4):
        a.I(f'v_add_u32 v{vTmp}, {32*i}, v{vTmp+4}')
        a.I(f'v_cmp_gt_i32 s[{sVF[i]}:{sVF[i]+1}], s{sT2}, v{vTmp}')
    a.I(f'v_mov_b32 v{vTmp}, 0x7ffffff0')
    a.I('s_waitcnt lgkmcnt(0)')
    for i in range(4):
        a.I(f'v_lshl_add_u32 v{vFo+i}, v{vFo+i}, 5, v{vTmp+5}')
        a.I(f'v_cndmask_b32 v{vFo+i}, v{vTmp}, v{vFo+i}, s[{sVF[i]}:{sVF[i]+1}]')
    vOne = vP+2
    a.I(f'v_mov_b32 v{vOne}, 1')
    a.I(f'v_lshlrev_b32 v{vP+10}, 2, v{vLane}')
    a.I('s_waitcnt vmcnt(0)')
    lstamp(a, cfg, 3, sW)
    vBin = (vP+4, vP+5); vEnt = (vP+6, vP+7); vRank = (vP+8, vP+9); vDl = (vP+22, vP+23)
    for i, rec in enumerate((vRecA, vRecB)):
        a.I(f'v_bfe_u32 v{vDl[i]}, v{rec+2}, 14, 6')
        a.I(f'v_lshlrev_b32 v{vDl[i]}, 2, v{vDl[i]}')
    def ef_loads():
        for i in range(4):
            a.I(f'buffer_load_dwordx4 {vr(vF+4*i,4)}, v{vFo+i}, s[{sWS}:{sWS+3}], 0 offen')
    a.I(f's_cmp_eq_u32 s{sRND}, 0')
    a.I('s_cbranch_scc1 K2_R0')
    ef_loads()
    a.I('s_branch K2_OWNED')
    a.L('K2_R0')
    for i, m in enumerate((sV0, sV1)):
        a.I(f's_mov_b64 exec, s[{m}:{m+1}]')
        a.I(f's_cbranch_execz K2_D{i}')
        a.I(f'ds_add_u32 v{vDl[i]}, v{vOne} offset:{DEG}')
        a.L(f'K2_D{i}')
    a.I('s_mov_b64 exec, -1')
    a.I(f'v_sub_u32 v{vP+12}, 63, v{vLane}')
    a.I(f's_mul_i32 s{sT0}, s{sW}, 5')
    a.I(f'v_mov_b32 v{vP+13}, 0')
    a.I('s_waitcnt lgkmcnt(0)')
    a.I('s_barrier')
    lstamp(a, cfg, 4, sW)
    ef_loads()
    if NPF2 > 0:
        a.I(f's_lshr_b32 s{sT1}, s{sB}, 3')
        a.I(f's_add_u32 s{sT2}, s{sW}, {NPF1}')
        a.I(f's_lshl_b32 s{sT2}, s{sT2}, 5')
        a.I(f's_add_u32 s{sT1}, s{sT1}, s{sT2}')
        a.I(f's_lshl_b32 s{sT1}, s{sT1}, 13')
        a.I(f's_cmp_lt_u32 s{sW}, {NPF2}')
        a.I(f's_cselect_b32 s{sT1}, s{sT1}, 0x7ff00000')
        a.I(f'v_lshlrev_b32 v{vTmp}, 7, v{vLane}')
        a.I(f'v_add_u32 v{vTmp}, s{sT1}, v{vTmp}')
        a.I(f'buffer_load_dword v{vDummy}, v{vTmp}, s[{sX}:{sX+3}], 0 offen')
    a.I(f'ds_read_b32 v{vP+11}, v{vP+10} offset:{DEG}')
    for i, rec in enumerate((vRecA, vRecB)):
        a.I(f'v_and_b32 v{vBin[i]}, 0x3fff, v{rec+2}')
    a.I('s_waitcnt lgkmcnt(0)')
    a.I(f'v_lshl_add_u32 v{vP+11}, v{vP+11}, 6, v{vP+12}')
    a.I('s_nop 0')
    for i in range(5):
        a.I(f'v_readlane_b32 s{sNODE+i}, v{vP+11}, s{sT0}')
        a.I(f's_add_u32 s{sT0}, s{sT0}, 1')
    a.I('s_nop 0')
    for i in range(5):
        a.I(f'v_cmp_gt_u32 vcc, s{sNODE+i}, v{vP+11}')
        a.I('s_nop 1')
        a.I(f'v_addc_co_u32 v{vP+13}, vcc, 0, v{vP+13}, vcc')
    a.I(f'ds_add_u32 v{vP+10}, v{vP+13} offset:{RNK}')
    a.I('s_waitcnt lgkmcnt(0)')
    a.I('s_barrier')
    a.I(f'ds_read_b32 v{vP+11}, v{vP+10} offset:{RNK}')
    a.I('s_waitcnt lgkmcnt(0)')
    a.I(f'v_lshlrev_b32 v{vP+11}, 2, v{vP+11}')
    a.I(f'ds_bpermute_b32 v{vNodePat}, v{vP+11}, v{vPat}')
    a.I('s_waitcnt lgkmcnt(0)')
    a.L('K2_OWNED')
    for i in range(2):
        a.I(f'ds_bpermute_b32 v{vP+24+i}, v{vDl[i]}, v{vNodePat}')
    for i, rec in enumerate((vRecA, vRecB)):
        a.I(f'v_and_b32 v{vBin[i]}, 0x3fff, v{rec+2}')
        a.I(f'v_mul_u32_u24 v{vP+10+i}, 838, v{vBin[i]}')
        a.I(f'v_lshlrev_b32 v{vEnt[i]}, 10, v{vBin[i]}')
        a.I(f'v_lshrrev_b32 v{vP+10+i}, 18, v{vP+10+i}')
    a.I('s_waitcnt lgkmcnt(0)')
    for i in range(2):
        a.I(f'v_and_b32 v{vTmp}, 7, v{vP+24+i}')
        a.I(f'v_lshl_add_u32 v{vP+10+i}, v{vTmp}, 5, v{vP+10+i}')
        a.I(f'v_lshlrev_b32 v{vBin[i]}, 2, v{vP+10+i}')
        a.I(f'v_and_b32 v{vTmp}, 0x38, v{vP+24+i}')
        a.I(f'v_or_b32 v{vEnt[i]}, v{vEnt[i]}, v{vTmp}')
    for i, m in enumerate((sV0, sV1)):
        a.I(f's_mov_b64 exec, s[{m}:{m+1}]')
        a.I(f's_cbranch_execz K2_H{i}')
        a.I(f'ds_add_rtn_u32 v{vRank[i]}, v{vBin[i]}, v{vOne} offset:{HIST}')
        a.L(f'K2_H{i}')
    a.I('s_mov_b64 exec, -1')
    for sl in range(5):
        a.I(f's_add_u32 s{sT0}, s{sW}, {sl << 3}')
        a.I(f'v_cmp_eq_u32 vcc, s{sT0}, v{vNodePat}')
        a.I(f's_ff1_i32_b64 s{sNODE+sl}, vcc')
        a.I(f's_mul_i32 s{sNODE+sl}, s{sNODE+sl}, {4*AGG_STRIDE}')
    a.I(f'v_mov_b32 v{vTmp}, {MAXR}')
    a.I('s_waitcnt lgkmcnt(0)')
    a.I('s_barrier')
    lstamp(a, cfg, 5, sW)
    vC, vS, vTot = vP+12, vP+16, vP+20
    a.I(f'ds_read_b32 v{vTmp+5}, v{vTmp}')
    hist_prefix(a, vC, vS, vTot, vL16, HIST, BASE)
    a.I(f'v_readfirstlane_b32 s{sMAXR}, v{vTmp+5}')
    a.I(f's_lshl_b32 s{sT0}, s{sW}, 3')
    a.I(f'v_readlane_b32 s{sSEG0}, v{vS}, s{sT0}')
    a.I(f's_add_u32 s{sT0}, s{sT0}, 8')
    a.I(f's_min_u32 s{sT0}, s{sT0}, 63')
    a.I(f'v_readlane_b32 s{sT1}, v{vS}, s{sT0}')
    a.I(f'v_readlane_b32 s{sT2}, v{vTot}, 63')
    a.I('s_waitcnt lgkmcnt(0)')
    a.I(f'ds_read_b32 v{vP+10}, v{vBin[0]} offset:{BASE}')
    a.I(f'ds_read_b32 v{vP+11}, v{vBin[1]} offset:{BASE}')
    a.I(f's_cmp_eq_u32 s{sW}, 7')
    a.I(f's_cselect_b32 s{sT1}, s{sT2}, s{sT1}')
    a.I(f's_sub_u32 s{sN}, s{sT1}, s{sSEG0}')
    a.I('s_waitcnt lgkmcnt(0)')
    for i in range(2):
        a.I(f'v_add_u32 v{vRank[i]}, v{vRank[i]}, v{vP+10+i}')
        a.I(f'v_lshlrev_b32 v{vP+10+i}, 2, v{vRank[i]}')
    for i, m in enumerate((sV0, sV1)):
        a.I(f's_mov_b64 exec, s[{m}:{m+1}]')
        a.I(f's_cbranch_execz K2_S{i}')
        a.I(f'ds_write_b32 v{vP+10+i}, v{vEnt[i]} offset:{ENT}')
        if cfg.get('dumph'):
            a.I(f's_lshl_b32 s{sT0}, s{sB}, 12')
            a.I(f's_add_u32 s{sT0}, s{sT0}, 0x1000000')
            a.I(f'buffer_store_dword v{(vRecA, vRecB)[i]+3}, v{vP+10+i}, s[{sWS}:{sWS+3}], s{sT0} offen')
            a.I(f's_add_u32 s{sT0}, s{sT0}, 0x100000')
            a.I(f'buffer_store_dword v{vEnt[i]}, v{vP+10+i}, s[{sWS}:{sWS+3}], s{sT0} offen')
        a.L(f'K2_S{i}')
    a.I('s_mov_b64 exec, -1')
    a.I(f'v_lshrrev_b32 v{vTmp+4}, 1, v{vLane}')
    a.I(f'v_lshlrev_b32 v{vTmp+4}, 2, v{vTmp+4}')
    a.I(f'v_add_u32 v{vTmp+5}, 128, v{vTmp+4}')
    a.I(f'ds_bpermute_b32 v{vP+24}, v{vTmp+4}, v{vRank[0]}')
    a.I(f'ds_bpermute_b32 v{vP+25}, v{vTmp+5}, v{vRank[0]}')
    a.I(f'ds_bpermute_b32 v{vP+26}, v{vTmp+4}, v{vRank[1]}')
    a.I(f'ds_bpermute_b32 v{vP+27}, v{vTmp+5}, v{vRank[1]}')
    a.I(f'v_add_u32 v{vEntA}, s{sSEG0}, v{vL15}')
    a.I(f'v_lshlrev_b32 v{vEntA}, 2, v{vEntA}')
    a.I(f'v_cmp_gt_i32 vcc, s{sN}, v{vL15}')
    a.I('s_waitcnt lgkmcnt(0)')
    a.I('s_barrier')
    lstamp(a, cfg, 6, sW)
    a.I(f'ds_read_b32 v{vENTc}, v{vEntA} offset:{ENT}')
    a.I(f'v_mov_b32 v{vTmp}, 0')
    a.I(f'v_lshlrev_b32 v{vTmp+4}, 2, v0')
    a.I(f's_cmp_lt_u32 s{sW}, 4')
    a.I('s_cbranch_scc0 K2_Z2')
    a.I(f'ds_write_b32 v{vTmp+4}, v{vTmp} offset:{HIST}')
    a.L('K2_Z2')
    a.I('s_waitcnt lgkmcnt(0)')
    a.I(f'v_cndmask_b32 v{vENTc}, 0, v{vENTc}, vcc')
    a.I('s_nop 0')
    for j in range(D + 1):
        a.I(f'v_readlane_b32 s{sE+j}, v{vENTc}, {j}')
    a.I('s_nop 3')
    D0 = min(D, 4)
    for j in range(D0):
        a.I(f's_and_b32 s{sXO}, s{sE+j}, 0xfffffc00')
        a.I(f'buffer_load_dwordx4 {vr(xrs(j),4)}, v{vL16}, s[{sX}:{sX+3}], s{sXO} offen' + cfg.get('xld', ''))
    a.I(f'v_and_b32 v{vTmp+5}, 1, v{vLane}')
    a.I(f'v_lshlrev_b32 v{vTmp+5}, 4, v{vTmp+5}')
    for i in range(4):
        a.I(f'v_lshl_add_u32 v{vFo+i}, v{vP+24+i}, 5, v{vTmp+5}')
    a.I(f's_waitcnt vmcnt({D0})')
    for i, (m, rec) in enumerate(((sV0, vRecA), (sV1, vRecB))):
        a.I(f's_mov_b64 exec, s[{m}:{m+1}]')
        a.I(f's_cbranch_execz K2_T{i}')
        a.I(f'v_lshlrev_b32 v{vTmp+4}, 3, v{vRank[i]}')
        a.I(f'ds_write_b64 v{vTmp+4}, {vr(rec,2)} offset:{YS}')
        a.L(f'K2_T{i}')
    for i in range(4):
        a.I(f's_mov_b64 exec, s[{sVF[i]}:{sVF[i]+1}]')
        a.I(f's_cbranch_execz K2_U{i}')
        a.I(f'ds_write_b128 v{vFo+i}, {vr(vF+4*i,4)} offset:{EFS}')
        a.L(f'K2_U{i}')
    a.I('s_mov_b64 exec, -1')
    a.I(f'v_add_u32 v{vTmp}, {CST}, v{vL16}')
    for q in range(4):
        a.I(f'ds_read_b128 {vr(vBR+4*q,4)}, v{vTmp} offset:{1024*q}')
    a.I(f'v_and_b32 v{vTmp+4}, 3, v{vLane}')
    a.I(f'v_lshlrev_b32 v{vTmp+4}, 6, v{vTmp+4}')
    a.I(f'v_add_u32 v{vTmp+4}, {CST+4096}, v{vTmp+4}')
    for q in range(4):
        a.I(f'ds_read_b128 {vr(vCG+4*q,4)}, v{vTmp+4} offset:{16*q}')

    def w_compute(dst):
        ops = []
        ops.append(f'v_lshlrev_b32 v{vYf}, 16, v{vYraw}')
        ops.append(f'v_and_b32 v{vYf+1}, 0xffff0000, v{vYraw}')
        ops.append(f'v_lshlrev_b32 v{vYf+2}, 16, v{vYraw+1}')
        ops.append(f'v_and_b32 v{vYf+3}, 0xffff0000, v{vYraw+1}')
        for f in range(4):
            yp = vYf + (f & 2)
            s = f & 1
            for h in range(2):
                cg = vCG + 4*f + 2*h
                if f == 0:
                    ops.append(f'v_pk_mul_f32 {vr(vWf+2*h,2)}, {vr(yp,2)}, {vr(cg,2)} op_sel:[{s},0] op_sel_hi:[{s},1]')
                else:
                    ops.append(f'v_pk_fma_f32 {vr(vWf+2*h,2)}, {vr(yp,2)}, {vr(cg,2)}, {vr(vWf+2*h,2)} op_sel:[{s},0,0] op_sel_hi:[{s},1,1]')
        ops.append(f'v_cvt_pk_bf16_f32 v{dst}, v{vWf}, v{vWf+1}')
        ops.append(f'v_cvt_pk_bf16_f32 v{dst+1}, v{vWf+2}, v{vWf+3}')
        return ops

    def h_mfma():
        ops = []
        for p, H in ((0, vH0), (1, vH1)):
            ops.append(f'v_mfma_f32_32x32x16_bf16 {vr(H,16)}, {vr(vAL,4)}, {vr(vBR+8*p,4)}, 0')
            ops.append(f'v_mfma_f32_32x32x16_bf16 {vr(H,16)}, {vr(vAH,4)}, {vr(vBR+8*p+4,4)}, {vr(H,16)}')
        return ops

    spread = cfg.get('hspread', 1)
    vHS1 = 10
    def hpair(q):
        if spread:
            if q == 6:
                return vHS, vH1 + 12
            if q == 7:
                return vHS + 2, vHS1
        elif q == 7:
            return vHS, vHS + 2
        qq = q % 8
        return vH0 + 2*qq, vH1 + 2*qq

    def z_ops(q):
        h0, h1 = hpair(q)
        if scaled:
            return []
        vZ = 8 if cfg.get('zsep') else vT
        return [f'v_pk_mul_f32 {vr(vZ,2)}, {vr(h0,2)}, s[{sCL}:{sCL+1}]',
                f'v_pk_mul_f32 {vr(vZ+2,2)}, {vr(h1,2)}, s[{sCL}:{sCL+1}]']

    def exp_ops(q):
        h0, h1 = hpair(q)
        if scaled:
            return [f'v_exp_f32 v{vT}, v{h0}', f'v_exp_f32 v{vT+1}, v{h0+1}',
                    f'v_exp_f32 v{vT+2}, v{h1}', f'v_exp_f32 v{vT+3}, v{h1+1}']
        vZ = 8 if cfg.get('zsep') else vT
        return [f'v_exp_f32 v{vT+i}, v{vZ+i}' for i in range(4)]

    add_ops = [f'v_pk_add_f32 {vr(vT,2)}, {vr(vT,2)}, 1.0 op_sel_hi:[1,0]',
               f'v_pk_add_f32 {vr(vT+2,2)}, {vr(vT+2,2)}, 1.0 op_sel_hi:[1,0]']
    rcp_ops = [f'v_rcp_f32 v{vT+i}, v{vT+i}' for i in range(4)]

    def r_ops(q):
        h0, h1 = hpair(q)
        rb = vR + 4*(q % 2)
        return [f'v_pk_mul_f32 {vr(rb,2)}, {vr(h0,2)}, {vr(vT,2)}',
                f'v_pk_mul_f32 {vr(rb+2,2)}, {vr(h1,2)}, {vr(vT+2,2)}']

    a.I(f'v_lshrrev_b32 v{vTmp}, 2, v{vLane}')
    a.I(f'v_add_u32 v{vYA}, s{sSEG0}, v{vTmp}')
    a.I(f'v_lshlrev_b32 v{vYA}, 3, v{vYA}')
    a.I(f'v_bfe_u32 v{vTmp}, v{vLane}, 3, 2')
    a.I(f'v_and_b32 v{vTmp+4}, 3, v{vLane}')
    a.I(f'v_lshl_add_u32 v{vTmp}, v{vTmp}, 2, v{vTmp+4}')
    a.I(f'v_add_u32 v{vTmp}, s{sSEG0}, v{vTmp}')
    a.I(f'v_lshlrev_b32 v{vTmp}, 5, v{vTmp}')
    a.I(f'v_lshrrev_b32 v{vTmp+4}, 5, v{vLane}')
    a.I(f'v_lshl_add_u32 v{vEfA}, v{vTmp+4}, 4, v{vTmp}')
    a.I(f'v_add_u32 v{vEfA}, {EFS}, v{vEfA}')
    a.I(f'v_mov_b32 v{vTmp}, {ZERO16}')
    a.I(f'v_cndmask_b32 v{vAL_A}, v{vTmp}, v{vEfA}, s[{sMLO}:{sMLO+1}]')
    a.I(f'v_cndmask_b32 v{vAH_A}, v{vTmp}, v{vEfA}, s[{sMHI}:{sMHI+1}]')
    for i in range(8):
        a.I(f'v_mov_b32 v{vTP+8+i}, 0')
    for i in range(4):
        a.I(f'v_mov_b32 v{vR+4+i}, 0')
    a.I(f's_mov_b32 s{sE+15}, 0')
    a.I(f's_mov_b32 s{sCNT}, s{sN}')
    a.I(f's_sub_i32 s{sREM}, s{sN}, 16')
    a.I('s_waitcnt lgkmcnt(0)')
    if cfg.get('dumph'):
        a.I(f's_lshl_b32 s{sT0}, s{sB}, 3')
        a.I(f's_add_u32 s{sT0}, s{sT0}, s{sW}')
        a.I(f's_lshl_b32 s{sT0}, s{sT0}, 2')
        a.I(f's_add_u32 s{sT0}, s{sT0}, 0x1200000')
        a.I(f'v_mov_b32 v{vTmp}, s{sSEG0}')
        a.I(f'v_mov_b32 v{vTmp+4}, 0')
        a.I(f'buffer_store_dword v{vTmp}, v{vTmp+4}, s[{sWS}:{sWS+3}], s{sT0} offen')
    for j in range(D0, D):
        a.I(f's_and_b32 s{sXO}, s{sE+j}, 0xfffffc00')
        a.I(f'buffer_load_dwordx4 {vr(xrs(j),4)}, v{vL16}, s[{sX}:{sX+3}], s{sXO} offen' + cfg.get('xld', ''))
    a.I(f's_and_b32 s{sXO}, s{sE+D}, 0xfffffc00')
    a.I('s_barrier')
    lstamp(a, cfg, 7, sW)
    a.I(f'ds_read_b128 {vr(vAL,4)}, v{vAL_A}')
    a.I(f'ds_read_b128 {vr(vAH,4)}, v{vAH_A}')
    a.I(f'ds_read_b64 {vr(vYraw,2)}, v{vYA} offset:{YS}')
    a.I('s_waitcnt lgkmcnt(1)')
    if cfg.get('dly') == 1:
        a.I('s_nop 15'); a.I('s_nop 15')
    for op in h_mfma():
        a.I(op)
    a.I('s_waitcnt lgkmcnt(0)')
    for op in w_compute(vWc):
        a.I(op)
    a.I('s_nop 7')
    pn = str(cfg.get('pnop', '0000'))
    pn = [int(c) for c in pn.zfill(4)]
    if cfg.get('hnop'):
        a.I('s_nop 15'); a.I('s_nop 15')
    for op in z_ops(0):
        a.I(op)
    if pn[0]: a.I(f's_nop {pn[0]}')
    for op in exp_ops(0):
        a.I(op)
    a.I(f's_nop {pn[1]}')
    for op in add_ops:
        a.I(op)
    if pn[2]: a.I(f's_nop {pn[2]}')
    for op in rcp_ops:
        a.I(op)
    a.I(f's_nop {pn[3]}')
    for op in r_ops(0) + z_ops(1):
        a.I(op)

    if cfg.get('padj'):
        a.I('s_branch K2_PADJ')
    for _ in range(cfg.get('pad', 0)):
        a.I('s_nop 0')
    if cfg.get('padj'):
        a.L('K2_PADJ')
    if cfg.get('dly') == 2:
        a.I('s_nop 15'); a.I('s_nop 15')
    if cfg.get('dly') == 3:
        a.I('s_waitcnt vmcnt(0)')
    if cfg.get('prio') == 'dyn':
        a.I(f's_lshl_b32 s{sT0}, s{sW}, 2')
        a.I(f's_add_u32 s{sT1}, s{sT0}, {PROG}')
        a.I(f'v_mov_b32 v{vProgA}, s{sT1}')
        a.I(f's_xor_b32 s{sT0}, s{sT0}, 16')
        a.I(f's_add_u32 s{sT1}, s{sT0}, {PROG}')
        a.I(f'v_mov_b32 v{vProgB}, s{sT1}')
    if cfg.get('prio') == 'young':
        a.I(f's_cmp_ge_u32 s{sW}, 4')
        a.I('s_cbranch_scc0 K2_PR')
        a.I('s_setprio 1')
        a.L('K2_PR')
    a.L('K2_LOOP')
    wn_ops = w_compute(vWn)
    for j in range(16):
        a(f'    ; ---- slot {j}')
        if j == 13 and cfg.get('dumph'):
            a.I(f's_cmp_eq_u32 s{sBMF}, 0')
            a.I('s_cbranch_scc0 K2_NODUMP')
            a.I(f's_lshl_b32 s{sT0}, s{sB}, 3')
            a.I(f's_add_u32 s{sT0}, s{sT0}, s{sW}')
            a.I(f's_lshl_b32 s{sT0}, s{sT0}, 14')
            a.I(f's_add_u32 s{sT0}, s{sT0}, 0x2000000')
            a.I(f'v_lshlrev_b32 v{vTmp}, 2, v{vLane}')
            dl = [vACC+i for i in range(40)] + [vR+i for i in range(8)] + [vTP+i for i in range(16)]
            for r, reg in enumerate(dl):
                if r and r % 16 == 0:
                    a.I(f's_add_u32 s{sT0}, s{sT0}, 4096')
                a.I(f'buffer_store_dword v{reg}, v{vTmp}, s[{sWS}:{sWS+3}], s{sT0} offen offset:{(r%16)*256}')
            a.L('K2_NODUMP')
        if j == 0:
            a.I(f'ds_read_b32 v{vENTn}, v{vEntA} offset:{ENT+64}')
            a.I(f'ds_read_b64 {vr(vYraw,2)}, v{vYA} offset:{YS+128}')
            if cfg.get('prio') == 'dyn':
                a.I(f'v_mov_b32 v{vTmp}, s{sCNT}')
                a.I(f'ds_write_b32 v{vProgA}, v{vTmp}')
                a.I(f'ds_read_b32 v{vProgP}, v{vProgB}')
        nocomp = cfg.get('nocomp'); noload = cfg.get('noload'); drop = str(cfg.get('drop', '')).split('+')
        if not noload:
            a.I(f's_waitcnt vmcnt({D-1 if cfg.get("dly") != 4 else D-2})')
        if cfg.get('dly') == 5:
            a.I('s_nop 1')
        xr = xrs(j % D)
        tp = vTP + 8*(j % 2)
        if not nocomp and 'mfma' not in drop:
            a.I(f'v_mfma_f32_4x4x4_16b_bf16 {vr(tp,4)}, {vr(vWc,2)}, {vr(xr,2)}, 0 cbsz:4 abid:{j}')
            a.I(f'v_mfma_f32_4x4x4_16b_bf16 {vr(tp+4,4)}, {vr(vWc,2)}, {vr(xr+2,2)}, 0 cbsz:4 abid:{j}')
        late = cfg.get('ldlate')
        if not noload and not late:
            a.I(f'buffer_load_dwordx4 {vr(xr,4)}, v{vL16}, s[{sX}:{sX+3}], s{sXO} offen' + cfg.get('xld', ''))
        if spread and 10 <= j <= 13 and 'h' not in drop:
            a.I(h_mfma()[j - 10])
        q = j // 2 + 1 if j % 2 == 0 else (j + 1) // 2
        if not nocomp and 'trans' not in drop:
            for op in (exp_ops(q) if j % 2 == 0 else rcp_ops):
                a.I(op)
        if not noload and late:
            a.I(f'buffer_load_dwordx4 {vr(xr,4)}, v{vL16}, s[{sX}:{sX+3}], s{sXO} offen' + cfg.get('xld', ''))
        jn = j + D + 1
        src_ent = vENTc if jn < 16 else vENTn
        if 'rl' not in drop:
            a.I(f'v_readlane_b32 s{sE+jn%16}, v{src_ent}, {jn%16}')
        jm = (j - 1) % 16
        tpm = vTP + 8*((j - 1) % 2)
        rb = vR + 4*((((j - 1) // 2)) % 2)
        sel = (j - 1) & 1
        if not nocomp:
            if 'idx' not in drop:
                a.I(f's_set_gpr_idx_on s{sE+jm}, gpr_idx(SRC2,DST)')
                if cfg.get('fnop', 0) & 1: a.I('s_nop 0')
            for p in range(2):
                for h in range(2):
                    acc = vACC + 4*p + 2*h
                    if 'fma' not in drop:
                        if cfg.get('fswap', 1):
                            a.I(f'v_pk_fma_f32 {vr(acc,2)}, {vr(rb+2*p,2)}, {vr(tpm+4*p+2*h,2)}, {vr(acc,2)} op_sel:[{sel},0,0] op_sel_hi:[{sel},1,1]')
                        else:
                            a.I(f'v_pk_fma_f32 {vr(acc,2)}, {vr(tpm+4*p+2*h,2)}, {vr(rb+2*p,2)}, {vr(acc,2)} op_sel:[0,{sel},0] op_sel_hi:[1,{sel},1]')
            if 'idx' not in drop:
                if cfg.get('fnop', 0) & 2: a.I('s_nop 0')
                a.I('s_set_gpr_idx_off')
                if cfg.get('fnop', 0) & 4: a.I('s_nop 0')
        else:
            a.I('s_nop 3')
        for _ in range(cfg.get('extra', 0)):
            a.I(f'v_mov_b32 v63, v{vLane}')
        a.I(f's_sub_u32 s{sCNT}, s{sCNT}, 1')
        a.I('s_cbranch_scc1 K2_EXIT')
        a.I(f's_and_b32 s{sXO}, s{sE+jn%16}, 0xfffffc00')
        if nocomp or 'pk' in drop:
            pass
        elif j % 2 == 0:
            for op in add_ops:
                a.I(op)
        else:
            for op in r_ops(q) + z_ops(q + 1):
                a.I(op)
        if j == 1:
            a.I(f'v_add_u32 v{vEfA}, 512, v{vEfA}')
            a.I(f'v_mov_b32 v{vTmp}, {ZERO16}')
            a.I(f'v_cndmask_b32 v{vAL_A}, v{vTmp}, v{vEfA}, s[{sMLO}:{sMLO+1}]')
            a.I(f'v_cndmask_b32 v{vAH_A}, v{vTmp}, v{vEfA}, s[{sMHI}:{sMHI+1}]')
            a.I(f'ds_read_b128 {vr(vAL,4)}, v{vAL_A}')
            a.I(f'ds_read_b128 {vr(vAH,4)}, v{vAH_A}')
        if j == 3:
            a.I('s_waitcnt lgkmcnt(0)')
            a.I(f'v_cmp_gt_i32 vcc, s{sREM}, v{vL15}')
            for op in wn_ops[0:4]:
                a.I(op)
            a.I(f'v_cndmask_b32 v{vENTn}, 0, v{vENTn}, vcc')
            if cfg.get('prio') == 'dyn':
                a.I(f'v_readfirstlane_b32 s{sT0}, v{vProgP}')
                a.I(f's_add_u32 s{sT1}, s{sCNT}, {cfg.get("pbias", 11)}')
                a.I(f's_cmp_gt_u32 s{sT1}, s{sT0}')
                a.I('s_cbranch_scc1 K2_PHI')
                a.I('s_setprio 0')
                a.I('s_branch K2_PDN')
                a.L('K2_PHI')
                a.I('s_setprio 1')
                a.L('K2_PDN')
        if j == 4 and 'w' not in drop:
            for op in wn_ops[4:8]:
                a.I(op)
        if j == 5 and 'w' not in drop:
            for op in wn_ops[8:14]:
                a.I(op)
        if spread and j == 8:
            for i in range(4):
                a.I(f'v_mov_b32 v{vHS+i}, v{vH0+12+i}')
            a.I(f'v_mov_b32 v{vHS1}, v{vH1+14}')
            a.I(f'v_mov_b32 v{vHS1+1}, v{vH1+15}')
        if not spread and j == 9:
            a.I(f'v_mov_b32 v{vHS}, v{vH0+14}')
            a.I(f'v_mov_b32 v{vHS+1}, v{vH0+15}')
            a.I(f'v_mov_b32 v{vHS+2}, v{vH1+14}')
            a.I(f'v_mov_b32 v{vHS+3}, v{vH1+15}')
        if not spread and j == 11 and 'h' not in drop:
            for op in h_mfma():
                a.I(op)
        if j == 15:
            a.I(f'v_mov_b32 v{vWc}, v{vWn}')
            a.I(f'v_mov_b32 v{vWc+1}, v{vWn+1}')
            a.I(f'v_mov_b32 v{vENTc}, v{vENTn}')
            a.I(f'v_add_u32 v{vEntA}, 64, v{vEntA}')
            a.I(f'v_add_u32 v{vYA}, 128, v{vYA}')
            a.I(f's_sub_i32 s{sREM}, s{sREM}, 16')
            a.I(f's_cmp_eq_u32 s{sBMF}, 0')
            a.I('s_cbranch_scc0 K2_LOOP')
            a.I(f's_add_u32 s{sT0}, s{sRND}, 1')
            a.I(f's_cmp_lt_u32 s{sT0}, s{sMAXR}')
            a.I('s_cbranch_scc1 K2_LOOP')
            a.I(f's_mov_b32 s{sBMF}, 1')
            bm_loads()
            a.I('s_branch K2_LOOP')
    a.L('K2_EXIT')
    if cfg.get('prio') == 'dyn':
        a.I(f'v_mov_b32 v{vTmp}, 0')
        a.I(f'ds_write_b32 v{vProgA}, v{vTmp}')
        a.I('s_setprio 0')
    a.I('s_waitcnt vmcnt(0) lgkmcnt(0)')
    a.I(f's_add_u32 s{sRND}, s{sRND}, 1')
    a.I(f's_cmp_lt_u32 s{sRND}, s{sMAXR}')
    a.I('s_cbranch_scc0 K2_TAIL')
    a.I('s_barrier')
    a.I('s_branch K2_ROUND')

    a.L('K2_TAIL')
    lstamp(a, cfg, 8, sW)
    a.I(f's_cmp_eq_u32 s{sBMF}, 0')
    a.I('s_cbranch_scc0 K2_BMOK')
    bm_loads()
    a.L('K2_BMOK')
    a.I(f'v_lshlrev_b32 v{vTmp}, 2, v{vLane}')
    a.I(f'v_add_u32 v{vTmp}, {AGG}, v{vTmp}')
    for s in range(5):
        a.I(f'v_add_u32 v{vTmp+4}, s{sNODE+s}, v{vTmp}')
        for o in range(4):
            t = vXR + s * 4 + o
            a.I(f'v_cvt_pk_bf16_f32 v{t}, v{vACC+8*s+o}, v{vACC+8*s+4+o}')
            a.I(f'ds_write_b32 v{vTmp+4}, v{t} offset:{o * AGG_STRIDE}')
    a.I('s_waitcnt lgkmcnt(0)')
    a.I('s_barrier')
    lstamp(a, cfg, 9, sW)
    a.I(f'v_mul_u32_u24 v{vTmp}, {AGG_STRIDE}, v{vL15}')
    a.I(f'v_lshrrev_b32 v{vTmp+4}, 4, v{vLane}')
    a.I(f'v_lshl_add_u32 v{vTmp}, v{vTmp+4}, 4, v{vTmp}')
    a.I(f's_lshr_b32 s{sT0}, s{sW}, 2')
    a.I(f's_mul_i32 s{sT1}, s{sT0}, {5*16*AGG_STRIDE}')
    a.I(f's_add_u32 s{sT1}, s{sT1}, {AGG}')
    a.I(f'v_add_u32 v{vTmp}, s{sT1}, v{vTmp}')
    a.I(f's_mul_i32 s{sT1}, s{sT0}, 20')
    a.I(f'v_add_u32 v{vTmp+4}, s{sT1}, v{vTmp+4}')
    a.I(f'v_lshlrev_b32 v{vTmp+4}, 18, v{vTmp+4}')
    a.I(f's_lshl_b32 s{sT1}, s{sB}, 10')
    a.I(f's_and_b32 s{sT2}, s{sW}, 3')
    a.I(f's_lshl_b32 s{sT2}, s{sT2}, 8')
    a.I(f's_add_u32 s{sT1}, s{sT1}, s{sT2}')
    a.I(f'v_lshl_add_u32 v{vTmp+5}, v{vL15}, 4, s{sT1}')
    a.I(f'v_add_u32 v{vTmp+4}, v{vTmp+4}, v{vTmp+5}')
    vA = (vH0, vH0 + 16 - 16 + 16)
    vA = (vH0, vH1)
    vD = (vTP, vTP + 8)
    vO = (vXR, vXR + 4, vXR + 8, vXR + 12)
    def a_reads(tt):
        for ks in range(4):
            a.I(f'ds_read_b128 {vr(vA[tt%2]+4*ks,4)}, v{vTmp} offset:{tt*16*AGG_STRIDE + 64*ks}')
    a_reads(0)
    a.I('s_waitcnt vmcnt(0)')
    for tt in range(5):
        if tt + 1 < 5:
            a_reads(tt + 1)
            a.I('s_waitcnt lgkmcnt(4)')
        else:
            a.I('s_waitcnt lgkmcnt(0)')
        D = vD[tt % 2]
        for ks in range(4):
            for t in range(2):
                c = '0' if ks == 0 else vr(D+4*t, 4)
                a.I(f'v_mfma_f32_16x16x32_bf16 {vr(D+4*t,4)}, {vr(vA[tt%2]+4*ks,4)}, {vr(vBM+16*t+4*ks,4)}, {c}')
        if tt > 0:
            Dp = vD[(tt - 1) % 2]; O = vO[(tt - 1) % 4]
            a.I(f'v_cvt_pk_bf16_f32 v{O}, v{Dp}, v{Dp+1}')
            a.I(f'v_cvt_pk_bf16_f32 v{O+1}, v{Dp+2}, v{Dp+3}')
            a.I(f'v_cvt_pk_bf16_f32 v{O+2}, v{Dp+4}, v{Dp+5}')
            a.I(f'v_cvt_pk_bf16_f32 v{O+3}, v{Dp+6}, v{Dp+7}')
            a.I(f'buffer_store_dwordx4 {vr(O,4)}, v{vTmp+4}, s[{sOUT}:{sOUT+3}], 0 offen' + cfg.get('ost', ''))
            if cfg.get('k2extra'):
                a.I(f's_mov_b32 s{sWS+2}, 0x4000000')
                a.I(f's_mov_b32 s{sT2}, 0x2000000')
                a.I(f'buffer_store_dwordx4 {vr(O,4)}, v{vTmp+4}, s[{sWS}:{sWS+3}], s{sT2} offen' + cfg.get('ost', ''))
            a.I(f'v_add_u32 v{vTmp+4}, {4 << 18:#x}, v{vTmp+4}')
    Dp = vD[4 % 2]; O = vO[0]
    a.I('s_nop 7')
    a.I(f'v_cvt_pk_bf16_f32 v{O}, v{Dp}, v{Dp+1}')
    a.I(f'v_cvt_pk_bf16_f32 v{O+1}, v{Dp+2}, v{Dp+3}')
    a.I(f'v_cvt_pk_bf16_f32 v{O+2}, v{Dp+4}, v{Dp+5}')
    a.I(f'v_cvt_pk_bf16_f32 v{O+3}, v{Dp+6}, v{Dp+7}')
    a.I(f'buffer_store_dwordx4 {vr(O,4)}, v{vTmp+4}, s[{sOUT}:{sOUT+3}], 0 offen' + cfg.get('ost', ''))
    if cfg.get('stamps'):
        a.I('s_waitcnt vmcnt(0)')
        lstamp(a, cfg, 10, sW)
        a.I(f's_lshl_b32 s{sT0}, s{sW}, 2')
        a.I(f's_add_u32 s{sT0}, s{sT0}, s{sDBG}')
        a.I(f'v_mov_b32 v{vTmp+1}, s{sT0}')
        a.I(f'v_mov_b32 v{vTmp}, s{80+2*8}')
        a.I(f'buffer_store_dword v{vTmp}, v{vTmp+1}, s[{sWS}:{sWS+3}], 0 offen offset:64')
        a.I(f'v_mov_b32 v{vTmp+4}, s{sN}')
        a.I(f'buffer_store_dword v{vTmp+4}, v{vTmp+1}, s[{sWS}:{sWS+3}], 0 offen offset:96')
        a.I('s_waitcnt vmcnt(0)')
        a.I(f's_cmp_eq_u32 s{sW}, 0')
        a.I('s_cbranch_scc0 K2_END')
        a.I(f'v_mov_b32 v{vTmp+1}, s{sDBG}')
        for i in range(11):
            a.I(f'v_mov_b32 v{vTmp}, s{80+2*i}')
            a.I(f'buffer_store_dword v{vTmp}, v{vTmp+1}, s[{sWS}:{sWS+3}], 0 offen offset:{4*i}')
            a.I('s_waitcnt vmcnt(0)')
        if cfg.get('dbgwg') is not None:
            a.I(f's_cmp_eq_u32 s{sB}, {cfg["dbgwg"]}')
            a.I('s_cbranch_scc0 K2_END')
            a.I('s_load_dwordx2 s[42:43], s[0:1], 72')
            a.I(f'v_mov_b32 v{vTmp+1}, {STAMP_OFF + 64*cfg["dbgwg"]:#x}')
            a.I(f'buffer_load_dwordx4 v[136:139], v{vTmp+1}, s[{sWS}:{sWS+3}], 0 offen')
            a.I('s_waitcnt vmcnt(0) lgkmcnt(0)')
            a.I('s_mov_b32 s44, s42')
            a.I('s_and_b32 s45, s43, 0xffff')
            a.I('s_mov_b32 s46, 256')
            a.I('s_mov_b32 s47, 0x20000')
            a.I(f'v_mov_b32 v{vTmp+1}, 0')
            for i in range(11):
                a.I(f'v_sub_u32 v{vTmp}, s{80+2*i}, v136')
                a.I(f'buffer_store_dword v{vTmp}, v{vTmp+1}, s[44:47], 0 offen offset:{4*i}')
                a.I('s_waitcnt vmcnt(0)')
            for i, r in enumerate((137, 138, 139)):
                a.I(f'v_sub_u32 v{vTmp}, v{r}, v136')
                a.I(f'buffer_store_dword v{vTmp}, v{vTmp+1}, s[44:47], 0 offen offset:{44+4*i}')
                a.I('s_waitcnt vmcnt(0)')
    a.L('K2_END')
    a.I('s_endpgm')
    return name, NV, (102 if cfg.get('stamps') else 76)


def vOneConst(a, v, val):
    a.I(f'v_mov_b32 v{v}, {val}')
    return v


def build(cfg):
    a = Asm()
    seq = cfg.get('seq', 'BM')
    for ch in seq:
        if ch == 'B':
            a('; @launch kernel=bin_kernel grid=(256,1,1) block=(640,1,1) lds=32768')
        elif ch == 'M':
            a(f'; @launch kernel=main_kernel grid=(256,1,1) block=(512,1,1) lds={K2_LDS}')
        elif ch == 'n':
            a('; @launch kernel=nop_kernel grid=(1,1,1) block=(64,1,1) lds=0')
        elif ch == 'o':
            a('; @launch kernel=nopb_kernel grid=(1,1,1) block=(64,1,1) lds=0')
        elif ch == 'N':
            a('; @launch kernel=nop_kernel grid=(256,1,1) block=(512,1,1) lds=0')
    a('.amdgcn_target "amdgcn-amd-amdhsa--gfx950"')
    a('.text')
    k1 = gen_k1(a, cfg)
    k2 = gen_k2(a, cfg)
    ks = [k1, k2]
    if 'n' in seq or 'N' in seq:
        a('.globl nop_kernel\n.p2align 8\n.type nop_kernel,@function\nnop_kernel:\n    s_endpgm')
        ks.append(('nop_kernel', 8, 16))
    if 'o' in seq:
        a('.globl nopb_kernel\n.p2align 8\n.type nopb_kernel,@function\nnopb_kernel:\n    s_endpgm')
        ks.append(('nopb_kernel', 8, 16))
    a('.section .rodata,"a"')
    for k in ks:
        a('.p2align 6')
        kd(a, *k)
    return a.text()


def gen_text(cfg):
    import hazard
    return hazard.fix(build(cfg))[0]


if __name__ == '__main__':
    cfg = {}
    out = sys.argv[1] if len(sys.argv) > 1 else 'gather_scatter__tensor_product_equiv_tfn__graph.s'
    for kv in sys.argv[2:]:
        k, v = kv.split('=', 1)
        try:
            v = int(v)
        except ValueError:
            v = v.replace('_', ' ')
        cfg[k] = v
    import hazard
    txt, n = hazard.fix(build(cfg), verbose=bool(cfg.get('hzv')))
    open(out, 'w').write(txt)
    if n: print('hazard pass inserted', n, 'nops')
    print('wrote', out)
```

```python
import sys, struct

N_NODES = 10000
N_EDGES = 160000
CHUNK = 625
RECA_OFF = 0
RECF_OFF = 0x280000
TAB_OFF = 0x800000
BRAD_OFF = 0x840000
CGW_OFF = 0x841000
BMIX_OFF = 0x842000
WS_SIZE = 0x850000
X_BYTES = N_NODES * 1024

def f2u(x):
    return struct.unpack('<I', struct.pack('<f', x))[0]
LOG2E = 1.4426950408889634
LN2 = 0.6931471805599453


class Asm:
    def __init__(self):
        self.lines = []
    def __call__(self, s=''):
        for ln in s.split('\n'):
            self.lines.append(ln)
    def I(self, s):
        self.lines.append('    ' + s)
    def L(self, name):
        self.lines.append(name + ':')
    def text(self):
        return '\n'.join(self.lines) + '\n'


def vr(base, n=1):
    return f'v{base}' if n == 1 else f'v[{base}:{base+n-1}]'
def sr(base, n=1):
    return f's{base}' if n == 1 else f's[{base}:{base+n-1}]'


def srd(a, dst, ptr, size):
    a.I(f's_mov_b32 s{dst}, s{ptr}')
    a.I(f's_and_b32 s{dst+1}, s{ptr+1}, 0xffff')
    a.I(f's_mov_b32 s{dst+2}, {size:#x}')
    a.I(f's_mov_b32 s{dst+3}, 0x20000')


def scan_dpp(a, v, full64):
    for sh in (1, 2, 4, 8):
        a.I('s_nop 1')
        a.I(f'v_add_u32_dpp v{v}, v{v}, v{v} row_shr:{sh} row_mask:0xf bank_mask:0xf')
    a.I('s_nop 1')
    a.I(f'v_add_u32_dpp v{v}, v{v}, v{v} row_bcast:15 row_mask:0xa bank_mask:0xf')
    if full64:
        a.I('s_nop 1')
        a.I(f'v_add_u32_dpp v{v}, v{v}, v{v} row_bcast:31 row_mask:0xc bank_mask:0xf')


def hist_prefix(a, vC, vS, vTot, vLane16, hist_off, base_off):
    a.I(f'ds_read_b128 {vr(vC,4)}, v{vLane16} offset:{hist_off}')
    a.I('s_waitcnt lgkmcnt(0)')
    a.I(f'v_add_u32 v{vS+2}, v{vC}, v{vC+1}')
    a.I(f'v_add_u32 v{vS+3}, v{vS+2}, v{vC+2}')
    a.I(f'v_add_u32 v{vTot}, v{vS+3}, v{vC+3}')
    a.I(f'v_mov_b32 v{vS}, v{vTot}')
    scan_dpp(a, vTot, True)
    a.I('s_nop 0')
    a.I(f'v_sub_u32 v{vS}, v{vTot}, v{vS}')
    a.I(f'v_add_u32 v{vS+1}, v{vS}, v{vC}')
    a.I(f'v_add_u32 v{vS+2}, v{vS}, v{vS+2}')
    a.I(f'v_add_u32 v{vS+3}, v{vS}, v{vS+3}')
    a.I(f'ds_write_b128 v{vLane16}, {vr(vS,4)} offset:{base_off}')


def stamp(a, cfg, idx, sdbg, tmp_s, tmp_v):
    if not cfg.get('stamps'):
        return
    a.I(f's_memrealtime s[{tmp_s}:{tmp_s+1}]')
    a.I('s_waitcnt lgkmcnt(0)')
    a.I(f'v_mov_b32 v{tmp_v}, s{tmp_s}')
    a.I(f'v_mov_b32 v{tmp_v+1}, s{sdbg}')
    a.I(f'buffer_store_dword v{tmp_v}, v{tmp_v+1}, s[{cfg["stamp_srd"]}:{cfg["stamp_srd"]+3}], 0 offen offset:{idx*4}')


def lstamp(a, cfg, i, sW):
    if not cfg.get('stamps'):
        return
    a.I(f's_memrealtime s[{80+2*i}:{81+2*i}]')
    a.I('s_waitcnt lgkmcnt(0)')


STAMP_OFF = 0x900000


def gen_k1(a, cfg):
    name = 'bin_kernel'
    NPF = cfg.get('npf1', 0)
    scaled = cfg.get('scaled', False)
    a(f'.globl {name}\n.p2align 8\n.type {name},@function\n{name}:')
    sDST, sSRC, sY, sEF, sWS, sX, sPREP = 8, 12, 16, 20, 24, 28, 32
    a.I('s_cmp_ge_u32 s2, 256')
    a.I('s_cbranch_scc1 K1_END')
    a.I('s_load_dwordx4 s[44:47], s[0:1], 0')
    a.I('s_load_dwordx4 s[48:51], s[0:1], 16')
    a.I('s_load_dwordx4 s[52:55], s[0:1], 32')
    a.I('s_load_dwordx4 s[56:59], s[0:1], 48')
    a.I('s_load_dwordx2 s[60:61], s[0:1], 80')
    if cfg.get('dbgprint'):
        a.I('s_load_dwordx2 s[72:73], s[0:1], 72')
        a.I('s_memrealtime s[74:75]')
    vT, vLane, vT4, vE, vOff = 0, 1, 2, 3, 4
    vDst, vSrc = 5, 6
    vRec = 8
    vY = 9
    vEF = 12
    vKey, vRank, vOne, vTmp = 20, 21, 22, 23
    vC, vS, vTot, vL16 = 24, 28, 32, 33
    vPrep, vPrepAddr, vPf = 34, 35, 36
    vT2 = 37
    a.I(f'v_and_b32 v{vLane}, 63, v0')
    a.I(f'v_lshlrev_b32 v{vT4}, 2, v0')
    a.I(f'v_lshrrev_b32 v{vTmp}, 6, v0')
    a.I(f'v_mov_b32 v{vOne}, 1')
    a.I(f'v_readfirstlane_b32 s4, v{vTmp}')
    a.I(f'v_mov_b32 v{vTmp}, 0')
    a.I(f'v_lshlrev_b32 v{vL16}, 4, v{vLane}')
    a.I('v_cmp_gt_u32 vcc, 256, v0')
    a.I('s_and_saveexec_b64 s[6:7], vcc')
    a.I('s_cbranch_execz K1_Z')
    a.I(f'ds_write_b32 v{vT4}, v{vTmp}')
    a.L('K1_Z')
    a.I('s_mov_b64 exec, s[6:7]')
    a.I(f's_mul_i32 s5, s2, {CHUNK}')
    a.I(f'v_add_u32 v{vE}, s5, v0')
    a.I('s_waitcnt lgkmcnt(0)')
    srd(a, sDST, 48, N_EDGES * 4)
    srd(a, sSRC, 46, N_EDGES * 4)
    srd(a, sY, 50, N_EDGES * 8)
    srd(a, sEF, 52, N_EDGES * 32)
    if cfg.get('wsbase', 0):
        a.I(f's_add_u32 s60, s60, {cfg["wsbase"] << 20:#x}')
        a.I('s_addc_u32 s61, s61, 0')
    srd(a, sWS, 60, WS_SIZE if not cfg.get('stamps') else STAMP_OFF + 0x10000)
    srd(a, sX, 44, X_BYTES)
    if cfg.get('stamps'):
        cfg['stamp_srd'] = sWS
        a.I(f's_lshl_b32 s62, s2, 6')
        a.I(f's_add_u32 s62, s62, {STAMP_OFF:#x}')
        a.I('s_cmp_eq_u32 s4, 0')
        a.I('s_cbranch_scc0 K1_ST0')
        stamp(a, cfg, 0, 62, 64, 38)
        a.L('K1_ST0')
    a.I(f'v_mov_b32 v{vPrepAddr}, 0x7ffffff0')
    a.I('s_cmp_eq_u32 s4, 9')
    a.I('s_cbranch_scc1 K1_PA')
    a.I('s_cmp_eq_u32 s4, 8')
    a.I('s_cbranch_scc0 K1_PDONE')
    a.I('s_cmp_lt_u32 s2, 32')
    a.I('s_cbranch_scc1 K1_PB')
    a.I('s_cmp_eq_u32 s2, 32')
    a.I('s_cbranch_scc0 K1_PDONE')
    srd(a, sPREP, 56, 128)
    a.I(f'v_and_b32 v{vTmp}, 3, v{vLane}')
    a.I(f'v_lshlrev_b32 v{vTmp}, 4, v{vTmp}')
    a.I(f'v_and_b32 v{vT2}, 12, v{vLane}')
    a.I(f'v_add_u32 v{vTmp}, v{vTmp}, v{vT2}')
    a.I(f'v_lshrrev_b32 v{vT2}, 4, v{vLane}')
    a.I(f'v_add_lshl_u32 v{vTmp}, v{vTmp}, v{vT2}, 1')
    a.I(f'buffer_load_ushort v{vPrep}, v{vTmp}, s[{sPREP}:{sPREP+3}], 0 offen')
    a.I(f'v_lshlrev_b32 v{vPrepAddr}, 2, v{vLane}')
    a.I(f'v_add_u32 v{vPrepAddr}, {CGW_OFF:#x}, v{vPrepAddr}')
    a.I('s_branch K1_PDONE')
    a.L('K1_PB')
    srd(a, sPREP, 54, 16 * 128 * 2)
    a.I('s_lshl_b32 s5, s2, 6')
    a.I(f'v_add_u32 v{vPrepAddr}, s5, v{vLane}')
    a.I(f'v_lshrrev_b32 v{vTmp}, 3, v{vPrepAddr}')
    a.I(f'v_bfe_u32 v{vT2}, v{vTmp}, 5, 1')
    a.I(f'v_lshlrev_b32 v{vT2}, 3, v{vT2}')
    a.I(f'v_and_b32 v{vPf}, 7, v{vPrepAddr}')
    a.I(f'v_add_u32 v{vT2}, v{vT2}, v{vPf}')
    a.I(f'v_lshlrev_b32 v{vT2}, 7, v{vT2}')
    a.I(f'v_and_b32 v{vPf}, 31, v{vTmp}')
    a.I(f'v_lshl_add_u32 v{vT2}, v{vPf}, 1, v{vT2}')
    a.I(f'v_bfe_u32 v{vPf}, v{vTmp}, 6, 1')
    a.I(f'v_lshl_add_u32 v{vT2}, v{vPf}, 6, v{vT2}')
    a.I(f'v_bfe_u32 v{vPf}, v{vTmp}, 7, 1')
    a.I(f'v_add_lshl_u32 v{vT2}, v{vT2}, v{vPf}, 1')
    a.I(f'buffer_load_ushort v{vPrep}, v{vT2}, s[{sPREP}:{sPREP+3}], 0 offen')
    a.I(f'v_lshlrev_b32 v{vPrepAddr}, 1, v{vPrepAddr}')
    a.I(f'v_add_u32 v{vPrepAddr}, {BRAD_OFF:#x}, v{vPrepAddr}')
    a.I('s_branch K1_PDONE')
    a.L('K1_PA')
    srd(a, sPREP, 58, 128 * 128 * 2)
    a.I('s_lshl_b32 s5, s2, 6')
    a.I(f'v_add_u32 v{vPrepAddr}, s5, v{vLane}')
    a.I(f'v_lshrrev_b32 v{vTmp}, 3, v{vPrepAddr}')
    a.I(f'v_bfe_u32 v{vT2}, v{vTmp}, 6, 2')
    a.I(f'v_lshlrev_b32 v{vT2}, 5, v{vT2}')
    a.I(f'v_bfe_u32 v{vPf}, v{vTmp}, 4, 2')
    a.I(f'v_lshl_add_u32 v{vT2}, v{vPf}, 3, v{vT2}')
    a.I(f'v_and_b32 v{vPf}, 7, v{vPrepAddr}')
    a.I(f'v_add_u32 v{vT2}, v{vT2}, v{vPf}')
    a.I(f'v_lshlrev_b32 v{vT2}, 7, v{vT2}')
    a.I(f'v_and_b32 v{vPf}, 15, v{vTmp}')
    a.I(f'v_lshl_add_u32 v{vT2}, v{vPf}, 1, v{vT2}')
    a.I(f'v_lshrrev_b32 v{vPf}, 9, v{vTmp}')
    a.I(f'v_lshl_add_u32 v{vT2}, v{vPf}, 5, v{vT2}')
    a.I(f'v_bfe_u32 v{vPf}, v{vTmp}, 8, 1')
    a.I(f'v_add_lshl_u32 v{vT2}, v{vT2}, v{vPf}, 1')
    a.I(f'buffer_load_ushort v{vPrep}, v{vT2}, s[{sPREP}:{sPREP+3}], 0 offen')
    a.I(f'v_lshlrev_b32 v{vPrepAddr}, 1, v{vPrepAddr}')
    a.I(f'v_add_u32 v{vPrepAddr}, {BMIX_OFF:#x}, v{vPrepAddr}')
    a.L('K1_PDONE')
    ld = cfg.get('k1ld', '')
    a.I(f'v_lshlrev_b32 v{vOff}, 2, v{vE}')
    a.I(f'buffer_load_dword v{vDst}, v{vOff}, s[{sDST}:{sDST+3}], 0 offen' + ld)
    a.I(f'buffer_load_dword v{vSrc}, v{vOff}, s[{sSRC}:{sSRC+3}], 0 offen' + ld)
    a.I(f'v_lshlrev_b32 v{vOff}, 3, v{vE}')
    a.I(f'v_lshlrev_b32 v{vT2}, 5, v{vE}')
    a.I('s_waitcnt lgkmcnt(0)')
    a.I('s_barrier')
    if cfg.get('cpf', 1):
        a.I('s_cmp_lt_u32 s2, 16')
        a.I('s_cbranch_scc0 K1_NOCPF')
        a.I('s_cmp_ge_u32 s4, 8')
        a.I('s_cbranch_scc0 K1_NOCPF')
        a.I('s_getpc_b64 s[64:65]')
        a.L('K1_PC')
        a.I('s_add_u32 s64, s64, main_kernel-K1_PC')
        a.I('s_addc_u32 s65, s65, 0')
        a.I(f'v_and_b32 v{vPf}, 63, v0')
        a.I('s_sub_u32 s5, s4, 8')
        a.I('s_lshl_b32 s5, s5, 6')
        a.I(f'v_add_u32 v{vPf}, s5, v{vPf}')
        a.I(f'v_min_u32 v{vPf}, (K2_CODE_END-main_kernel)/128, v{vPf}')
        a.I(f'v_lshlrev_b32 v{vPf}, 7, v{vPf}')
        a.I(f'global_load_dword v{vPf+7}, v{vPf}, s[64:65]')
        a.L('K1_NOCPF')
    a.I(f'buffer_load_dwordx2 {vr(vRec,2)}, v{vOff}, s[{sY}:{sY+3}], 0 offen' + ld)
    a.I(f'buffer_load_dwordx4 {vr(vEF,4)}, v{vT2}, s[{sEF}:{sEF+3}], 0 offen' + ld)
    a.I(f'buffer_load_dwordx4 {vr(vEF+4,4)}, v{vT2}, s[{sEF}:{sEF+3}], 0 offen offset:16' + ld)
    npf = 0
    if NPF > 0:
        a.I('s_lshr_b32 s5, s2, 3')
        a.I('s_lshl_b32 s63, s4, 5')
        a.I('s_add_u32 s5, s5, s63')
        a.I('s_lshl_b32 s5, s5, 13')
        a.I(f's_cmp_lt_u32 s4, {NPF}')
        a.I(f's_cselect_b32 s5, s5, 0x7ff00000')
        a.I(f'v_lshlrev_b32 v{vPf}, 7, v{vLane}')
        a.I(f'v_add_u32 v{vPf}, s5, v{vPf}')
        a.I(f'buffer_load_dword v{vPf}, v{vPf}, s[{sX}:{sX+3}], 0 offen')
        npf = 1
    a.I(f'v_cmp_gt_u32 vcc, {CHUNK}, v0')
    a.I('s_and_saveexec_b64 s[6:7], vcc')
    a.I(f's_waitcnt vmcnt({4+npf})')
    if cfg.get('dbgprint'):
        a.I('s_memrealtime s[76:77]')
    if cfg.get('stamps'):
        a.I('s_cmp_eq_u32 s4, 0')
        a.I('s_cbranch_scc0 K1_ST2')
        a.I('s_memrealtime s[66:67]')
        a.L('K1_ST2')
    a.I(f'v_and_b32 v{vKey}, 7, v{vDst}')
    a.I(f'v_bfe_u32 v{vTmp}, v{vDst}, 3, 5')
    a.I(f'v_lshl_or_b32 v{vKey}, v{vKey}, 5, v{vTmp}')
    a.I(f'v_lshlrev_b32 v{vKey}, 2, v{vKey}')
    a.I(f'ds_add_rtn_u32 v{vRank}, v{vKey}, v{vOne}')
    a.I('s_mov_b64 exec, s[6:7]')
    a.I('s_waitcnt lgkmcnt(0)')
    a.I('s_barrier')
    hist_prefix(a, vC, vS, vTot, vL16, 0, 1024)
    for i in range(4):
        a.I(f'v_lshl_or_b32 v{vC+i}, v{vC+i}, 16, v{vS+i}')
    a.I('s_cmp_lt_u32 s4, 4')
    a.I('s_cbranch_scc0 K1_NTAB')
    a.I(f'v_lshl_add_u32 v{vT2}, v{vLane}, 2, s4')
    a.I(f'v_lshrrev_b32 v{vTmp}, 5, v{vT2}')
    a.I(f'v_and_b32 v{vT2}, 31, v{vT2}')
    a.I(f'v_lshlrev_b32 v{vTmp}, 15, v{vTmp}')
    a.I(f'v_lshl_add_u32 v{vTmp}, v{vT2}, 7, v{vTmp}')
    a.I('s_and_b32 s5, s2, 7')
    a.I('s_lshl_b32 s5, s5, 12')
    a.I('s_lshr_b32 s63, s2, 3')
    a.I('s_lshl_b32 s63, s63, 2')
    a.I('s_add_u32 s5, s5, s63')
    a.I(f's_add_u32 s5, s5, {TAB_OFF:#x}')
    a.I(f'v_mov_b32 v{vT2}, v{vC}')
    for i in range(1, 4):
        a.I(f's_cmp_eq_u32 s4, {i}')
        a.I(f's_cbranch_scc0 K1_TW{i}')
        a.I(f'v_mov_b32 v{vT2}, v{vC+i}')
        a.L(f'K1_TW{i}')
    a.I(f'buffer_store_dword v{vT2}, v{vTmp}, s[{sWS}:{sWS+3}], s5 offen')
    a.L('K1_NTAB')
    a.I(f'v_cmp_gt_u32 vcc, {CHUNK}, v0')
    a.I('s_waitcnt lgkmcnt(0)')
    a.I('s_and_saveexec_b64 s[6:7], vcc')
    a.I(f'ds_read_b32 v{vTmp}, v{vKey} offset:1024')
    a.I(f's_mul_i32 s5, s2, {CHUNK}')
    a.I(f'v_lshrrev_b32 v{vT2}, 8, v{vDst}')
    a.I(f's_waitcnt vmcnt({npf})' if False else 's_nop 0')
    a.I('s_cmp_lt_u32 s4, 4')
    a.I('s_cbranch_scc1 K1_W1')
    a.I(f's_waitcnt vmcnt({npf})')
    a.I('s_branch K1_W2')
    a.L('K1_W1')
    a.I(f's_waitcnt vmcnt({npf+1})')
    a.L('K1_W2')
    if cfg.get('dbgprint'):
        a.I('s_memrealtime s[78:79]')
    if cfg.get('stamps'):
        a.I('s_cmp_eq_u32 s4, 0')
        a.I('s_cbranch_scc0 K1_ST3')
        a.I('s_memrealtime s[68:69]')
        a.L('K1_ST3')
    a.I(f'v_lshl_or_b32 v{vRec+2}, v{vT2}, 14, v{vSrc}')
    a.I(f'v_mov_b32 v{vRec+3}, v{vE}')
    a.I('s_waitcnt lgkmcnt(0)')
    a.I(f'v_add_u32 v{vTmp}, v{vTmp}, v{vRank}')
    st = cfg.get('k1st', '')
    STG = 2048
    a.I(f'v_lshlrev_b32 v{vT2}, 4, v{vTmp}')
    a.I(f'v_lshlrev_b32 v{vTmp}, 5, v{vTmp}')
    a.I(f'ds_write_b128 v{vT2}, {vr(vRec,4)} offset:{STG}')
    a.I(f'ds_write_b128 v{vTmp}, {vr(vEF,4)} offset:{STG+CHUNK*16}')
    a.I(f'ds_write_b128 v{vTmp}, {vr(vEF+4,4)} offset:{STG+CHUNK*16+16}')
    a.I('s_mov_b64 exec, s[6:7]')
    a.I(f'v_lshlrev_b32 v{vTmp}, 4, v0')
    a.I(f's_mul_i32 s5, s2, {CHUNK*16}')
    a.I(f's_add_u32 s5, s5, {RECA_OFF:#x}')
    a.I(f's_mul_i32 s63, s2, {CHUNK*32}')
    a.I(f's_add_u32 s63, s63, {RECF_OFF - CHUNK*16:#x}')
    a.I(f'v_mov_b32 v{vT2}, s63')
    a.I(f'v_mov_b32 v{vKey}, s5')
    a.I(f'v_cmp_gt_u32 vcc, {CHUNK}, v0')
    a.I(f'v_cndmask_b32 v{vKey}, v{vT2}, v{vKey}, vcc')
    a.I(f'v_add_u32 v{vKey}, v{vKey}, v{vTmp}')
    a.I(f'v_add_u32 v{vT2}, v{vT2}, v{vTmp}')
    a.I(f'v_add_u32 v{vOff}, {1280*16}, v{vT2}')
    a.I(f'v_add_u32 v{vT2}, {640*16}, v{vT2}')
    a.I(f'v_cmp_gt_u32 vcc, {CHUNK*3-1280}, v0')
    a.I(f'v_mov_b32 v{vRank}, 0x7ff00000')
    a.I(f'v_cndmask_b32 v{vOff}, v{vRank}, v{vOff}, vcc')
    a.I('s_waitcnt lgkmcnt(0)')
    a.I('s_barrier')
    a.I(f'ds_read_b128 {vr(vRec,4)}, v{vTmp} offset:{STG}')
    a.I(f'ds_read_b128 {vr(vEF,4)}, v{vTmp} offset:{STG+640*16}')
    a.I(f'ds_read_b128 {vr(vEF+4,4)}, v{vTmp} offset:{STG+1280*16}')
    a.I('s_waitcnt lgkmcnt(2)')
    if not cfg.get('k1nost'):
        a.I(f'buffer_store_dwordx4 {vr(vRec,4)}, v{vKey}, s[{sWS}:{sWS+3}], 0 offen' + st)
    a.I('s_waitcnt lgkmcnt(1)')
    if not cfg.get('k1nost'):
        a.I(f'buffer_store_dwordx4 {vr(vEF,4)}, v{vT2}, s[{sWS}:{sWS+3}], 0 offen' + st)
    a.I('s_waitcnt lgkmcnt(0)')
    if not cfg.get('k1nost'):
        a.I(f'buffer_store_dwordx4 {vr(vEF+4,4)}, v{vOff}, s[{sWS}:{sWS+3}], 0 offen' + st)
    a.I('s_cmp_eq_u32 s4, 0')
    a.I('s_cbranch_scc0 K1_NT')
    if cfg.get('stamps'):
        stamp(a, cfg, 1, 62, 64, 38)
        a.I('v_mov_b32 v38, s66')
        a.I(f'buffer_store_dword v38, v39, s[{sWS}:{sWS+3}], 0 offen offset:8')
        a.I('v_mov_b32 v40, s68')
        a.I(f'buffer_store_dword v40, v39, s[{sWS}:{sWS+3}], 0 offen offset:12')
    a.L('K1_NT')
    if cfg.get('stamps'):
        a.I('s_memrealtime s[70:71]')
        a.I('s_lshl_b32 s5, s4, 2')
        a.I('s_add_u32 s5, s5, s62')
        a.I('s_waitcnt lgkmcnt(0)')
        a.I('v_mov_b32 v41, s70')
        a.I('v_mov_b32 v42, s5')
        a.I(f'buffer_store_dword v41, v42, s[{sWS}:{sWS+3}], 0 offen offset:16')
        if cfg.get('k1wait'):
            a.I('s_waitcnt vmcnt(0)')
            a.I('s_memrealtime s[70:71]')
            a.I('s_waitcnt lgkmcnt(0)')
            a.I('v_mov_b32 v41, s70')
            a.I(f'buffer_store_dword v41, v42, s[{sWS}:{sWS+3}], 0 offen offset:16')
    if cfg.get('dbgprint'):
        a.I('s_memrealtime s[80:81]')
        a.I('s_waitcnt lgkmcnt(0)')
        a.I('s_and_b32 s5, s2, 63')
        a.I('s_cmp_eq_u32 s5, 0')
        a.I('s_cbranch_scc0 K1_DBGSKIP')
        a.I('s_cmp_eq_u32 s4, 9')
        a.I('s_cbranch_scc0 K1_DBGSKIP')
        a.I('s_mov_b32 s84, s72')
        a.I('s_and_b32 s85, s73, 0xffff')
        a.I('s_mov_b32 s86, 256')
        a.I('s_mov_b32 s87, 0x20000')
        a.I('s_lshr_b32 s5, s2, 6')
        a.I('s_lshl_b32 s5, s5, 4')
        a.I('v_mov_b32 v42, s5')
        for i, r in enumerate((76, 78, 80)):
            a.I(f's_sub_u32 s5, s{r}, s74')
            a.I('v_mov_b32 v41, s5')
            a.I(f'buffer_store_dword v41, v42, s[84:87], 0 offen offset:{4*i}')
        a.L('K1_DBGSKIP')
    a.I('s_cmp_eq_u32 s4, 9')
    a.I('s_cbranch_scc1 K1_PS16')
    a.I('s_cmp_eq_u32 s4, 8')
    a.I('s_cbranch_scc0 K1_END')
    a.I('s_cmp_lt_u32 s2, 32')
    a.I('s_cbranch_scc1 K1_PSR')
    a.I('s_cmp_eq_u32 s2, 32')
    a.I('s_cbranch_scc0 K1_END')
    a.I(f'v_lshlrev_b32 v{vPrep}, 16, v{vPrep}')
    if scaled:
        a.I(f'v_mul_f32 v{vPrep}, {f2u(-LN2):#x}, v{vPrep}')
    a.I(f'buffer_store_dword v{vPrep}, v{vPrepAddr}, s[{sWS}:{sWS+3}], 0 offen')
    a.I('s_branch K1_END')
    a.L('K1_PSR')
    if scaled:
        a.I(f'v_lshlrev_b32 v{vPrep}, 16, v{vPrep}')
        a.I(f'v_mul_f32 v{vPrep}, {f2u(-LOG2E):#x}, v{vPrep}')
        a.I(f'v_cvt_pk_bf16_f32 v{vPrep}, v{vPrep}, v{vPrep}')
    a.L('K1_PS16')
    a.I(f'buffer_store_short v{vPrep}, v{vPrepAddr}, s[{sWS}:{sWS+3}], 0 offen')
    a.L('K1_END')
    a.I('s_endpgm')
    return name, 44, (96 if cfg.get('dbgprint') else 72)


def kd(a, name, nv, ns):
    a(f""".amdhsa_kernel {name}
  .amdhsa_next_free_vgpr {nv}
  .amdhsa_next_free_sgpr {ns}
  .amdhsa_accum_offset {(nv + 3) // 4 * 4}
  .amdhsa_group_segment_fixed_size 0
  .amdhsa_kernarg_size 88
  .amdhsa_user_sgpr_count 2
  .amdhsa_user_sgpr_kernarg_segment_ptr 1
  .amdhsa_system_sgpr_workgroup_id_x 1
  .amdhsa_float_denorm_mode_32 3
.end_amdhsa_kernel""")


HIST = 0
BASE = 1024
MAXR = 2048
ZERO16 = 2064
DEG = 2304
RNK = 2560
PROG = 2816
PATTERN = [0,1,2,3,4,5,6,0,7,6,5,4,0,3,7,2,7,4,5,6,1,3,2,1,4,5,3,0,7,6,2,1,7,1,2,6,3,5,4,0]
WL = 4096
CAP = 1024
ENT = 8192
YS = 12800
EFS = 21248
AGG = 55040
AGG_STRIDE = 272
CST = AGG + 160 * AGG_STRIDE
K2_LDS = CST + 6 * 1024


def gen_k2(a, cfg):
    name = 'main_kernel'
    scaled = cfg.get('scaled', False)
    NPF1 = cfg.get('npf1', 0)
    NPF2 = cfg.get('npf2', 0)
    a(f'.globl {name}\n.p2align 8\n.type {name},@function\n{name}:')
    sX, sWS, sOUT = 8, 12, 16
    sW, sB, sKEY, sNW, sRND, sMAXR = 4, 5, 6, 7, 20, 21
    sSEG0, sN, sCNT, sXO, sREM = 22, 23, 24, 25, 26
    sT0, sT1, sT2 = 27, 28, 29
    sMLO, sMHI = 30, 32
    sCL = 34
    sSAVE = 36
    sV0, sV1 = 38, 40
    sE = 48
    sNODE = 68
    sDBG = 64
    sVF = (42, 44, 46, 36)
    sBMF = 65
    vLane, vL16, vL15 = 1, 2, 3
    vTmp = 4
    vEntA, vYA, vEfA = 12, 13, 14
    vAL_A, vAH_A = 15, 16
    vENTc, vENTn = 17, 18
    vDummy = 19
    vProgA, vProgB, vProgP = 60, 61, 62
    vPat, vNodePat = 50, 51
    vWc, vWn = 20, 22
    vYraw = 24
    vYf = 26
    vWf = 30
    vHS = 34
    vT = 38
    vR = 42
    vAL, vAH = 52, 56
    vACC = 64
    D = cfg.get('D', 8)
    vXR = 104
    def xrs(k):
        return vXR + 4*k if k < 4 else 232 + 4*(k - 4)
    vTP = 120
    vH0, vH1 = 136, 152
    vBR = 168
    vCG = 184
    vBM = 200
    NV = 232 if D <= 4 else 248
    vRecA, vRecB = 200, 204
    vF = 208
    vFo = 224
    vP = 136

    def bm_loads():
        a.I(f's_and_b32 s{sT0}, s{sW}, 3')
        a.I(f's_lshl_b32 s{sT0}, s{sT0}, 13')
        a.I(f's_add_u32 s{sT0}, s{sT0}, {BMIX_OFF:#x}')
        a.I(f's_add_u32 s{sT1}, s{sT0}, 4096')
        for t in range(2):
            for ks in range(4):
                a.I(f'buffer_load_dwordx4 {vr(vBM+16*t+4*ks,4)}, v{vL16}, s[{sWS}:{sWS+3}], s{sT0 if t == 0 else sT1} offen offset:{1024*ks}')

    a.I('s_cmp_ge_u32 s2, 256')
    a.I('s_cbranch_scc1 K2_END')
    a.I('s_load_dwordx2 s[42:43], s[0:1], 80')
    a.I('s_load_dwordx2 s[44:45], s[0:1], 0')
    a.I('s_load_dwordx2 s[46:47], s[0:1], 64')
    vChunk, vTab, vInc, vCst = vP, vP+1, vP+3, vP+4
    a.I(f'v_lshrrev_b32 v{vTmp}, 6, v0')
    a.I(f'v_and_b32 v{vLane}, 63, v0')
    a.I(f'v_readfirstlane_b32 s{sW}, v{vTmp}')
    a.I(f'v_lshlrev_b32 v{vL16}, 4, v{vLane}')
    a.I(f'v_and_b32 v{vL15}, 15, v{vLane}')
    a.I(f's_mov_b32 s{sB}, s2')
    a.I(f's_and_b32 s{sKEY}, s2, 7')
    a.I(f's_lshl_b32 s{sKEY}, s{sKEY}, 5')
    a.I(f's_lshr_b32 s{sT0}, s2, 3')
    a.I(f's_or_b32 s{sKEY}, s{sKEY}, s{sT0}')
    a.I(f'v_and_b32 v{vChunk}, 31, v{vLane}')
    a.I(f's_lshl_b32 s{sT0}, s{sW}, 5')
    a.I(f'v_add_u32 v{vChunk}, s{sT0}, v{vChunk}')
    a.I(f'v_and_b32 v{vTmp}, 7, v{vChunk}')
    a.I(f'v_lshlrev_b32 v{vTmp}, 12, v{vTmp}')
    a.I(f'v_lshrrev_b32 v{vTmp+1}, 3, v{vChunk}')
    a.I(f'v_lshl_add_u32 v{vTmp}, v{vTmp+1}, 2, v{vTmp}')
    a.I(f's_and_b32 s{sT0}, s2, 7')
    a.I(f's_lshl_b32 s{sT0}, s{sT0}, 15')
    a.I(f's_lshr_b32 s{sT1}, s2, 3')
    a.I(f's_lshl_b32 s{sT1}, s{sT1}, 7')
    a.I(f's_add_u32 s{sT0}, s{sT0}, s{sT1}')
    a.I(f's_add_u32 s{sT0}, s{sT0}, {TAB_OFF:#x}')
    a.I(f's_lshl_b32 s{sT1}, s{sW}, 10')
    a.I(f's_add_u32 s{sT1}, s{sT1}, {BRAD_OFF:#x}')
    a.I(f's_cmp_lt_u32 s{sW}, 5')
    a.I(f's_cselect_b32 s{sT1}, s{sT1}, 0x7ff00000')
    a.I('s_waitcnt lgkmcnt(0)')
    if cfg.get('wsbase', 0):
        a.I(f's_add_u32 s42, s42, {cfg["wsbase"] << 20:#x}')
        a.I('s_addc_u32 s43, s43, 0')
    srd(a, sWS, 42, 0x6000000 if cfg.get('dumph') else (WS_SIZE if not cfg.get('stamps') else STAMP_OFF + 0x10000))
    a.I(f'buffer_load_dword v{vTab}, v{vTmp}, s[{sWS}:{sWS+3}], s{sT0} offen')
    a.I(f'buffer_load_dwordx4 {vr(vCst,4)}, v{vL16}, s[{sWS}:{sWS+3}], s{sT1} offen')
    if cfg.get('rwp', 0):
        a.I(f's_lshr_b32 s{sT0}, s{sB}, 3')
        a.I(f's_lshl_b32 s{sT0}, s{sT0}, 3')
        a.I(f's_add_u32 s{sT0}, s{sT0}, s{sW}')
        a.I(f's_mul_i32 s{sT0}, s{sT0}, 30000')
        a.I(f's_and_b32 s{sT1}, s{sB}, 7')
        a.I(f's_mul_i32 s{sT1}, s{sT1}, 3750')
        a.I(f's_add_u32 s{sT0}, s{sT0}, s{sT1}')
        a.I(f's_sub_i32 s{sT0}, s{sT0}, {cfg.get("rwpoff", 700)}')
        a.I(f's_max_i32 s{sT0}, s{sT0}, 0')
        a.I(f'v_lshlrev_b32 v{vTmp}, 7, v{vLane}')
        a.I(f'v_cmp_gt_u32 vcc, {cfg.get("rwplines", 42)}, v{vLane}')
        a.I(f'v_mov_b32 v{vTmp+1}, 0x7ff00000')
        a.I(f'v_cndmask_b32 v{vTmp}, v{vTmp+1}, v{vTmp}, vcc')
        a.I(f'buffer_load_dword v{vDummy}, v{vTmp}, s[{sWS}:{sWS+3}], s{sT0} offen')
    srd(a, sX, 44, X_BYTES)
    srd(a, sOUT, 46, X_BYTES)
    if cfg.get('stamps'):
        cfg['stamp_srd'] = sWS
        a.I(f's_lshl_b32 s{sDBG}, s2, 7')
        a.I(f's_add_u32 s{sDBG}, s{sDBG}, {STAMP_OFF + 0x8000:#x}')
    lstamp(a, cfg, 0, sW)
    a.I(f'v_mov_b32 v{vTmp+1}, 0')
    a.I(f'v_lshlrev_b32 v{vTmp+2}, 2, v0')
    a.I(f'v_and_b32 v{vTmp+3}, 0x400, v{vTmp+2}')
    a.I(f'v_add_u32 v{vTmp+2}, v{vTmp+2}, v{vTmp+3}')
    a.I(f'ds_write_b32 v{vTmp+2}, v{vTmp+1}')
    a.I(f'v_mov_b32 v{vPat}, 63')
    cnt = [0]*8
    for r, w in enumerate(PATTERN):
        a.I(f'v_writelane_b32 v{vPat}, {w | (cnt[w] << 3)}, {r}')
        cnt[w] += 1
    for i in range(40):
        a.I(f'v_mov_b32 v{vACC+i}, 0')
    a.I(f's_mov_b32 s{sMLO}, 0x0f0f0f0f')
    a.I(f's_mov_b32 s{sMLO+1}, 0x0f0f0f0f')
    a.I(f's_mov_b32 s{sMHI}, 0xf0f0f0f0')
    a.I(f's_mov_b32 s{sMHI+1}, 0xf0f0f0f0')
    a.I(f's_mov_b32 s{sCL}, {f2u(-LOG2E):#x}')
    a.I(f's_mov_b32 s{sCL+1}, {f2u(-LOG2E):#x}')
    a.I(f's_mov_b32 s{sRND}, 0')
    a.I(f's_mov_b32 s{sBMF}, 0')
    a.I('s_waitcnt lgkmcnt(0)')
    a.I('s_barrier')
    a.I('s_waitcnt vmcnt(%d)' % (1 if cfg.get('rwp', 0) else 0))
    lstamp(a, cfg, 1, sW)
    vCntP, vExcP, vRbP = vTmp+1, vTmp+2, vTmp+3
    a.I(f'v_lshrrev_b32 v{vInc}, 16, v{vTab}')
    a.I(f'v_lshl_add_u32 v{vTmp}, v{vLane}, 4, s{sW}' if False else f'v_mov_b32 v{vTmp+4}, {CHUNK}')
    a.I(f'v_and_b32 v{vRbP}, 0xffff, v{vTab}')
    a.I(f'v_mov_b32 v{vCntP}, v{vInc}')
    a.I(f'v_mad_u32_u24 v{vRbP}, v{vChunk}, v{vTmp+4}, v{vRbP}')
    a.I(f's_min_u32 s{sT1}, s{sW}, 5')
    a.I(f's_lshl_b32 s{sT1}, s{sT1}, 10')
    a.I(f's_add_u32 s{sT1}, s{sT1}, {CST}')
    a.I(f'v_add_u32 v{vTmp}, s{sT1}, v{vL16}')
    a.I(f'ds_write_b128 v{vTmp}, {vr(vCst,4)}')
    scan_dpp(a, vInc, False)
    a.I('s_nop 0')
    a.I(f'v_sub_u32 v{vExcP}, v{vInc}, v{vCntP}')
    a.I(f'v_readlane_b32 s{sNW}, v{vInc}, 31')
    a.I(f'v_mov_b32 v{vTmp+4}, {MAXR}')
    a.I('s_nop 2')
    a.I(f's_add_u32 s{sT0}, s{sNW}, 127')
    a.I(f's_lshr_b32 s{sT0}, s{sT0}, 7')
    a.I(f'v_mov_b32 v{vTmp}, s{sT0}')
    a.I(f'ds_max_u32 v{vTmp+4}, v{vTmp}')
    a.L('K2_ROUND')
    vK, vHi, vAd, vVal = vP, vP+1, vP+2, vP+3
    a.I(f's_lshl_b32 s{sT0}, s{sRND}, 7')
    a.I(f's_lshl_b32 s{sT1}, s{sW}, 9')
    a.I(f'v_sub_u32 v{vK}, s{sT0}, v{vExcP}')
    a.I(f's_add_u32 s{sT1}, s{sT1}, {WL}')
    a.I(f'v_add_u32 v{vHi}, 128, v{vK}')
    a.I(f'v_max_i32 v{vAd}, 0, v{vK}')
    a.I(f'v_lshrrev_b32 v{vTmp}, 5, v{vLane}')
    a.I(f'v_min_i32 v{vHi}, v{vHi}, v{vCntP}')
    a.I(f'v_add_u32 v{vAd}, v{vAd}, v{vTmp}')
    a.I(f'v_add_u32 v{vVal}, v{vRbP}, v{vAd}')
    a.I(f'v_sub_u32 v{vHi}, v{vHi}, v{vAd}')
    a.I(f'v_sub_u32 v{vAd}, v{vAd}, v{vK}')
    a.I(f'v_lshl_add_u32 v{vAd}, v{vAd}, 2, s{sT1}')
    a.L('K2_EXP')
    a.I(f'v_cmp_lt_i32 vcc, 0, v{vHi}')
    a.I('s_and_b64 exec, exec, vcc')
    a.I('s_cbranch_scc0 K2_EXPD')
    a.I(f'ds_write_b32 v{vAd}, v{vVal}')
    a.I(f'v_add_u32 v{vHi}, -2, v{vHi}')
    a.I(f'v_add_u32 v{vVal}, 2, v{vVal}')
    a.I(f'v_add_u32 v{vAd}, 8, v{vAd}')
    a.I('s_branch K2_EXP')
    a.L('K2_EXPD')
    a.I('s_mov_b64 exec, -1')
    a.I(f'v_lshl_add_u32 v{vTmp}, v{vLane}, 2, s{sT1}')
    a.I(f's_sub_i32 s{sT2}, s{sNW}, s{sT0}')
    a.I(f'ds_read_b32 v{vP}, v{vTmp}')
    a.I(f'ds_read_b32 v{vP+1}, v{vTmp} offset:256')
    a.I(f'v_cmp_gt_i32 s[{sV0}:{sV0+1}], s{sT2}, v{vLane}')
    a.I(f'v_add_u32 v{vTmp}, 64, v{vLane}')
    a.I(f'v_cmp_gt_i32 s[{sV1}:{sV1+1}], s{sT2}, v{vTmp}')
    a.I(f'v_mov_b32 v{vTmp}, 0x7ffffff0')
    a.I('s_waitcnt lgkmcnt(0)')
    a.I(f'v_lshlrev_b32 v{vP}, 4, v{vP}')
    a.I(f'v_lshlrev_b32 v{vP+1}, 4, v{vP+1}')
    a.I(f'v_cndmask_b32 v{vP}, v{vTmp}, v{vP}, s[{sV0}:{sV0+1}]')
    a.I(f'v_cndmask_b32 v{vP+1}, v{vTmp}, v{vP+1}, s[{sV1}:{sV1+1}]')
    lstamp(a, cfg, 2, sW)
    for rec, vo in ((vRecA, vP), (vRecB, vP+1)):
        a.I(f'buffer_load_dwordx4 {vr(rec,4)}, v{vo}, s[{sWS}:{sWS+3}], 0 offen')
    a.I(f'v_lshrrev_b32 v{vTmp+4}, 1, v{vLane}')
    a.I(f'v_lshl_add_u32 v{vTmp}, v{vTmp+4}, 2, s{sT1}')
    for i in range(4):
        a.I(f'ds_read_b32 v{vFo+i}, v{vTmp} offset:{128*i}')
    a.I(f'v_and_b32 v{vTmp+5}, 1, v{vLane}')
    a.I(f'v_lshlrev_b32 v{vTmp+5}, 4, v{vTmp+5}')
    a.I(f'v_add_u32 v{vTmp+5}, {RECF_OFF:#x}, v{vTmp+5}')
    for i in range(4):
        a.I(f'v_add_u32 v{vTmp}, {32*i}, v{vTmp+4}')
        a.I(f'v_cmp_gt_i32 s[{sVF[i]}:{sVF[i]+1}], s{sT2}, v{vTmp}')
    a.I(f'v_mov_b32 v{vTmp}, 0x7ffffff0')
    a.I('s_waitcnt lgkmcnt(0)')
    for i in range(4):
        a.I(f'v_lshl_add_u32 v{vFo+i}, v{vFo+i}, 5, v{vTmp+5}')
        a.I(f'v_cndmask_b32 v{vFo+i}, v{vTmp}, v{vFo+i}, s[{sVF[i]}:{sVF[i]+1}]')
    vOne = vP+2
    a.I(f'v_mov_b32 v{vOne}, 1')
    a.I(f'v_lshlrev_b32 v{vP+10}, 2, v{vLane}')
    a.I('s_waitcnt vmcnt(0)')
    lstamp(a, cfg, 3, sW)
    vBin = (vP+4, vP+5); vEnt = (vP+6, vP+7); vRank = (vP+8, vP+9); vDl = (vP+22, vP+23)
    for i, rec in enumerate((vRecA, vRecB)):
        a.I(f'v_bfe_u32 v{vDl[i]}, v{rec+2}, 14, 6')
        a.I(f'v_lshlrev_b32 v{vDl[i]}, 2, v{vDl[i]}')
    def ef_loads():
        for i in range(4):
            a.I(f'buffer_load_dwordx4 {vr(vF+4*i,4)}, v{vFo+i}, s[{sWS}:{sWS+3}], 0 offen')
    a.I(f's_cmp_eq_u32 s{sRND}, 0')
    a.I('s_cbranch_scc1 K2_R0')
    ef_loads()
    a.I('s_branch K2_OWNED')
    a.L('K2_R0')
    for i, m in enumerate((sV0, sV1)):
        a.I(f's_mov_b64 exec, s[{m}:{m+1}]')
        a.I(f's_cbranch_execz K2_D{i}')
        a.I(f'ds_add_u32 v{vDl[i]}, v{vOne} offset:{DEG}')
        a.L(f'K2_D{i}')
    a.I('s_mov_b64 exec, -1')
    a.I(f'v_sub_u32 v{vP+12}, 63, v{vLane}')
    a.I(f's_mul_i32 s{sT0}, s{sW}, 5')
    a.I(f'v_mov_b32 v{vP+13}, 0')
    a.I('s_waitcnt lgkmcnt(0)')
    a.I('s_barrier')
    lstamp(a, cfg, 4, sW)
    ef_loads()
    if NPF2 > 0:
        a.I(f's_lshr_b32 s{sT1}, s{sB}, 3')
        a.I(f's_add_u32 s{sT2}, s{sW}, {NPF1}')
        a.I(f's_lshl_b32 s{sT2}, s{sT2}, 5')
        a.I(f's_add_u32 s{sT1}, s{sT1}, s{sT2}')
        a.I(f's_lshl_b32 s{sT1}, s{sT1}, 13')
        a.I(f's_cmp_lt_u32 s{sW}, {NPF2}')
        a.I(f's_cselect_b32 s{sT1}, s{sT1}, 0x7ff00000')
        a.I(f'v_lshlrev_b32 v{vTmp}, 7, v{vLane}')
        a.I(f'v_add_u32 v{vTmp}, s{sT1}, v{vTmp}')
        a.I(f'buffer_load_dword v{vDummy}, v{vTmp}, s[{sX}:{sX+3}], 0 offen')
    a.I(f'ds_read_b32 v{vP+11}, v{vP+10} offset:{DEG}')
    for i, rec in enumerate((vRecA, vRecB)):
        a.I(f'v_and_b32 v{vBin[i]}, 0x3fff, v{rec+2}')
    a.I('s_waitcnt lgkmcnt(0)')
    a.I(f'v_lshl_add_u32 v{vP+11}, v{vP+11}, 6, v{vP+12}')
    a.I('s_nop 0')
    for i in range(5):
        a.I(f'v_readlane_b32 s{sNODE+i}, v{vP+11}, s{sT0}')
        a.I(f's_add_u32 s{sT0}, s{sT0}, 1')
    a.I('s_nop 0')
    for i in range(5):
        a.I(f'v_cmp_gt_u32 vcc, s{sNODE+i}, v{vP+11}')
        a.I('s_nop 1')
        a.I(f'v_addc_co_u32 v{vP+13}, vcc, 0, v{vP+13}, vcc')
    a.I(f'ds_add_u32 v{vP+10}, v{vP+13} offset:{RNK}')
    a.I('s_waitcnt lgkmcnt(0)')
    a.I('s_barrier')
    a.I(f'ds_read_b32 v{vP+11}, v{vP+10} offset:{RNK}')
    a.I('s_waitcnt lgkmcnt(0)')
    a.I(f'v_lshlrev_b32 v{vP+11}, 2, v{vP+11}')
    a.I(f'ds_bpermute_b32 v{vNodePat}, v{vP+11}, v{vPat}')
    a.I('s_waitcnt lgkmcnt(0)')
    a.L('K2_OWNED')
    for i in range(2):
        a.I(f'ds_bpermute_b32 v{vP+24+i}, v{vDl[i]}, v{vNodePat}')
    for i, rec in enumerate((vRecA, vRecB)):
        a.I(f'v_and_b32 v{vBin[i]}, 0x3fff, v{rec+2}')
        a.I(f'v_mul_u32_u24 v{vP+10+i}, 838, v{vBin[i]}')
        a.I(f'v_lshlrev_b32 v{vEnt[i]}, 10, v{vBin[i]}')
        a.I(f'v_lshrrev_b32 v{vP+10+i}, 18, v{vP+10+i}')
    a.I('s_waitcnt lgkmcnt(0)')
    for i in range(2):
        a.I(f'v_and_b32 v{vTmp}, 7, v{vP+24+i}')
        a.I(f'v_lshl_add_u32 v{vP+10+i}, v{vTmp}, 5, v{vP+10+i}')
        a.I(f'v_lshlrev_b32 v{vBin[i]}, 2, v{vP+10+i}')
        a.I(f'v_and_b32 v{vTmp}, 0x38, v{vP+24+i}')
        a.I(f'v_or_b32 v{vEnt[i]}, v{vEnt[i]}, v{vTmp}')
    for i, m in enumerate((sV0, sV1)):
        a.I(f's_mov_b64 exec, s[{m}:{m+1}]')
        a.I(f's_cbranch_execz K2_H{i}')
        a.I(f'ds_add_rtn_u32 v{vRank[i]}, v{vBin[i]}, v{vOne} offset:{HIST}')
        a.L(f'K2_H{i}')
    a.I('s_mov_b64 exec, -1')
    for sl in range(5):
        a.I(f's_add_u32 s{sT0}, s{sW}, {sl << 3}')
        a.I(f'v_cmp_eq_u32 vcc, s{sT0}, v{vNodePat}')
        a.I(f's_ff1_i32_b64 s{sNODE+sl}, vcc')
        a.I(f's_mul_i32 s{sNODE+sl}, s{sNODE+sl}, {4*AGG_STRIDE}')
    a.I(f'v_mov_b32 v{vTmp}, {MAXR}')
    a.I('s_waitcnt lgkmcnt(0)')
    a.I('s_barrier')
    lstamp(a, cfg, 5, sW)
    vC, vS, vTot = vP+12, vP+16, vP+20
    a.I(f'ds_read_b32 v{vTmp+5}, v{vTmp}')
    hist_prefix(a, vC, vS, vTot, vL16, HIST, BASE)
    a.I(f'v_readfirstlane_b32 s{sMAXR}, v{vTmp+5}')
    a.I(f's_lshl_b32 s{sT0}, s{sW}, 3')
    a.I(f'v_readlane_b32 s{sSEG0}, v{vS}, s{sT0}')
    a.I(f's_add_u32 s{sT0}, s{sT0}, 8')
    a.I(f's_min_u32 s{sT0}, s{sT0}, 63')
    a.I(f'v_readlane_b32 s{sT1}, v{vS}, s{sT0}')
    a.I(f'v_readlane_b32 s{sT2}, v{vTot}, 63')
    a.I('s_waitcnt lgkmcnt(0)')
    a.I(f'ds_read_b32 v{vP+10}, v{vBin[0]} offset:{BASE}')
    a.I(f'ds_read_b32 v{vP+11}, v{vBin[1]} offset:{BASE}')
    a.I(f's_cmp_eq_u32 s{sW}, 7')
    a.I(f's_cselect_b32 s{sT1}, s{sT2}, s{sT1}')
    a.I(f's_sub_u32 s{sN}, s{sT1}, s{sSEG0}')
    a.I('s_waitcnt lgkmcnt(0)')
    for i in range(2):
        a.I(f'v_add_u32 v{vRank[i]}, v{vRank[i]}, v{vP+10+i}')
        a.I(f'v_lshlrev_b32 v{vP+10+i}, 2, v{vRank[i]}')
    for i, m in enumerate((sV0, sV1)):
        a.I(f's_mov_b64 exec, s[{m}:{m+1}]')
        a.I(f's_cbranch_execz K2_S{i}')
        a.I(f'ds_write_b32 v{vP+10+i}, v{vEnt[i]} offset:{ENT}')
        if cfg.get('dumph'):
            a.I(f's_lshl_b32 s{sT0}, s{sB}, 12')
            a.I(f's_add_u32 s{sT0}, s{sT0}, 0x1000000')
            a.I(f'buffer_store_dword v{(vRecA, vRecB)[i]+3}, v{vP+10+i}, s[{sWS}:{sWS+3}], s{sT0} offen')
            a.I(f's_add_u32 s{sT0}, s{sT0}, 0x100000')
            a.I(f'buffer_store_dword v{vEnt[i]}, v{vP+10+i}, s[{sWS}:{sWS+3}], s{sT0} offen')
        a.L(f'K2_S{i}')
    a.I('s_mov_b64 exec, -1')
    a.I(f'v_lshrrev_b32 v{vTmp+4}, 1, v{vLane}')
    a.I(f'v_lshlrev_b32 v{vTmp+4}, 2, v{vTmp+4}')
    a.I(f'v_add_u32 v{vTmp+5}, 128, v{vTmp+4}')
    a.I(f'ds_bpermute_b32 v{vP+24}, v{vTmp+4}, v{vRank[0]}')
    a.I(f'ds_bpermute_b32 v{vP+25}, v{vTmp+5}, v{vRank[0]}')
    a.I(f'ds_bpermute_b32 v{vP+26}, v{vTmp+4}, v{vRank[1]}')
    a.I(f'ds_bpermute_b32 v{vP+27}, v{vTmp+5}, v{vRank[1]}')
    a.I(f'v_add_u32 v{vEntA}, s{sSEG0}, v{vL15}')
    a.I(f'v_lshlrev_b32 v{vEntA}, 2, v{vEntA}')
    a.I(f'v_cmp_gt_i32 vcc, s{sN}, v{vL15}')
    a.I('s_waitcnt lgkmcnt(0)')
    a.I('s_barrier')
    lstamp(a, cfg, 6, sW)
    a.I(f'ds_read_b32 v{vENTc}, v{vEntA} offset:{ENT}')
    a.I(f'v_mov_b32 v{vTmp}, 0')
    a.I(f'v_lshlrev_b32 v{vTmp+4}, 2, v0')
    a.I(f's_cmp_lt_u32 s{sW}, 4')
    a.I('s_cbranch_scc0 K2_Z2')
    a.I(f'ds_write_b32 v{vTmp+4}, v{vTmp} offset:{HIST}')
    a.L('K2_Z2')
    a.I('s_waitcnt lgkmcnt(0)')
    a.I(f'v_cndmask_b32 v{vENTc}, 0, v{vENTc}, vcc')
    a.I('s_nop 0')
    for j in range(D + 1):
        a.I(f'v_readlane_b32 s{sE+j}, v{vENTc}, {j}')
    a.I('s_nop 3')
    D0 = min(D, 4)
    for j in range(D0):
        a.I(f's_and_b32 s{sXO}, s{sE+j}, 0xfffffc00')
        a.I(f'buffer_load_dwordx4 {vr(xrs(j),4)}, v{vL16}, s[{sX}:{sX+3}], s{sXO} offen' + cfg.get('xld', ''))
    a.I(f'v_and_b32 v{vTmp+5}, 1, v{vLane}')
    a.I(f'v_lshlrev_b32 v{vTmp+5}, 4, v{vTmp+5}')
    for i in range(4):
        a.I(f'v_lshl_add_u32 v{vFo+i}, v{vP+24+i}, 5, v{vTmp+5}')
    a.I(f's_waitcnt vmcnt({D0})')
    for i, (m, rec) in enumerate(((sV0, vRecA), (sV1, vRecB))):
        a.I(f's_mov_b64 exec, s[{m}:{m+1}]')
        a.I(f's_cbranch_execz K2_T{i}')
        a.I(f'v_lshlrev_b32 v{vTmp+4}, 3, v{vRank[i]}')
        a.I(f'ds_write_b64 v{vTmp+4}, {vr(rec,2)} offset:{YS}')
        a.L(f'K2_T{i}')
    for i in range(4):
        a.I(f's_mov_b64 exec, s[{sVF[i]}:{sVF[i]+1}]')
        a.I(f's_cbranch_execz K2_U{i}')
        a.I(f'ds_write_b128 v{vFo+i}, {vr(vF+4*i,4)} offset:{EFS}')
        a.L(f'K2_U{i}')
    a.I('s_mov_b64 exec, -1')
    a.I(f'v_add_u32 v{vTmp}, {CST}, v{vL16}')
    for q in range(4):
        a.I(f'ds_read_b128 {vr(vBR+4*q,4)}, v{vTmp} offset:{1024*q}')
    a.I(f'v_and_b32 v{vTmp+4}, 3, v{vLane}')
    a.I(f'v_lshlrev_b32 v{vTmp+4}, 6, v{vTmp+4}')
    a.I(f'v_add_u32 v{vTmp+4}, {CST+4096}, v{vTmp+4}')
    for q in range(4):
        a.I(f'ds_read_b128 {vr(vCG+4*q,4)}, v{vTmp+4} offset:{16*q}')

    def w_compute(dst):
        ops = []
        ops.append(f'v_lshlrev_b32 v{vYf}, 16, v{vYraw}')
        ops.append(f'v_and_b32 v{vYf+1}, 0xffff0000, v{vYraw}')
        ops.append(f'v_lshlrev_b32 v{vYf+2}, 16, v{vYraw+1}')
        ops.append(f'v_and_b32 v{vYf+3}, 0xffff0000, v{vYraw+1}')
        for f in range(4):
            yp = vYf + (f & 2)
            s = f & 1
            for h in range(2):
                cg = vCG + 4*f + 2*h
                if f == 0:
                    ops.append(f'v_pk_mul_f32 {vr(vWf+2*h,2)}, {vr(yp,2)}, {vr(cg,2)} op_sel:[{s},0] op_sel_hi:[{s},1]')
                else:
                    ops.append(f'v_pk_fma_f32 {vr(vWf+2*h,2)}, {vr(yp,2)}, {vr(cg,2)}, {vr(vWf+2*h,2)} op_sel:[{s},0,0] op_sel_hi:[{s},1,1]')
        ops.append(f'v_cvt_pk_bf16_f32 v{dst}, v{vWf}, v{vWf+1}')
        ops.append(f'v_cvt_pk_bf16_f32 v{dst+1}, v{vWf+2}, v{vWf+3}')
        return ops

    def h_mfma():
        ops = []
        for p, H in ((0, vH0), (1, vH1)):
            ops.append(f'v_mfma_f32_32x32x16_bf16 {vr(H,16)}, {vr(vAL,4)}, {vr(vBR+8*p,4)}, 0')
            ops.append(f'v_mfma_f32_32x32x16_bf16 {vr(H,16)}, {vr(vAH,4)}, {vr(vBR+8*p+4,4)}, {vr(H,16)}')
        return ops

    spread = cfg.get('hspread', 1)
    vHS1 = 10
    def hpair(q):
        if spread:
            if q == 6:
                return vHS, vH1 + 12
            if q == 7:
                return vHS + 2, vHS1
        elif q == 7:
            return vHS, vHS + 2
        qq = q % 8
        return vH0 + 2*qq, vH1 + 2*qq

    def z_ops(q):
        h0, h1 = hpair(q)
        if scaled:
            return []
        vZ = 8 if cfg.get('zsep') else vT
        return [f'v_pk_mul_f32 {vr(vZ,2)}, {vr(h0,2)}, s[{sCL}:{sCL+1}]',
                f'v_pk_mul_f32 {vr(vZ+2,2)}, {vr(h1,2)}, s[{sCL}:{sCL+1}]']

    def exp_ops(q):
        h0, h1 = hpair(q)
        if scaled:
            return [f'v_exp_f32 v{vT}, v{h0}', f'v_exp_f32 v{vT+1}, v{h0+1}',
                    f'v_exp_f32 v{vT+2}, v{h1}', f'v_exp_f32 v{vT+3}, v{h1+1}']
        vZ = 8 if cfg.get('zsep') else vT
        return [f'v_exp_f32 v{vT+i}, v{vZ+i}' for i in range(4)]

    add_ops = [f'v_pk_add_f32 {vr(vT,2)}, {vr(vT,2)}, 1.0 op_sel_hi:[1,0]',
               f'v_pk_add_f32 {vr(vT+2,2)}, {vr(vT+2,2)}, 1.0 op_sel_hi:[1,0]']
    rcp_ops = [f'v_rcp_f32 v{vT+i}, v{vT+i}' for i in range(4)]

    def r_ops(q):
        h0, h1 = hpair(q)
        rb = vR + 4*(q % 2)
        return [f'v_pk_mul_f32 {vr(rb,2)}, {vr(h0,2)}, {vr(vT,2)}',
                f'v_pk_mul_f32 {vr(rb+2,2)}, {vr(h1,2)}, {vr(vT+2,2)}']

    a.I(f'v_lshrrev_b32 v{vTmp}, 2, v{vLane}')
    a.I(f'v_add_u32 v{vYA}, s{sSEG0}, v{vTmp}')
    a.I(f'v_lshlrev_b32 v{vYA}, 3, v{vYA}')
    a.I(f'v_bfe_u32 v{vTmp}, v{vLane}, 3, 2')
    a.I(f'v_and_b32 v{vTmp+4}, 3, v{vLane}')
    a.I(f'v_lshl_add_u32 v{vTmp}, v{vTmp}, 2, v{vTmp+4}')
    a.I(f'v_add_u32 v{vTmp}, s{sSEG0}, v{vTmp}')
    a.I(f'v_lshlrev_b32 v{vTmp}, 5, v{vTmp}')
    a.I(f'v_lshrrev_b32 v{vTmp+4}, 5, v{vLane}')
    a.I(f'v_lshl_add_u32 v{vEfA}, v{vTmp+4}, 4, v{vTmp}')
    a.I(f'v_add_u32 v{vEfA}, {EFS}, v{vEfA}')
    a.I(f'v_mov_b32 v{vTmp}, {ZERO16}')
    a.I(f'v_cndmask_b32 v{vAL_A}, v{vTmp}, v{vEfA}, s[{sMLO}:{sMLO+1}]')
    a.I(f'v_cndmask_b32 v{vAH_A}, v{vTmp}, v{vEfA}, s[{sMHI}:{sMHI+1}]')
    for i in range(8):
        a.I(f'v_mov_b32 v{vTP+8+i}, 0')
    for i in range(4):
        a.I(f'v_mov_b32 v{vR+4+i}, 0')
    a.I(f's_mov_b32 s{sE+15}, 0')
    a.I(f's_mov_b32 s{sCNT}, s{sN}')
    a.I(f's_sub_i32 s{sREM}, s{sN}, 16')
    a.I('s_waitcnt lgkmcnt(0)')
    if cfg.get('dumph'):
        a.I(f's_lshl_b32 s{sT0}, s{sB}, 3')
        a.I(f's_add_u32 s{sT0}, s{sT0}, s{sW}')
        a.I(f's_lshl_b32 s{sT0}, s{sT0}, 2')
        a.I(f's_add_u32 s{sT0}, s{sT0}, 0x1200000')
        a.I(f'v_mov_b32 v{vTmp}, s{sSEG0}')
        a.I(f'v_mov_b32 v{vTmp+4}, 0')
        a.I(f'buffer_store_dword v{vTmp}, v{vTmp+4}, s[{sWS}:{sWS+3}], s{sT0} offen')
    for j in range(D0, D):
        a.I(f's_and_b32 s{sXO}, s{sE+j}, 0xfffffc00')
        a.I(f'buffer_load_dwordx4 {vr(xrs(j),4)}, v{vL16}, s[{sX}:{sX+3}], s{sXO} offen' + cfg.get('xld', ''))
    a.I(f's_and_b32 s{sXO}, s{sE+D}, 0xfffffc00')
    a.I('s_barrier')
    lstamp(a, cfg, 7, sW)
    a.I(f'ds_read_b128 {vr(vAL,4)}, v{vAL_A}')
    a.I(f'ds_read_b128 {vr(vAH,4)}, v{vAH_A}')
    a.I(f'ds_read_b64 {vr(vYraw,2)}, v{vYA} offset:{YS}')
    a.I('s_waitcnt lgkmcnt(1)')
    if cfg.get('dly') == 1:
        a.I('s_nop 15'); a.I('s_nop 15')
    for op in h_mfma():
        a.I(op)
    a.I('s_waitcnt lgkmcnt(0)')
    for op in w_compute(vWc):
        a.I(op)
    a.I('s_nop 7')
    pn = str(cfg.get('pnop', '0000'))
    pn = [int(c) for c in pn.zfill(4)]
    if cfg.get('hnop'):
        a.I('s_nop 15'); a.I('s_nop 15')
    for op in z_ops(0):
        a.I(op)
    if pn[0]: a.I(f's_nop {pn[0]}')
    for op in exp_ops(0):
        a.I(op)
    a.I(f's_nop {pn[1]}')
    for op in add_ops:
        a.I(op)
    if pn[2]: a.I(f's_nop {pn[2]}')
    for op in rcp_ops:
        a.I(op)
    a.I(f's_nop {pn[3]}')
    for op in r_ops(0) + z_ops(1):
        a.I(op)

    if cfg.get('padj'):
        a.I('s_branch K2_PADJ')
    for _ in range(cfg.get('pad', 0)):
        a.I('s_nop 0')
    if cfg.get('padj'):
        a.L('K2_PADJ')
    if cfg.get('dly') == 2:
        a.I('s_nop 15'); a.I('s_nop 15')
    if cfg.get('dly') == 3:
        a.I('s_waitcnt vmcnt(0)')
    if cfg.get('prio', 'dyn') == 'dyn':
        a.I(f's_lshl_b32 s{sT0}, s{sW}, 2')
        a.I(f's_add_u32 s{sT1}, s{sT0}, {PROG}')
        a.I(f'v_mov_b32 v{vProgA}, s{sT1}')
        a.I(f's_xor_b32 s{sT0}, s{sT0}, 16')
        a.I(f's_add_u32 s{sT1}, s{sT0}, {PROG}')
        a.I(f'v_mov_b32 v{vProgB}, s{sT1}')
    if cfg.get('prio') == 'young':
        a.I(f's_cmp_ge_u32 s{sW}, 4')
        a.I('s_cbranch_scc0 K2_PR')
        a.I('s_setprio 1')
        a.L('K2_PR')
    a.L('K2_LOOP')
    wn_ops = w_compute(vWn)
    for j in range(16):
        a(f'    ; ---- slot {j}')
        if j == 13 and cfg.get('dumph'):
            a.I(f's_cmp_eq_u32 s{sBMF}, 0')
            a.I('s_cbranch_scc0 K2_NODUMP')
            a.I(f's_lshl_b32 s{sT0}, s{sB}, 3')
            a.I(f's_add_u32 s{sT0}, s{sT0}, s{sW}')
            a.I(f's_lshl_b32 s{sT0}, s{sT0}, 14')
            a.I(f's_add_u32 s{sT0}, s{sT0}, 0x2000000')
            a.I(f'v_lshlrev_b32 v{vTmp}, 2, v{vLane}')
            dl = [vACC+i for i in range(40)] + [vR+i for i in range(8)] + [vTP+i for i in range(16)]
            for r, reg in enumerate(dl):
                if r and r % 16 == 0:
                    a.I(f's_add_u32 s{sT0}, s{sT0}, 4096')
                a.I(f'buffer_store_dword v{reg}, v{vTmp}, s[{sWS}:{sWS+3}], s{sT0} offen offset:{(r%16)*256}')
            a.L('K2_NODUMP')
        if j == 0:
            a.I(f'ds_read_b32 v{vENTn}, v{vEntA} offset:{ENT+64}')
            a.I(f'ds_read_b64 {vr(vYraw,2)}, v{vYA} offset:{YS+128}')
            if cfg.get('prio', 'dyn') == 'dyn':
                a.I(f'v_mov_b32 v{vTmp}, s{sCNT}')
                a.I(f'ds_write_b32 v{vProgA}, v{vTmp}')
                a.I(f'ds_read_b32 v{vProgP}, v{vProgB}')
        nocomp = cfg.get('nocomp'); noload = cfg.get('noload'); drop = str(cfg.get('drop', '')).split('+')
        if not noload:
            a.I(f's_waitcnt vmcnt({D-1 if cfg.get("dly") != 4 else D-2})')
        if cfg.get('dly') == 5:
            a.I('s_nop 1')
        xr = xrs(j % D)
        tp = vTP + 8*(j % 2)
        if not nocomp and 'mfma' not in drop:
            a.I(f'v_mfma_f32_4x4x4_16b_bf16 {vr(tp,4)}, {vr(vWc,2)}, {vr(xr,2)}, 0 cbsz:4 abid:{j}')
            a.I(f'v_mfma_f32_4x4x4_16b_bf16 {vr(tp+4,4)}, {vr(vWc,2)}, {vr(xr+2,2)}, 0 cbsz:4 abid:{j}')
        late = cfg.get('ldlate')
        if not noload and not late:
            a.I(f'buffer_load_dwordx4 {vr(xr,4)}, v{vL16}, s[{sX}:{sX+3}], s{sXO} offen' + cfg.get('xld', ''))
        if spread and 10 <= j <= 13 and 'h' not in drop:
            a.I(h_mfma()[j - 10])
        q = j // 2 + 1 if j % 2 == 0 else (j + 1) // 2
        if not nocomp and 'trans' not in drop:
            for op in (exp_ops(q) if j % 2 == 0 else rcp_ops):
                a.I(op)
        if not noload and late:
            a.I(f'buffer_load_dwordx4 {vr(xr,4)}, v{vL16}, s[{sX}:{sX+3}], s{sXO} offen' + cfg.get('xld', ''))
        jn = j + D + 1
        src_ent = vENTc if jn < 16 else vENTn
        if 'rl' not in drop:
            a.I(f'v_readlane_b32 s{sE+jn%16}, v{src_ent}, {jn%16}')
        jm = (j - 1) % 16
        tpm = vTP + 8*((j - 1) % 2)
        rb = vR + 4*((((j - 1) // 2)) % 2)
        sel = (j - 1) & 1
        if not nocomp:
            if 'idx' not in drop:
                a.I(f's_set_gpr_idx_on s{sE+jm}, gpr_idx(SRC2,DST)')
                if cfg.get('fnop', 0) & 1: a.I('s_nop 0')
            for p in range(2):
                for h in range(2):
                    acc = vACC + 4*p + 2*h
                    if 'fma' not in drop:
                        if cfg.get('fswap', 1):
                            a.I(f'v_pk_fma_f32 {vr(acc,2)}, {vr(rb+2*p,2)}, {vr(tpm+4*p+2*h,2)}, {vr(acc,2)} op_sel:[{sel},0,0] op_sel_hi:[{sel},1,1]')
                        else:
                            a.I(f'v_pk_fma_f32 {vr(acc,2)}, {vr(tpm+4*p+2*h,2)}, {vr(rb+2*p,2)}, {vr(acc,2)} op_sel:[0,{sel},0] op_sel_hi:[1,{sel},1]')
            if 'idx' not in drop:
                if cfg.get('fnop', 0) & 2: a.I('s_nop 0')
                a.I('s_set_gpr_idx_off')
                if cfg.get('fnop', 0) & 4: a.I('s_nop 0')
        else:
            a.I('s_nop 3')
        for _ in range(cfg.get('extra', 0)):
            a.I(f'v_mov_b32 v63, v{vLane}')
        a.I(f's_sub_u32 s{sCNT}, s{sCNT}, 1')
        a.I('s_cbranch_scc1 K2_EXIT')
        a.I(f's_and_b32 s{sXO}, s{sE+jn%16}, 0xfffffc00')
        if nocomp or 'pk' in drop:
            pass
        elif j % 2 == 0:
            for op in add_ops:
                a.I(op)
        else:
            for op in r_ops(q) + z_ops(q + 1):
                a.I(op)
        if j == 1:
            a.I(f'v_add_u32 v{vEfA}, 512, v{vEfA}')
            a.I(f'v_mov_b32 v{vTmp}, {ZERO16}')
            a.I(f'v_cndmask_b32 v{vAL_A}, v{vTmp}, v{vEfA}, s[{sMLO}:{sMLO+1}]')
            a.I(f'v_cndmask_b32 v{vAH_A}, v{vTmp}, v{vEfA}, s[{sMHI}:{sMHI+1}]')
            a.I(f'ds_read_b128 {vr(vAL,4)}, v{vAL_A}')
            a.I(f'ds_read_b128 {vr(vAH,4)}, v{vAH_A}')
        if j == 3:
            a.I('s_waitcnt lgkmcnt(0)')
            a.I(f'v_cmp_gt_i32 vcc, s{sREM}, v{vL15}')
            for op in wn_ops[0:4]:
                a.I(op)
            a.I(f'v_cndmask_b32 v{vENTn}, 0, v{vENTn}, vcc')
            if cfg.get('prio', 'dyn') == 'dyn':
                a.I(f'v_readfirstlane_b32 s{sT0}, v{vProgP}')
                a.I(f's_add_u32 s{sT1}, s{sCNT}, {cfg.get("pbias", 11)}')
                a.I(f's_cmp_gt_u32 s{sT1}, s{sT0}')
                a.I('s_cbranch_scc1 K2_PHI')
                a.I('s_setprio 0')
                a.I('s_branch K2_PDN')
                a.L('K2_PHI')
                a.I('s_setprio 1')
                a.L('K2_PDN')
        if j == 4 and 'w' not in drop:
            for op in wn_ops[4:8]:
                a.I(op)
        if j == 5 and 'w' not in drop:
            for op in wn_ops[8:14]:
                a.I(op)
        if spread and j == 8:
            for i in range(4):
                a.I(f'v_mov_b32 v{vHS+i}, v{vH0+12+i}')
            a.I(f'v_mov_b32 v{vHS1}, v{vH1+14}')
            a.I(f'v_mov_b32 v{vHS1+1}, v{vH1+15}')
        if not spread and j == 9:
            a.I(f'v_mov_b32 v{vHS}, v{vH0+14}')
            a.I(f'v_mov_b32 v{vHS+1}, v{vH0+15}')
            a.I(f'v_mov_b32 v{vHS+2}, v{vH1+14}')
            a.I(f'v_mov_b32 v{vHS+3}, v{vH1+15}')
        if not spread and j == 11 and 'h' not in drop:
            for op in h_mfma():
                a.I(op)
        if j == 15:
            a.I(f'v_mov_b32 v{vWc}, v{vWn}')
            a.I(f'v_mov_b32 v{vWc+1}, v{vWn+1}')
            a.I(f'v_mov_b32 v{vENTc}, v{vENTn}')
            a.I(f'v_add_u32 v{vEntA}, 64, v{vEntA}')
            a.I(f'v_add_u32 v{vYA}, 128, v{vYA}')
            a.I(f's_sub_i32 s{sREM}, s{sREM}, 16')
            a.I(f's_cmp_eq_u32 s{sBMF}, 0')
            a.I('s_cbranch_scc0 K2_LOOP')
            a.I(f's_add_u32 s{sT0}, s{sRND}, 1')
            a.I(f's_cmp_lt_u32 s{sT0}, s{sMAXR}')
            a.I('s_cbranch_scc1 K2_LOOP')
            a.I(f's_mov_b32 s{sBMF}, 1')
            bm_loads()
            a.I('s_branch K2_LOOP')
    a.L('K2_EXIT')
    if cfg.get('prio', 'dyn') == 'dyn':
        a.I(f'v_mov_b32 v{vTmp}, 0')
        a.I(f'ds_write_b32 v{vProgA}, v{vTmp}')
        a.I('s_setprio 0')
    a.I('s_waitcnt vmcnt(0) lgkmcnt(0)')
    a.I(f's_add_u32 s{sRND}, s{sRND}, 1')
    a.I(f's_cmp_lt_u32 s{sRND}, s{sMAXR}')
    a.I('s_cbranch_scc0 K2_TAIL')
    a.I('s_barrier')
    a.I('s_branch K2_ROUND')

    a.L('K2_TAIL')
    lstamp(a, cfg, 8, sW)
    a.I(f's_cmp_eq_u32 s{sBMF}, 0')
    a.I('s_cbranch_scc0 K2_BMOK')
    bm_loads()
    a.L('K2_BMOK')
    a.I(f'v_lshlrev_b32 v{vTmp}, 2, v{vLane}')
    a.I(f'v_add_u32 v{vTmp}, {AGG}, v{vTmp}')
    for s in range(5):
        a.I(f'v_add_u32 v{vTmp+4}, s{sNODE+s}, v{vTmp}')
        for o in range(4):
            t = vXR + s * 4 + o
            a.I(f'v_cvt_pk_bf16_f32 v{t}, v{vACC+8*s+o}, v{vACC+8*s+4+o}')
            a.I(f'ds_write_b32 v{vTmp+4}, v{t} offset:{o * AGG_STRIDE}')
    a.I('s_waitcnt lgkmcnt(0)')
    a.I('s_barrier')
    lstamp(a, cfg, 9, sW)
    a.I(f'v_mul_u32_u24 v{vTmp}, {AGG_STRIDE}, v{vL15}')
    a.I(f'v_lshrrev_b32 v{vTmp+4}, 4, v{vLane}')
    a.I(f'v_lshl_add_u32 v{vTmp}, v{vTmp+4}, 4, v{vTmp}')
    a.I(f's_lshr_b32 s{sT0}, s{sW}, 2')
    a.I(f's_mul_i32 s{sT1}, s{sT0}, {5*16*AGG_STRIDE}')
    a.I(f's_add_u32 s{sT1}, s{sT1}, {AGG}')
    a.I(f'v_add_u32 v{vTmp}, s{sT1}, v{vTmp}')
    a.I(f's_mul_i32 s{sT1}, s{sT0}, 20')
    a.I(f'v_add_u32 v{vTmp+4}, s{sT1}, v{vTmp+4}')
    a.I(f'v_lshlrev_b32 v{vTmp+4}, 18, v{vTmp+4}')
    a.I(f's_lshl_b32 s{sT1}, s{sB}, 10')
    a.I(f's_and_b32 s{sT2}, s{sW}, 3')
    a.I(f's_lshl_b32 s{sT2}, s{sT2}, 8')
    a.I(f's_add_u32 s{sT1}, s{sT1}, s{sT2}')
    a.I(f'v_lshl_add_u32 v{vTmp+5}, v{vL15}, 4, s{sT1}')
    a.I(f'v_add_u32 v{vTmp+4}, v{vTmp+4}, v{vTmp+5}')
    vA = (vH0, vH0 + 16 - 16 + 16)
    vA = (vH0, vH1)
    vD = (vTP, vTP + 8)
    vO = (vXR, vXR + 4, vXR + 8, vXR + 12)
    def a_reads(tt):
        for ks in range(4):
            a.I(f'ds_read_b128 {vr(vA[tt%2]+4*ks,4)}, v{vTmp} offset:{tt*16*AGG_STRIDE + 64*ks}')
    a_reads(0)
    a.I('s_waitcnt vmcnt(0)')
    for tt in range(5):
        if tt + 1 < 5:
            a_reads(tt + 1)
            a.I('s_waitcnt lgkmcnt(4)')
        else:
            a.I('s_waitcnt lgkmcnt(0)')
        D = vD[tt % 2]
        for ks in range(4):
            for t in range(2):
                c = '0' if ks == 0 else vr(D+4*t, 4)
                a.I(f'v_mfma_f32_16x16x32_bf16 {vr(D+4*t,4)}, {vr(vA[tt%2]+4*ks,4)}, {vr(vBM+16*t+4*ks,4)}, {c}')
        if tt > 0:
            Dp = vD[(tt - 1) % 2]; O = vO[(tt - 1) % 4]
            a.I(f'v_cvt_pk_bf16_f32 v{O}, v{Dp}, v{Dp+1}')
            a.I(f'v_cvt_pk_bf16_f32 v{O+1}, v{Dp+2}, v{Dp+3}')
            a.I(f'v_cvt_pk_bf16_f32 v{O+2}, v{Dp+4}, v{Dp+5}')
            a.I(f'v_cvt_pk_bf16_f32 v{O+3}, v{Dp+6}, v{Dp+7}')
            a.I(f'buffer_store_dwordx4 {vr(O,4)}, v{vTmp+4}, s[{sOUT}:{sOUT+3}], 0 offen' + cfg.get('ost', ''))
            if cfg.get('k2extra'):
                a.I(f's_mov_b32 s{sWS+2}, 0x4000000')
                a.I(f's_mov_b32 s{sT2}, 0x2000000')
                a.I(f'buffer_store_dwordx4 {vr(O,4)}, v{vTmp+4}, s[{sWS}:{sWS+3}], s{sT2} offen' + cfg.get('ost', ''))
            a.I(f'v_add_u32 v{vTmp+4}, {4 << 18:#x}, v{vTmp+4}')
    Dp = vD[4 % 2]; O = vO[0]
    a.I('s_nop 7')
    a.I(f'v_cvt_pk_bf16_f32 v{O}, v{Dp}, v{Dp+1}')
    a.I(f'v_cvt_pk_bf16_f32 v{O+1}, v{Dp+2}, v{Dp+3}')
    a.I(f'v_cvt_pk_bf16_f32 v{O+2}, v{Dp+4}, v{Dp+5}')
    a.I(f'v_cvt_pk_bf16_f32 v{O+3}, v{Dp+6}, v{Dp+7}')
    a.I(f'buffer_store_dwordx4 {vr(O,4)}, v{vTmp+4}, s[{sOUT}:{sOUT+3}], 0 offen' + cfg.get('ost', ''))
    if cfg.get('stamps'):
        a.I('s_waitcnt vmcnt(0)')
        lstamp(a, cfg, 10, sW)
        a.I(f's_lshl_b32 s{sT0}, s{sW}, 2')
        a.I(f's_add_u32 s{sT0}, s{sT0}, s{sDBG}')
        a.I(f'v_mov_b32 v{vTmp+1}, s{sT0}')
        a.I(f'v_mov_b32 v{vTmp}, s{80+2*8}')
        a.I(f'buffer_store_dword v{vTmp}, v{vTmp+1}, s[{sWS}:{sWS+3}], 0 offen offset:64')
        a.I(f'v_mov_b32 v{vTmp+4}, s{sN}')
        a.I(f'buffer_store_dword v{vTmp+4}, v{vTmp+1}, s[{sWS}:{sWS+3}], 0 offen offset:96')
        a.I('s_waitcnt vmcnt(0)')
        a.I(f's_cmp_eq_u32 s{sW}, 0')
        a.I('s_cbranch_scc0 K2_END')
        a.I(f'v_mov_b32 v{vTmp+1}, s{sDBG}')
        for i in range(11):
            a.I(f'v_mov_b32 v{vTmp}, s{80+2*i}')
            a.I(f'buffer_store_dword v{vTmp}, v{vTmp+1}, s[{sWS}:{sWS+3}], 0 offen offset:{4*i}')
            a.I('s_waitcnt vmcnt(0)')
        if cfg.get('dbgwg') is not None:
            a.I(f's_cmp_eq_u32 s{sB}, {cfg["dbgwg"]}')
            a.I('s_cbranch_scc0 K2_END')
            a.I('s_load_dwordx2 s[42:43], s[0:1], 72')
            a.I(f'v_mov_b32 v{vTmp+1}, {STAMP_OFF + 64*cfg["dbgwg"]:#x}')
            a.I(f'buffer_load_dwordx4 v[136:139], v{vTmp+1}, s[{sWS}:{sWS+3}], 0 offen')
            a.I('s_waitcnt vmcnt(0) lgkmcnt(0)')
            a.I('s_mov_b32 s44, s42')
            a.I('s_and_b32 s45, s43, 0xffff')
            a.I('s_mov_b32 s46, 256')
            a.I('s_mov_b32 s47, 0x20000')
            a.I(f'v_mov_b32 v{vTmp+1}, 0')
            for i in range(11):
                a.I(f'v_sub_u32 v{vTmp}, s{80+2*i}, v136')
                a.I(f'buffer_store_dword v{vTmp}, v{vTmp+1}, s[44:47], 0 offen offset:{4*i}')
                a.I('s_waitcnt vmcnt(0)')
            for i, r in enumerate((137, 138, 139)):
                a.I(f'v_sub_u32 v{vTmp}, v{r}, v136')
                a.I(f'buffer_store_dword v{vTmp}, v{vTmp+1}, s[44:47], 0 offen offset:{44+4*i}')
                a.I('s_waitcnt vmcnt(0)')
    a.L('K2_END')
    a.I('s_endpgm')
    a.L('K2_CODE_END')
    a.I('s_endpgm')
    return name, NV, (102 if cfg.get('stamps') else 76)


def vOneConst(a, v, val):
    a.I(f'v_mov_b32 v{v}, {val}')
    return v


def build(cfg):
    a = Asm()
    seq = cfg.get('seq', 'BM')
    for ch in seq:
        if ch == 'B':
            a('; @launch kernel=bin_kernel grid=(256,1,1) block=(640,1,1) lds=32768')
        elif ch == 'M':
            a(f'; @launch kernel=main_kernel grid=(256,1,1) block=(512,1,1) lds={K2_LDS}')
        elif ch == 'n':
            a('; @launch kernel=nop_kernel grid=(1,1,1) block=(64,1,1) lds=0')
        elif ch == 'o':
            a('; @launch kernel=nopb_kernel grid=(1,1,1) block=(64,1,1) lds=0')
        elif ch == 'N':
            a('; @launch kernel=nop_kernel grid=(256,1,1) block=(512,1,1) lds=0')
    a('.amdgcn_target "amdgcn-amd-amdhsa--gfx950"')
    a('.text')
    k1 = gen_k1(a, cfg)
    k2 = gen_k2(a, cfg)
    ks = [k1, k2]
    if 'n' in seq or 'N' in seq:
        a('.globl nop_kernel\n.p2align 8\n.type nop_kernel,@function\nnop_kernel:\n    s_endpgm')
        ks.append(('nop_kernel', 8, 16))
    if 'o' in seq:
        a('.globl nopb_kernel\n.p2align 8\n.type nopb_kernel,@function\nnopb_kernel:\n    s_endpgm')
        ks.append(('nopb_kernel', 8, 16))
    a('.section .rodata,"a"')
    for k in ks:
        a('.p2align 6')
        kd(a, *k)
    return a.text()


def gen_text(cfg):
    import hazard
    return hazard.fix(build(cfg))[0]


if __name__ == '__main__':
    cfg = {}
    out = sys.argv[1] if len(sys.argv) > 1 else 'gather_scatter__tensor_product_equiv_tfn__graph.s'
    for kv in sys.argv[2:]:
        k, v = kv.split('=', 1)
        try:
            v = int(v)
        except ValueError:
            v = v.replace('_', ' ')
        cfg[k] = v
    import hazard
    txt, n = hazard.fix(build(cfg), verbose=bool(cfg.get('hzv')))
    open(out, 'w').write(txt)
    if n: print('hazard pass inserted', n, 'nops')
    print('wrote', out)
```
